```python
import torch

def _softmax(x, axis=-1):
    return torch.softmax(x, dim=axis)
def _gelu(x):
    return torch.nn.functional.gelu(x, approximate="tanh")
def _silu(x):
    return torch.nn.functional.silu(x)
def _sigmoid(x):
    return torch.sigmoid(x)
def _layernorm(x, axis=-1, eps=1e-5):
    m = x.mean(dim=axis, keepdim=True)
    v = x.var(dim=axis, keepdim=True, unbiased=False)
    return (x - m) / torch.sqrt(v + eps)
def _scatter_add(tgt, idx, src, axis=0):
    return tgt.clone().index_add_(axis, idx, src)
def _segment_sum(src, seg, n):
    out = torch.zeros((n,) + src.shape[1:], dtype=src.dtype)
    return out.index_add_(0, seg, src)
def _pad(x, pw):
    flat = tuple(v for pair in reversed(pw) for v in pair)
    return torch.nn.functional.pad(x, flat)

kernel_name = 'sequential_preLN__softmax_full_mha__moe_arch_mod__prompt'

def setup_inputs():

    _w = (lambda a: (lambda t: t.to(torch.bfloat16) if t.is_floating_point() else t)(torch.as_tensor(a)))
    def _A_setup():
        B, S, D = 1, 2048, 512
        return {
            "x": _w((lambda *s: torch.randn(*s, dtype=torch.bfloat16) * 0.05)(B, S, D)),
            "wqkv": _w((lambda *s: torch.randn(*s, dtype=torch.bfloat16) * 0.05)(D, 3 * D)),
            "wo": _w((lambda *s: torch.randn(*s, dtype=torch.bfloat16) * 0.05)(D, D)),
        }
    _A_in = _A_setup()

    def _B_setup():
        B, S, D, F, C = 1, 2048, 512, 1792, 2
        return {
            "x": _w((lambda *s: torch.randn(*s, dtype=torch.bfloat16) * 0.05)(B, S, D)),
            "w_r": _w((lambda *s: torch.randn(*s, dtype=torch.bfloat16) * 0.05)(D)),
            "w_gate": _w((lambda *s: torch.randn(*s, dtype=torch.bfloat16) * 0.05)(D, F)),
            "w_up": _w((lambda *s: torch.randn(*s, dtype=torch.bfloat16) * 0.05)(D, F)),
            "w_down": _w((lambda *s: torch.randn(*s, dtype=torch.bfloat16) * 0.05)(F, D)),
        }
    _B_in = _B_setup()

    return {
        "A_x": _A_in["x"],
        "A_wqkv": _A_in["wqkv"],
        "A_wo": _A_in["wo"],
        "B_x": _B_in["x"],
        "B_w_r": _B_in["w_r"],
        "B_w_gate": _B_in["w_gate"],
        "B_w_up": _B_in["w_up"],
        "B_w_down": _B_in["w_down"],
    }

def reference(A_x, A_wqkv, A_wo, B_x, B_w_r, B_w_gate, B_w_up, B_w_down):
    def _A_ref(x, wqkv, wo):
        B, S, D = x.shape
        H = 32; Dh = D // H
        qkv = (lambda x, *d: x.permute(*d))((x @ wqkv).reshape(B, S, 3, H, Dh), 2, 0, 3, 1, 4)
        q, k, v = qkv[0], qkv[1], qkv[2]
        scale = Dh ** -0.5
        scores = torch.einsum("bhqd,bhkd->bhqk", q, k) * scale
        p = _softmax(scores, axis=-1)
        o = torch.einsum("bhqk,bhkd->bhqd", p, v)
        return (lambda x, *d: x.permute(*d))(o, 0, 2, 1, 3).reshape(B, S, D) @ wo

    def _B_ref(x, w_r, w_gate, w_up, w_down):
        B, S, D = x.shape
        C = 2
        r = x @ w_r
        idx = torch.argsort(-r, axis=-1)[:, :C]
        idx_e = (lambda x, n, axis: torch.repeat_interleave(x, n, dim=axis))(idx.reshape(B, C, 1), D, axis=2)
        x_sel = (lambda x, i, axis: torch.take_along_dim(x, i, dim=axis))(x, idx_e, axis=1)
        g = _silu(x_sel @ w_gate)
        u = x_sel @ w_up
        y = (g * u) @ w_down
        r_sel = _sigmoid((lambda x, i, axis: torch.take_along_dim(x, i, dim=axis))(r, idx, axis=1))
        y = y * r_sel.reshape(B, C, 1)
        b_off = (torch.arange(B) * S).reshape(B, 1)
        flat_idx = (idx + b_off).reshape(B * C)
        zero = (x * 0.0).reshape(B * S, D)
        upd = _scatter_add(zero, flat_idx, y.reshape(B * C, D), axis=0)
        return x + upd.reshape(B, S, D)

    x = A_x
    h = x + _A_ref(_layernorm(x, axis=-1), A_wqkv, A_wo)
    h2 = h + _B_ref(_layernorm(h, axis=-1), B_w_r, B_w_gate, B_w_up, B_w_down)
    return h2
```

```python
import sys, math

WS_Q = 0x000000; WS_K = 0x200000; WS_V = 0x400000; WS_O = 0x600000; WS_H = 0x800000
WS_ST = 0xA00000; WS_ACT = 0xA10000; WS_SEL = 0xA20000
C_SCALE = 0.25 * math.log2(math.e)
import struct
def f32bits(x): return struct.unpack("<I", struct.pack("<f", x))[0]

class E:
    def __init__(self): self.l = []
    def __call__(self, s): self.l.append("    " + s)
    def lab(self, s): self.l.append(s + ":")
    def c(self, s): self.l.append("    ; " + s)
    def nop(self, n):
        while n > 0:
            k = min(n, 16); self(f"s_nop {k-1}"); n -= k
    def txt(self): return "\n".join(self.l) + "\n"

def vr(a, n): return f"v[{a}:{a+n-1}]"
def sr(a, n): return f"s[{a}:{a+n-1}]"

def srd(e, d, lo, hi, size):
    e(f"s_mov_b32 s{d}, s{lo}"); e(f"s_mov_b32 s{d+1}, s{hi}"); e(f"s_mov_b32 s{d+2}, {size:#x}"); e(f"s_mov_b32 s{d+3}, 0x00020000")

def header(e, name):
    e.l.append(f".globl {name}"); e.l.append(".p2align 8"); e.l.append(f".type {name},@function"); e.lab(name)

def descr(name, vg, sg=64):
    vg4 = (vg + 3) // 4 * 4
    return f""".p2align 6
.amdhsa_kernel {name}
  .amdhsa_next_free_vgpr {vg}
  .amdhsa_next_free_sgpr {sg}
  .amdhsa_accum_offset {vg4}
  .amdhsa_group_segment_fixed_size 0
  .amdhsa_kernarg_size 88
  .amdhsa_user_sgpr_count 2
  .amdhsa_user_sgpr_kernarg_segment_ptr 1
  .amdhsa_system_sgpr_workgroup_id_x 1
.end_amdhsa_kernel
"""

def rnd_bf16(e, d, s):
    e(f"v_cvt_pk_bf16_f32 v{d}, v{s}, v{s}")
    e(f"v_lshlrev_b32 v{d}, 16, v{d}")

def ln_scalars(e, sm, sq, t, outs, inv_n):
    mb, sb = outs
    e(f"v_mul_f32 v{t}, {inv_n}, v{sm}")
    e(f"v_mul_f32 v{t+1}, {inv_n}, v{sq}")
    e(f"v_fma_f32 v{t+1}, -v{t}, v{t}, v{t+1}")
    e(f"v_max_f32 v{t+1}, 0, v{t+1}")
    rnd_bf16(e, mb, t)
    rnd_bf16(e, t+1, t+1)
    e(f"v_add_f32 v{t+1}, 0x3727c5ac, v{t+1}")
    rnd_bf16(e, t+1, t+1)
    e(f"v_sqrt_f32 v{t+1}, v{t+1}")
    e("s_nop 0")
    rnd_bf16(e, sb, t+1)

def k1():
    e = E(); name = "k1_kernel"; header(e, name)
    A_BASE = 73728; AP = 1040
    e("s_cmp_ge_u32 s2, 256"); e("s_cbranch_scc1 K1_END")
    e("s_load_dwordx4 s[4:7], s[0:1], 0"); e("s_load_dwordx2 s[8:9], s[0:1], 80")
    e("v_lshrrev_b32 v1, 6, v0"); e("v_and_b32 v2, 63, v0"); e("s_nop 0")
    e("v_readfirstlane_b32 s20, v1")
    e("s_lshr_b32 s21, s2, 3"); e("s_and_b32 s22, s2, 7")
    e("s_movk_i32 s28, 0x1000"); e("s_movk_i32 s29, 0x2000"); e("s_movk_i32 s30, 0x3000")
    e("s_waitcnt lgkmcnt(0)")
    srd(e, 12, 4, 5, 2097152); srd(e, 16, 6, 7, 1572864); srd(e, 24, 8, 9, 0x1000000)
    e("v_lshrrev_b32 v4, 4, v2"); e("v_and_b32 v5, 15, v2")
    e("s_lshl_b32 s23, s21, 6"); e("s_lshl_b32 s31, s20, 4"); e("s_add_u32 s23, s23, s31")
    e("v_add_u32 v3, s23, v4"); e("v_lshlrev_b32 v3, 10, v3"); e("v_lshl_add_u32 v3, v5, 4, v3")
    for p in range(4):
        so = ["0", "s28", "s29", "s30"][p]
        for i in range(4):
            e(f"buffer_load_dwordx4 {vr(64+16*p+4*i,4)}, v3, s[12:15], {so} offen offset:{i*256}")
    e("s_mul_i32 s31, s20, 384")
    e("s_movk_i32 s33, 2731")
    e("s_mul_i32 s34, s22, 384")
    for i in range(6):
        e(f"v_add_u32 v6, s31, v2")
        if i: e(f"v_add_u32 v6, {i*64}, v6")
        e("v_mul_lo_u32 v7, v6, s33"); e("v_lshrrev_b32 v7, 16, v7")
        e("v_mul_u32_u24 v8, 24, v7"); e("v_sub_u32 v8, v6, v8")
        e("v_lshrrev_b32 v9, 2, v8")
        e("v_bfe_u32 v16, v7, 1, 1"); e("v_xor_b32 v9, v9, v16")
        e("v_and_b32 v8, 3, v8")
        e("v_mul_u32_u24 v7, 3072, v7")
        e("v_lshl_add_u32 v7, v9, 6, v7"); e("v_lshl_add_u32 v7, v8, 4, v7")
        e(f"v_add_u32 v{10+i}, s34, v7")
    e("s_mul_i32 s35, s20, 6144")
    def dma_chunk(c):
        buf = c % 3
        e(f"s_mov_b32 s36, {c*196608}")
        for i in range(6):
            e(f"s_add_u32 m0, s35, {buf*24576 + i*1024}")
            e("s_nop 0")
            e(f"buffer_load_dwordx4 v{10+i}, s[16:19], s36 offen lds")
    for c in range(3): dma_chunk(c)
    e("s_cmp_ge_u32 s2, 8"); e("s_cbranch_scc1 K1_NOZ")
    e("v_mov_b32 v20, 0"); e("v_mov_b32 v21, 0"); e("v_mov_b32 v22, 0"); e("v_mov_b32 v23, 0")
    e("s_lshl_b32 s37, s2, 12"); e(f"s_add_u32 s37, s37, {WS_ST:#x}")
    e("v_lshlrev_b32 v24, 4, v0")
    e("buffer_store_dwordx4 v[20:23], v24, s[24:27], s37 offen")
    e("s_waitcnt vmcnt(0)")
    e.lab("K1_NOZ")
    e("s_mov_b32 s38, 0x3f803f80")
    e("v_mov_b32 v17, s38")
    for p in range(4):
        e(f"v_mov_b32 v{32+p}, 0"); e(f"v_mov_b32 v{36+p}, 0")
    e("s_waitcnt vmcnt(18)")
    for j in range(16):
        for p in range(4):
            r = 64 + 16*p + j
            e(f"v_dot2_f32_bf16 v{32+p}, v{r}, v17, v{32+p}")
            e(f"v_dot2_f32_bf16 v{36+p}, v{r}, v{r}, v{36+p}")
    e("s_nop 2")
    for ror in (8, 4, 2, 1):
        for q in range(8):
            e(f"v_add_f32_dpp v{32+q}, v{32+q}, v{32+q} row_ror:{ror} row_mask:0xf bank_mask:0xf")
    for p in range(4):
        ln_scalars(e, 32+p, 36+p, 48, (50, 51), "0x3b000000")
        e(f"v_rcp_f32 v{40+p}, v51"); e("s_nop 0")
        e(f"v_mul_f32 v{44+p}, v50, v{40+p}")
        e(f"v_sub_f32 v{44+p}, 0, v{44+p}")
    e("s_lshl_b32 s31, s20, 4")
    e("v_add_u32 v18, s31, v4"); e(f"v_mul_u32_u24 v18, {AP}, v18"); e("v_lshl_add_u32 v18, v5, 4, v18")
    e(f"v_add_u32 v18, {A_BASE}, v18")
    for p in range(4):
        for j in range(16):
            r = 64 + 16*p + j
            e(f"v_lshlrev_b32 v52, 16, v{r}"); e(f"v_and_b32 v53, 0xffff0000, v{r}")
            e(f"v_fma_f32 v52, v52, v{40+p}, v{44+p}"); e(f"v_fma_f32 v53, v53, v{40+p}, v{44+p}")
            e(f"v_cvt_pk_bf16_f32 v{r}, v52, v53")
            if j % 4 == 3:
                e(f"ds_write_b128 v18, {vr(r-3,4)} offset:{p*4*AP + (j//4)*256}")
    e("s_and_b32 s39, s20, 1"); e("s_lshr_b32 s40, s20, 1")
    e("v_and_b32 v19, 31, v2"); e("v_lshrrev_b32 v20, 5, v2")
    e("s_lshl_b32 s31, s39, 5")
    e("v_add_u32 v21, s31, v19"); e(f"v_mul_u32_u24 v21, {AP}, v21"); e("v_lshl_add_u32 v21, v20, 4, v21")
    e(f"v_add_u32 v21, {A_BASE}, v21")
    e("v_bfe_u32 v22, v2, 2, 2")
    e("v_and_b32 v23, 3, v2")
    e("v_bfe_u32 v24, v2, 4, 1")
    e("v_lshl_add_u32 v25, v20, 3, v22")
    e("v_mul_u32_u24 v25, 384, v25")
    e("v_lshl_add_u32 v25, v24, 5, v25"); e("v_lshl_add_u32 v25, v23, 3, v25")
    e("v_lshrrev_b32 v26, 1, v22")
    e("s_mul_i32 s41, s40, 3")
    for jj in range(3):
        e(f"v_mov_b32 v27, s41")
        if jj: e(f"v_add_u32 v27, {jj}, v27")
        e("v_xor_b32 v27, v27, v26")
        e(f"v_lshl_add_u32 v{54+jj}, v27, 6, v25")
        e(f"v_add_u32 v{58+jj}, 49152, v{54+jj}")
    for r in range(128, 176): e(f"v_mov_b32 v{r}, 0")
    e("s_waitcnt lgkmcnt(0)")
    XF = [176, 180]; WF = [184, 196]
    def reads(c, ks, sel):
        buf = c % 3; s = c*4 + ks
        e(f"ds_read_b128 {vr(XF[sel],4)}, v21 offset:{32*s}")
        for jj in range(3):
            base = (58+jj) if buf == 2 else (54+jj)
            bo = 0 if buf == 2 else buf*24576
            for u in range(2):
                e(f"ds_read_b64_tr_b16 {vr(WF[sel]+4*jj+2*u,2)}, v{base} offset:{bo + (16*ks+4*u)*384}")
    for c in range(8):
        n = 12 if c == 0 else (0 if c == 7 else 6)
        e(f"s_waitcnt vmcnt({n})"); e("s_barrier")
        if 1 <= c <= 5: dma_chunk(c+2)
        reads(c, 0, 0)
        for ks in range(4):
            sel = ks & 1
            if ks < 3:
                reads(c, ks+1, sel ^ 1); e("s_waitcnt lgkmcnt(7)")
            else:
                e("s_waitcnt lgkmcnt(0)")
            for jj in range(3):
                e(f"v_mfma_f32_32x32x16_bf16 {vr(128+16*jj,16)}, {vr(WF[sel]+4*jj,4)}, {vr(XF[sel],4)}, {vr(128+16*jj,16)}")
    e("s_lshl_b32 s31, s21, 6"); e("s_lshl_b32 s42, s39, 5"); e("s_add_u32 s31, s31, s42")
    e("v_add_u32 v22, s31, v19"); e("v_lshlrev_b32 v22, 5, v22"); e("v_lshl_add_u32 v22, v20, 4, v22")
    e("s_mul_i32 s43, s22, 6"); e("s_add_u32 s43, s43, s41")
    e.nop(12)
    for jj in range(3):
        e(f"s_add_u32 s44, s43, {jj}")
        e("s_lshr_b32 s45, s44, 4")
        e("s_and_b32 s46, s44, 15")
        e("s_lshl_b32 s47, s45, 21"); e("s_lshl_b32 s46, s46, 17"); e("s_add_u32 s47, s47, s46")
        e("s_add_u32 s48, s47, 0x10000")
        e("s_cmp_eq_u32 s45, 0"); e(f"s_cselect_b32 s49, {f32bits(C_SCALE):#x}, 1.0")
        a = 128 + 16*jj
        for r in range(16): e(f"v_mul_f32 v{a+r}, s49, v{a+r}")
        for r in range(8): e(f"v_cvt_pk_bf16_f32 v{a+r}, v{a+2*r}, v{a+2*r+1}")
        e(f"buffer_store_dwordx4 {vr(a,4)}, v22, s[24:27], s47 offen")
        e(f"buffer_store_dwordx4 {vr(a+4,4)}, v22, s[24:27], s48 offen")
    e.lab("K1_END"); e("s_endpgm")
    return e.txt(), descr(name, 208, 64), f"; @launch kernel={name} grid=(256,1,1) block=(256,1,1) lds=140288"

def k2():
    e = E(); name = "k2_kernel"; header(e, name)
    VB = 65536; CB = 131072
    Q = 8; NM = 16; S = [32, 48]; O = 64; P = 80; KB = [88, 92]; VF = [96, 104]; T = 112
    e("s_cmp_ge_u32 s2, 256"); e("s_cbranch_scc1 K2_END")
    e("s_load_dwordx2 s[4:5], s[0:1], 80")
    e("v_lshrrev_b32 v1, 6, v0"); e("v_and_b32 v2, 63, v0"); e("s_nop 0")
    e("v_readfirstlane_b32 s20, v1")
    e("s_and_b32 s21, s2, 7"); e("s_lshl_b32 s21, s21, 2"); e("s_bfe_u32 s22, s2, 0x20003"); e("s_add_u32 s21, s21, s22")
    e("s_lshr_b32 s22, s2, 5")
    e("s_waitcnt lgkmcnt(0)")
    srd(e, 8, 4, 5, 0x800000)
    e("v_and_b32 v7, 31, v2"); e("v_lshrrev_b32 v6, 5, v2")
    e("v_lshlrev_b32 v3, 5, v7"); e("v_lshl_add_u32 v3, v6, 4, v3")
    e("v_lshlrev_b32 v4, 4, v2")
    e("s_lshl_b32 s23, s21, 16"); e("s_lshl_b32 s24, s22, 13"); e("s_lshl_b32 s25, s20, 10")
    e("s_add_u32 s24, s24, s25"); e("s_add_u32 s24, s24, s23")
    e(f"buffer_load_dwordx4 {vr(Q,4)}, v3, s[8:11], s24 offen")
    e(f"s_add_u32 s26, s23, s25"); e(f"s_add_u32 s26, s26, {WS_K:#x}")
    for c in range(8):
        e(f"s_add_u32 s27, s26, {c*8192}"); e(f"s_add_u32 s28, s27, {WS_V-WS_K:#x}")
        e(f"s_add_u32 m0, s25, {c*8192}"); e("s_nop 0")
        e("buffer_load_dwordx4 v4, s[8:11], s27 offen lds")
        e(f"s_add_u32 m0, s25, {VB + c*8192}"); e("s_nop 0")
        e("buffer_load_dwordx4 v4, s[8:11], s28 offen lds")
    e("v_and_b32 v8+0, 1, v0".replace("v8+0", f"v{T}"))
    e(f"v_mov_b32 v{T+4}, 0x3f80"); e(f"v_mov_b32 v{T+5}, 0"); e(f"v_mov_b32 v{T+7}, 0")
    e(f"v_cmp_eq_u32 vcc, 0, v{T}"); e("s_nop 1")
    e(f"v_cndmask_b32 v{T+4}, 0, v{T+4}, vcc"); e(f"v_mov_b32 v{T+6}, v{T+4}")
    e(f"v_lshlrev_b32 v{T+1}, 4, v0"); e(f"v_add_u32 v{T+1}, {CB}, v{T+1}")
    e(f"ds_write_b128 v{T+1}, {vr(T+4,4)}")
    e("s_cmp_lg_u32 s20, 0"); e("s_cbranch_scc1 K2_NOC")
    e(f"ds_write_b128 v{T+1}, {vr(T+4,4)} offset:8192")
    e.lab("K2_NOC")
    e(f"v_bfe_u32 v{T}, v2, 2, 2"); e(f"v_and_b32 v{T+1}, 3, v2"); e(f"v_bfe_u32 v{T+2}, v2, 4, 1")
    e(f"v_lshl_add_u32 v{T+3}, v6, 2, v{T}")
    e(f"v_lshlrev_b32 v{T+3}, 5, v{T+3}"); e(f"v_lshl_add_u32 v{T+3}, v{T+1}, 3, v{T+3}")
    e(f"v_add_u32 v{T+3}, {VB}, v{T+3}")
    e(f"v_lshlrev_b32 v{T+4}, 5, v{T}"); e(f"v_lshl_add_u32 v{T+4}, v{T+1}, 3, v{T+4}"); e(f"v_add_u32 v{T+4}, {CB}, v{T+4}")
    e(f"v_cmp_eq_u32 vcc, 0, v{T+2}"); e(f"v_mov_b32 v{T+5}, 0x2000"); e("s_nop 1")
    e(f"v_cndmask_b32 v5, v{T+4}, v{T+3}, vcc")
    e(f"v_cndmask_b32 v1, 0, v{T+5}, vcc")
    for r in range(16): e(f"v_mov_b32 v{O+r}, 0")
    e("s_waitcnt vmcnt(14) lgkmcnt(0)"); e("s_barrier")
    e(f"ds_read_b128 {vr(KB[0],4)}, v3")
    e("s_waitcnt lgkmcnt(0)")
    e(f"v_mfma_f32_32x32x16_bf16 {vr(S[0],16)}, {vr(KB[0],4)}, {vr(Q,4)}, 0")
    e(f"ds_read_b128 {vr(KB[1],4)}, v3 offset:1024")
    for j in range(2):
        for u in range(2):
            e(f"ds_read_b64_tr_b16 {vr(VF[0]+4*j+2*u,2)}, v5 offset:{j*512+u*256}")
    e.nop(16)
    s0 = S[0]
    e(f"v_max3_f32 v{T}, v{s0}, v{s0+1}, v{s0+2}")
    for r in range(3, 15, 2): e(f"v_max3_f32 v{T}, v{T}, v{s0+r}, v{s0+r+1}")
    e(f"v_max_f32 v{T}, v{T}, v{s0+15}")
    e(f"v_mov_b32 v{T+1}, v{T}"); e("s_nop 1")
    e(f"v_permlane32_swap_b32 v{T}, v{T+1}"); e("s_nop 1")
    e(f"v_max_f32 v{T}, v{T}, v{T+1}")
    e(f"v_sub_f32 v{T}, 0, v{T}")
    for r in range(16): e(f"v_mov_b32 v{NM+r}, v{T}")
    e("s_nop 1")
    e(f"v_mfma_f32_32x32x16_bf16 {vr(S[0],16)}, {vr(KB[0],4)}, {vr(Q,4)}, {vr(NM,16)}")
    e("s_mov_b32 s30, 0")
    e.lab("K2_LOOP")
    for i in range(8):
        cur = i & 1; nx = cur ^ 1; sc = S[cur]
        if i == 5:
            e("s_cmp_gt_u32 s30, 1"); e("s_cbranch_scc1 K2_NW")
            e("s_cmp_eq_u32 s30, 0"); e("s_cbranch_scc0 K2_W1")
            e("s_waitcnt vmcnt(12)"); e("s_barrier"); e("s_branch K2_NW")
            e.lab("K2_W1"); e("s_waitcnt vmcnt(0)"); e("s_barrier")
            e.lab("K2_NW")
        e("s_waitcnt lgkmcnt(4)")
        e(f"v_mfma_f32_32x32x16_bf16 {vr(S[nx],16)}, {vr(KB[nx],4)}, {vr(Q,4)}, {vr(NM,16)}")
        e(f"ds_read_b128 {vr(KB[cur],4)}, v3 offset:{(i+2)*1024}")
        for j in range(2):
            for u in range(2):
                e(f"ds_read_b64_tr_b16 {vr(VF[nx]+4*j+2*u,2)}, v5 offset:{(i+1)*1024 + j*512+u*256}")
        ex = lambda r: e(f"v_exp_f32 v{sc+r}, v{sc+r}")
        cv = lambda p: e(f"v_cvt_pk_bf16_f32 v{P+p}, v{sc+2*p}, v{sc+2*p+1}")
        ex(0); ex(1); ex(2); cv(0); ex(3); ex(4); cv(1); ex(5); ex(6); cv(2); ex(7); ex(8); cv(3); ex(9); ex(10)
        e("s_waitcnt lgkmcnt(7)")
        e(f"v_mfma_f32_32x32x16_bf16 {vr(O,16)}, {vr(VF[cur],4)}, {vr(P,4)}, {vr(O,16)}")
        cv(4); ex(11); ex(12); cv(5); ex(13); ex(14); cv(6); ex(15); e("s_nop 0"); cv(7)
        e("s_waitcnt lgkmcnt(5)"); e("s_nop 0")
        e(f"v_mfma_f32_32x32x16_bf16 {vr(O,16)}, {vr(VF[cur]+4,4)}, {vr(P+4,4)}, {vr(O,16)}")
    e("v_add_u32 v3, 0x2000, v3"); e("v_add_u32 v5, v5, v1")
    e("s_add_u32 s30, s30, 1"); e("s_cmp_lt_u32 s30, 8"); e("s_cbranch_scc1 K2_LOOP")
    e("s_waitcnt lgkmcnt(0)")
    e.nop(16)
    e.lab("K2_FIN")
    e(f"v_mov_b32 v{T}, 0x5d800000")
    e(f"v_cmp_nlt_f32 vcc, v{O+8}, v{T}"); e("s_nop 4")
    e("s_cbranch_vccnz K2_SLOW")
    e.lab("K2_OUT")
    e(f"v_rcp_f32 v{T}, v{O+8}"); e("s_nop 0")
    for r in range(8): e(f"v_mul_f32 v{O+r}, v{O+r}, v{T}")
    for r in range(4): e(f"v_cvt_pk_bf16_f32 v{P+r}, v{O+2*r}, v{O+2*r+1}")
    e("s_lshl_b32 s24, s22, 8"); e("s_lshl_b32 s25, s20, 5"); e("s_add_u32 s24, s24, s25")
    e(f"v_add_u32 v{T+1}, s24, v7"); e(f"v_lshlrev_b32 v{T+1}, 10, v{T+1}"); e(f"v_lshl_add_u32 v{T+1}, v6, 4, v{T+1}")
    e("s_lshl_b32 s25, s21, 5"); e(f"s_add_u32 s25, s25, {WS_O:#x}")
    e(f"buffer_store_dwordx4 {vr(P,4)}, v{T+1}, s[8:11], s25 offen")
    e("s_endpgm")
    e.lab("K2_SLOW")
    e("v_subrev_u32 v3, 0x10000, v3")
    e(f"v_lshlrev_b32 v{T+5}, 3, v1"); e(f"v_sub_u32 v5, v5, v{T+5}")
    e(f"v_lshrrev_b32 v1, 3, v1")
    e(f"v_sub_f32 v{NM}, 0, v{NM}")
    for r in range(16): e(f"v_mov_b32 v{O+r}, 0")
    e("s_mov_b32 s30, 0")
    e.lab("K2_SL")
    e(f"ds_read_b128 {vr(KB[0],4)}, v3")
    for j in range(2):
        for u in range(2):
            e(f"ds_read_b64_tr_b16 {vr(VF[0]+4*j+2*u,2)}, v5 offset:{j*512+u*256}")
    e("s_waitcnt lgkmcnt(0)")
    e(f"v_mfma_f32_32x32x16_bf16 {vr(S[0],16)}, {vr(KB[0],4)}, {vr(Q,4)}, 0")
    e.nop(16)
    e(f"v_max3_f32 v{T}, v{s0}, v{s0+1}, v{s0+2}")
    for r in range(3, 15, 2): e(f"v_max3_f32 v{T}, v{T}, v{s0+r}, v{s0+r+1}")
    e(f"v_max3_f32 v{T}, v{T}, v{s0+15}, v{NM}")
    e(f"v_mov_b32 v{T+1}, v{T}"); e("s_nop 1")
    e(f"v_permlane32_swap_b32 v{T}, v{T+1}"); e("s_nop 1")
    e(f"v_max_f32 v{T}, v{T}, v{T+1}")
    e(f"v_sub_f32 v{T+1}, v{NM}, v{T}"); e(f"v_exp_f32 v{T+1}, v{T+1}"); e(f"v_mov_b32 v{NM}, v{T}")
    for r in range(16): e(f"v_mul_f32 v{O+r}, v{O+r}, v{T+1}")
    for r in range(16): e(f"v_sub_f32 v{s0+r}, v{s0+r}, v{T}")
    for r in range(16): e(f"v_exp_f32 v{s0+r}, v{s0+r}")
    e("s_nop 0")
    for p in range(8): e(f"v_cvt_pk_bf16_f32 v{P+p}, v{s0+2*p}, v{s0+2*p+1}")
    e("s_nop 1")
    e(f"v_mfma_f32_32x32x16_bf16 {vr(O,16)}, {vr(VF[0],4)}, {vr(P,4)}, {vr(O,16)}")
    e(f"v_mfma_f32_32x32x16_bf16 {vr(O,16)}, {vr(VF[0]+4,4)}, {vr(P+4,4)}, {vr(O,16)}")
    e("v_add_u32 v3, 0x400, v3"); e("v_add_u32 v5, v5, v1")
    e.nop(16)
    e("s_add_u32 s30, s30, 1"); e("s_cmp_lt_u32 s30, 64"); e("s_cbranch_scc1 K2_SL")
    e("s_branch K2_OUT")
    e.lab("K2_END"); e("s_endpgm")
    return e.txt(), descr(name, 120, 64), f"; @launch kernel={name} grid=(256,1,1) block=(512,1,1) lds=140288"

def k3():
    e = E(); name = "k3_kernel"; header(e, name)
    e("s_cmp_ge_u32 s2, 256"); e("s_cbranch_scc1 K3_END")
    e("s_load_dwordx2 s[4:5], s[0:1], 0"); e("s_load_dwordx2 s[6:7], s[0:1], 16"); e("s_load_dwordx2 s[8:9], s[0:1], 80"); e("s_load_dwordx2 s[10:11], s[0:1], 32")
    e("v_lshrrev_b32 v1, 6, v0"); e("v_and_b32 v2, 63, v0"); e("s_nop 0")
    e("v_readfirstlane_b32 s20, v1")
    e("s_lshr_b32 s21, s2, 3"); e("s_and_b32 s22, s2, 7")
    e("s_and_b32 s39, s20, 1"); e("s_lshr_b32 s40, s20, 1")
    e("s_waitcnt lgkmcnt(0)")
    srd(e, 12, 4, 5, 2097152); srd(e, 16, 6, 7, 524288); srd(e, 24, 8, 9, 0x1000000); srd(e, 44, 10, 11, 1024)
    e("v_lshrrev_b32 v4, 3, v2"); e("v_lshlrev_b32 v4, 10, v4")
    e("v_bfe_u32 v5, v2, 2, 1"); e("v_bfe_u32 v6, v2, 4, 1"); e("v_xor_b32 v5, v5, v6")
    e("v_lshl_add_u32 v4, v5, 6, v4"); e("v_and_b32 v5, 3, v2"); e("v_lshl_add_u32 v4, v5, 4, v4")
    e("s_lshl_b32 s31, s22, 7"); e("v_add_u32 v4, s31, v4")
    e("s_lshl_b32 s32, s20, 17")
    e("s_lshl_b32 s33, s20, 14")
    for i in range(16):
        e(f"s_add_u32 s34, s32, {i*8192}"); e(f"s_add_u32 m0, s33, {i*1024}"); e("s_nop 0")
        e("buffer_load_dwordx4 v4, s[16:19], s34 offen lds")
    e("v_and_b32 v19, 31, v2"); e("v_lshrrev_b32 v20, 5, v2")
    e("s_lshl_b32 s31, s21, 6"); e("s_lshl_b32 s35, s39, 5"); e("s_add_u32 s31, s31, s35")
    e("v_add_u32 v21, s31, v19")
    e("v_lshlrev_b32 v22, 10, v21"); e("v_lshl_add_u32 v3, v20, 4, v22")
    e(f"s_mov_b32 s36, {WS_O:#x}")
    for s in range(32):
        e(f"buffer_load_dwordx4 {vr(64+4*s,4)}, v3, s[24:27], s36 offen offset:{32*s}")
    e("s_lshl_b32 s37, s22, 7"); e("s_lshl_b32 s38, s40, 6"); e("s_add_u32 s37, s37, s38")
    e("v_lshlrev_b32 v23, 3, v20"); e("v_add_u32 v23, s37, v23")
    e("v_add_u32 v24, v22, v23")
    for g in range(4):
        e(f"buffer_load_dwordx2 {vr(32+2*g,2)}, v24, s[12:15], 0 offen offset:{16*g}")
    for g in range(4):
        e(f"buffer_load_dwordx2 {vr(40+2*g,2)}, v23, s[44:47], 0 offen offset:{16*g}")
    e("v_bfe_u32 v5, v2, 2, 2"); e("v_and_b32 v6, 3, v2"); e("v_bfe_u32 v7, v2, 4, 1")
    e("v_lshl_add_u32 v25, v20, 3, v5"); e("v_lshlrev_b32 v25, 7, v25")
    e("v_lshl_add_u32 v25, v7, 5, v25"); e("v_lshl_add_u32 v25, v6, 3, v25")
    e("v_lshrrev_b32 v5, 1, v5"); e("v_xor_b32 v5, s40, v5"); e("v_lshl_add_u32 v25, v5, 6, v25")
    for r in range(16): e(f"v_mov_b32 v{48+r}, 0")
    e("s_waitcnt vmcnt(40)"); e("s_barrier")
    WF = [192, 196]
    def rd(s, sel):
        for u in range(2):
            e(f"ds_read_b64_tr_b16 {vr(WF[sel]+2*u,2)}, v25 offset:{(16*s+4*u)*128}")
    rd(0, 0)
    for s in range(32):
        sel = s & 1
        if s < 31: rd(s+1, sel ^ 1)
        e(f"s_waitcnt vmcnt({8 + 31 - s}) lgkmcnt({2 if s < 31 else 0})")
        e(f"v_mfma_f32_32x32x16_bf16 {vr(48,16)}, {vr(WF[sel],4)}, {vr(64+4*s,4)}, {vr(48,16)}")
    e("s_mov_b32 s41, 0x3f803f80"); e("v_mov_b32 v8, s41")
    e("v_mov_b32 v9, 0"); e("v_mov_b32 v10, 0"); e("v_mov_b32 v11, 0")
    e("s_waitcnt vmcnt(0)")
    e.nop(12)
    for p in range(8):
        a = 48 + 2*p; x = 32 + p
        e(f"v_cvt_pk_bf16_f32 v12, v{a}, v{a+1}")
        e("v_lshlrev_b32 v13, 16, v12"); e("v_and_b32 v14, 0xffff0000, v12")
        e(f"v_lshlrev_b32 v15, 16, v{x}"); e(f"v_and_b32 v16, 0xffff0000, v{x}")
        e("v_add_f32 v13, v13, v15"); e("v_add_f32 v14, v14, v16")
        e(f"v_cvt_pk_bf16_f32 v{x}, v13, v14")
        e(f"v_dot2_f32_bf16 v9, v{x}, v8, v9")
        e(f"v_dot2_f32_bf16 v10, v{x}, v{x}, v10")
        e(f"v_dot2_f32_bf16 v11, v{x}, v{40+p}, v11")
    e(f"s_mov_b32 s36, {WS_H:#x}")
    for g in range(4):
        e(f"buffer_store_dwordx2 {vr(32+2*g,2)}, v24, s[24:27], s36 offen offset:{16*g}")
    e("s_nop 2")
    for q in range(3): e(f"v_mov_b32 v{12+q}, v{9+q}")
    e("s_nop 1")
    for q in range(3): e(f"v_permlane32_swap_b32 v{9+q}, v{12+q}")
    e("s_nop 1")
    for q in range(3): e(f"v_add_f32 v{9+q}, v{9+q}, v{12+q}")
    e("v_lshlrev_b32 v15, 4, v21")
    e(f"s_mov_b32 s36, {WS_ST:#x}")
    e("s_mov_b64 exec, 0xffffffff")
    for q in range(3):
        e(f"buffer_atomic_add_f32 v{9+q}, v15, s[24:27], s36 offen offset:{4*q}")
    e.lab("K3_END"); e("s_endpgm")
    return e.txt(), descr(name, 200, 64), f"; @launch kernel={name} grid=(256,1,1) block=(256,1,1) lds=65536"

def ln2_elem(e, x, mb, rinv, t):
    e(f"v_lshlrev_b32 v{t}, 16, v{x}"); e(f"v_and_b32 v{t+1}, 0xffff0000, v{x}")
    e(f"v_sub_f32 v{t+2}, v{t}, v{mb}"); e(f"v_sub_f32 v{t+3}, v{t+1}, v{mb}")
    e(f"v_cvt_pk_bf16_f32 v{t+2}, v{t+2}, v{t+3}")
    e(f"v_and_b32 v{t+3}, 0xffff0000, v{t+2}"); e(f"v_lshlrev_b32 v{t+2}, 16, v{t+2}")
    e(f"v_mul_f32 v{t+2}, v{t+2}, v{rinv}"); e(f"v_mul_f32 v{t+3}, v{t+3}, v{rinv}")
    e(f"v_cvt_pk_bf16_f32 v{t+2}, v{t+2}, v{t+3}")

def k4():
    e = E(); name = "k4_kernel"; header(e, name)
    NF = 56; NE = 128
    e(f"s_cmp_ge_u32 s2, {NF+NE}"); e("s_cbranch_scc1 K4_END")
    e("s_load_dwordx2 s[4:5], s[0:1], 80"); e("s_load_dwordx2 s[6:7], s[0:1], 64"); e("s_load_dwordx2 s[8:9], s[0:1], 32")
    e("s_load_dwordx4 s[40:43], s[0:1], 40")
    e("v_lshrrev_b32 v1, 6, v0"); e("v_and_b32 v2, 63, v0"); e("s_nop 0")
    e("v_readfirstlane_b32 s20, v1")
    e("s_waitcnt lgkmcnt(0)")
    srd(e, 12, 4, 5, 0x1000000); srd(e, 16, 6, 7, 2097152); srd(e, 24, 8, 9, 1024)
    srd(e, 28, 40, 41, 1835008); srd(e, 32, 42, 43, 1835008)
    e(f"s_cmp_lt_u32 s2, {NF}"); e("s_cbranch_scc1 K4_FFN")
    e(f"s_sub_u32 s21, s2, {NF}"); e("s_lshl_b32 s21, s21, 4"); e("s_lshl_b32 s22, s20, 2"); e("s_add_u32 s21, s21, s22")
    e("v_lshrrev_b32 v4, 4, v2"); e("v_and_b32 v5, 15, v2")
    e("v_add_u32 v6, s21, v4")
    e("v_lshlrev_b32 v3, 10, v6"); e("v_lshl_add_u32 v3, v5, 4, v3")
    e("v_lshlrev_b32 v7, 4, v6")
    e(f"s_mov_b32 s36, {WS_ST:#x}"); e(f"s_mov_b32 s37, {WS_H:#x}")
    e("buffer_load_dwordx4 v[8:11], v7, s[12:15], s36 offen")
    for i in range(4):
        e(f"buffer_load_dwordx4 {vr(16+4*i,4)}, v3, s[12:15], s37 offen offset:{256*i}")
    e("s_waitcnt vmcnt(4)")
    ln_scalars(e, 8, 9, 12, (14, 15), "0x3b000000")
    e("v_rcp_f32 v15, v15")
    e("s_waitcnt vmcnt(0)")
    for j in range(16):
        x = 16 + j
        ln2_elem(e, x, 14, 15, 32)
        e("v_and_b32 v35, 0xffff0000, v34"); e("v_lshlrev_b32 v34, 16, v34")
        e("v_add_f32 v34, v32, v34"); e("v_add_f32 v35, v33, v35")
        e(f"v_cvt_pk_bf16_f32 v{x}, v34, v35")
    for i in range(4):
        e(f"buffer_store_dwordx4 {vr(16+4*i,4)}, v3, s[16:19], 0 offen offset:{256*i}")
    e("s_endpgm")
    e.lab("K4_FFN")
    e("v_lshrrev_b32 v4, 2, v0"); e("v_and_b32 v5, 3, v0")
    e("v_mul_u32_u24 v3, 3584, v4"); e("v_lshl_add_u32 v3, v5, 4, v3")
    e("s_lshl_b32 s21, s2, 6"); e("v_add_u32 v3, s21, v3")
    for i in range(8):
        e(f"s_mov_b32 s{44+i}, {i*64*3584}")
    e("v_lshlrev_b32 v7, 4, v0")
    e(f"s_mov_b32 s36, {WS_ST:#x}")
    for i in range(8):
        e(f"s_add_u32 s37, s36, {i*4096}")
        e(f"buffer_load_dwordx4 {vr(128+4*i,4)}, v7, s[12:15], s37 offen")
    e("v_lshlrev_b32 v8, 4, v2")
    e("buffer_load_dwordx4 v[12:15], v8, s[24:27], 0 offen")
    for i in range(8):
        e(f"buffer_load_dwordx4 {vr(64+4*i,4)}, v3, s[28:31], s{44+i} offen")
        e(f"buffer_load_dwordx4 {vr(96+4*i,4)}, v3, s[32:35], s{44+i} offen")
    e("s_mov_b32 s38, 0x3f803f80"); e("v_mov_b32 v9, s38"); e("v_mov_b32 v10, 0")
    e("s_waitcnt vmcnt(16)")
    for q in range(4): e(f"v_dot2_f32_bf16 v10, v{12+q}, v9, v10")
    e("s_nop 2")
    for ror in (8, 4, 2, 1):
        e(f"v_add_f32_dpp v10, v10, v10 row_ror:{ror} row_mask:0xf bank_mask:0xf"); e("s_nop 1")
    for q in range(4): e(f"v_readlane_b32 s{52+q}, v10, {16*q}")
    e("s_nop 1")
    e("v_mov_b32 v10, s52"); e("v_add_f32 v10, s53, v10"); e("v_add_f32 v10, s54, v10"); e("v_add_f32 v10, s55, v10")
    e("v_mov_b32 v16, 0"); e("v_mov_b32 v17, 0")
    for i in range(8):
        b = 128 + 4*i
        ln_scalars(e, b, b+1, 18, (20, 21), "0x3b000000")
        e("v_rcp_f32 v21, v21")
        e(f"v_fma_f32 v22, -v20, v10, v{b+2}")
        e("v_mul_f32 v22, v22, v21")
        e("v_cvt_pk_bf16_f32 v22, v22, v22")
        e("v_and_b32 v22, 0xffff0000, v22")
        e("v_ashrrev_i32 v23, 31, v22")
        e("v_or_b32 v23, 0x80000000, v23")
        e("v_xor_b32 v22, v22, v23")
        e("v_and_b32 v22, 0xffff0000, v22")
        e(f"v_sub_u32 v23, {2047 - 256*i}, v0")
        e("v_or_b32 v22, v22, v23")
        e("v_med3_u32 v17, v16, v17, v22")
        e("v_max_u32 v16, v16, v22")
    for ror in (8, 4, 2, 1):
        e("s_nop 1")
        e(f"v_mov_b32_dpp v18, v16 row_ror:{ror} row_mask:0xf bank_mask:0xf")
        e(f"v_mov_b32_dpp v19, v17 row_ror:{ror} row_mask:0xf bank_mask:0xf")
        e("v_min_u32 v20, v16, v18"); e("v_max_u32 v16, v16, v18"); e("v_max3_u32 v17, v17, v19, v20")
    e("v_lshrrev_b32 v18, 4, v0"); e("v_lshlrev_b32 v18, 3, v18")
    e("ds_write_b64 v18, v[16:17]")
    e("s_waitcnt lgkmcnt(0)"); e("s_barrier")
    e("v_and_b32 v18, 15, v2"); e("v_lshlrev_b32 v18, 3, v18")
    e("ds_read_b64 v[16:17], v18")
    e("s_waitcnt lgkmcnt(0)")
    for ror in (8, 4, 2, 1):
        e("s_nop 1")
        e(f"v_mov_b32_dpp v18, v16 row_ror:{ror} row_mask:0xf bank_mask:0xf")
        e(f"v_mov_b32_dpp v19, v17 row_ror:{ror} row_mask:0xf bank_mask:0xf")
        e("v_min_u32 v20, v16, v18"); e("v_max_u32 v16, v16, v18"); e("v_max3_u32 v17, v17, v19, v20")
    e("v_and_b32 v16, 0x7ff, v16"); e("v_and_b32 v17, 0x7ff, v17")
    e("v_sub_u32 v16, 2047, v16"); e("v_sub_u32 v17, 2047, v17")
    e("v_cmp_gt_u32 vcc, 128, v0"); e("s_nop 1")
    e("v_cndmask_b32 v18, v17, v16, vcc")
    e("v_and_b32 v19, 127, v0")
    e("v_lshlrev_b32 v20, 10, v18"); e("v_lshl_add_u32 v20, v19, 3, v20")
    e("v_lshlrev_b32 v21, 4, v18")
    e(f"s_mov_b32 s37, {WS_H:#x}")
    e("buffer_load_dwordx4 v[24:27], v21, s[12:15], s36 offen")
    e("buffer_load_dwordx2 v[28:29], v20, s[12:15], s37 offen")
    e("v_lshlrev_b32 v22, 3, v19")
    e("buffer_load_dwordx2 v[30:31], v22, s[24:27], 0 offen")
    e("s_waitcnt vmcnt(0)")
    ln_scalars(e, 24, 25, 32, (34, 35), "0x3b000000")
    e("v_rcp_f32 v35, v35"); e("s_nop 0")
    ln2_elem(e, 28, 34, 35, 36); e("v_mov_b32 v28, v38")
    ln2_elem(e, 29, 34, 35, 36); e("v_mov_b32 v29, v38")
    e("v_mov_b32 v40, 0")
    e("v_dot2_f32_bf16 v40, v28, v30, v40"); e("v_dot2_f32_bf16 v40, v29, v31, v40")
    e("v_lshrrev_b32 v41, 7, v0"); e("v_lshlrev_b32 v41, 2, v41"); e("v_lshl_add_u32 v41, v19, 5, v41")
    e("v_lshlrev_b32 v42, 16, v28"); e("v_and_b32 v43, 0xffff0000, v28"); e("v_lshlrev_b32 v44, 16, v29"); e("v_and_b32 v45, 0xffff0000, v29")
    for j in range(4): e(f"ds_write_b32 v41, v{42+j} offset:{1024 + 8*j}")
    for ror in (8, 4, 2, 1):
        e("s_nop 1"); e(f"v_add_f32_dpp v40, v40, v40 row_ror:{ror} row_mask:0xf bank_mask:0xf")
    e("v_lshrrev_b32 v41, 4, v0"); e("v_lshlrev_b32 v41, 2, v41")
    e("ds_write_b32 v41, v40 offset:512")
    e("s_waitcnt lgkmcnt(0)"); e("s_barrier")
    for r in range(160, 192): e(f"v_mov_b32 v{r}, 0")
    e("v_lshlrev_b32 v41, 3, v4")
    for i in range(8):
        e(f"ds_read_b64 {vr(48+2*i,2)}, v41 offset:{1024 + i*512}")
    e("s_waitcnt lgkmcnt(0)")
    for i in range(8):
        for m in range(2):
            for d in range(4):
                w = (64 if m == 0 else 96) + 4*i + d
                e(f"v_lshlrev_b32 v46, 16, v{w}"); e(f"v_and_b32 v47, 0xffff0000, v{w}")
                for tk in range(2):
                    a = 160 + m*16 + tk*8 + 2*d
                    e(f"v_fmac_f32 v{a}, v46, v{48+2*i+tk}"); e(f"v_fmac_f32 v{a+1}, v47, v{48+2*i+tk}")
    e("s_nop 1")
    for ror in (4, 8):
        for r in range(160, 192):
            e(f"v_add_f32_dpp v{r}, v{r}, v{r} row_ror:{ror} row_mask:0xf bank_mask:0xf")
    e("v_lshrrev_b32 v41, 4, v0"); e("v_lshlrev_b32 v41, 9, v41"); e("v_lshl_add_u32 v41, v5, 7, v41")
    e("v_and_b32 v42, 15, v2"); e("v_cmp_gt_u32 vcc, 4, v42")
    e("s_and_saveexec_b64 s[56:57], vcc")
    for q in range(8):
        e(f"ds_write_b128 v41, {vr(160+4*q,4)} offset:{8192 + 16*q}")
    e("s_mov_b64 exec, s[56:57]")
    e("s_waitcnt lgkmcnt(0)"); e("s_barrier")
    e("s_cmp_lg_u32 s20, 0"); e("s_cbranch_scc1 K4_END")
    e("v_lshrrev_b32 v41, 5, v2"); e("v_and_b32 v42, 31, v2"); e("v_lshrrev_b32 v43, 3, v42"); e("v_and_b32 v44, 7, v42")
    e("v_lshlrev_b32 v45, 7, v43"); e("v_lshl_add_u32 v45, v41, 5, v45"); e("v_lshl_add_u32 v45, v44, 2, v45")
    for g in range(16):
        e(f"ds_read_b32 v{64+g}, v45 offset:{8192 + 512*g}")
        e(f"ds_read_b32 v{80+g}, v45 offset:{8192 + 512*g + 64}")
    e("s_waitcnt lgkmcnt(0)")
    for g in range(1, 16):
        e(f"v_add_f32 v64, v64, v{64+g}"); e(f"v_add_f32 v80, v80, v{80+g}")
    rnd_bf16(e, 64, 64); rnd_bf16(e, 80, 80)
    e("v_mul_f32 v65, 0xbfb8aa3b, v64"); e("v_exp_f32 v65, v65"); e("s_nop 0")
    e("v_add_f32 v65, 1.0, v65"); e("v_rcp_f32 v65, v65"); e("s_nop 0")
    e("v_mul_f32 v65, v64, v65"); rnd_bf16(e, 65, 65)
    e("v_mul_f32 v65, v65, v80"); e("v_cvt_pk_bf16_f32 v65, v65, v65")
    e("v_mul_u32_u24 v66, 3584, v41"); e("v_lshl_add_u32 v66, v42, 1, v66")
    e(f"s_lshl_b32 s21, s2, 6"); e(f"s_add_u32 s21, s21, {WS_ACT:#x}")
    e("buffer_store_short v65, v66, s[12:15], s21 offen")
    e("s_cmp_lg_u32 s2, 0"); e("s_cbranch_scc1 K4_END")
    e("v_and_b32 v41, 15, v2"); e("v_lshlrev_b32 v41, 2, v41")
    e("ds_read_b32 v42, v41 offset:512")
    e("s_waitcnt lgkmcnt(0)")
    for q in range(16): e(f"v_readlane_b32 s{64+q}, v42, {q}")
    e("s_nop 1")
    for tk in range(2):
        e(f"v_mov_b32 v{43+tk}, s{64+8*tk}")
        for q in range(1, 8): e(f"v_add_f32 v{43+tk}, s{64+8*tk+q}, v{43+tk}")
    for tk in range(2):
        r = 43 + tk
        rnd_bf16(e, r, r)
        e(f"v_mul_f32 v{r}, 0xbfb8aa3b, v{r}"); e(f"v_exp_f32 v{r}, v{r}"); e("s_nop 0")
        e(f"v_add_f32 v{r}, 1.0, v{r}"); e(f"v_rcp_f32 v{r}, v{r}"); e("s_nop 0")
        rnd_bf16(e, r, r)
    e("v_mov_b32 v45, v44"); e("v_mov_b32 v44, v43"); e("v_mov_b32 v42, v16"); e("v_mov_b32 v43, v17")
    e("v_mov_b32 v46, 0"); e(f"s_mov_b32 s21, {WS_SEL:#x}")
    e("s_mov_b64 exec, 1")
    e("buffer_store_dwordx4 v[42:45], v46, s[12:15], s21 offen")
    e.lab("K4_END"); e("s_endpgm")
    return e.txt(), descr(name, 192, 96), f"; @launch kernel={name} grid=({NF+NE},1,1) block=(256,1,1) lds=16384"

def k5():
    e = E(); name = "k5_kernel"; header(e, name)
    e("s_cmp_ge_u32 s2, 16"); e("s_cbranch_scc1 K5_END")
    e("s_load_dwordx2 s[4:5], s[0:1], 80"); e("s_load_dwordx2 s[6:7], s[0:1], 64"); e("s_load_dwordx2 s[8:9], s[0:1], 56")
    e("v_lshrrev_b32 v1, 6, v0"); e("v_and_b32 v2, 63, v0"); e("s_nop 0")
    e("v_readfirstlane_b32 s20, v1")
    e("s_waitcnt lgkmcnt(0)")
    srd(e, 12, 4, 5, 0x1000000); srd(e, 16, 6, 7, 2097152); srd(e, 24, 8, 9, 1835008)
    e("v_lshrrev_b32 v4, 2, v0"); e("v_and_b32 v5, 3, v0")
    e("v_lshlrev_b32 v3, 10, v4"); e("v_lshl_add_u32 v3, v5, 4, v3")
    e("s_lshl_b32 s21, s2, 6"); e("v_add_u32 v3, s21, v3")
    e(f"s_mov_b32 s36, {WS_ACT:#x}")
    e("v_lshlrev_b32 v7, 4, v0")
    e("buffer_load_dwordx4 v[8:11], v7, s[12:15], s36 offen")
    e("buffer_load_dwordx4 v[12:15], v7, s[12:15], s36 offen offset:4080")
    e.l.pop()
    e("v_add_u32 v6, 4096, v7")
    e("buffer_load_dwordx4 v[12:15], v6, s[12:15], s36 offen")
    e(f"s_mov_b32 s37, {WS_SEL:#x}"); e("v_mov_b32 v16, 0")
    e("buffer_load_dwordx4 v[20:23], v16, s[12:15], s37 offen")
    for i in range(28):
        e(f"s_mov_b32 s38, {i*65536}")
        e(f"buffer_load_dwordx4 {vr(64+4*i,4)}, v3, s[24:27], s38 offen")
    e("s_waitcnt vmcnt(28)")
    e("ds_write_b128 v7, v[8:11]")
    e("v_cmp_gt_u32 vcc, 192, v0"); e("s_and_saveexec_b64 s[40:41], vcc")
    e("ds_write_b128 v6, v[12:15]")
    e("s_mov_b64 exec, s[40:41]")
    e("s_waitcnt lgkmcnt(0)"); e("s_barrier")
    e("v_lshlrev_b32 v17, 1, v4")
    for r in range(176, 192): e(f"v_mov_b32 v{r}, 0")
    for i in range(28):
        e(f"ds_read_u16_d16_hi v{24+(i%4)*2}, v17 offset:{128*i}") if False else None
    for i in range(28):
        a0 = 24 + 2*(i % 8); a1 = a0 + 1
        e(f"ds_read_u16 v{a0}, v17 offset:{128*i}")
        e(f"ds_read_u16 v{a1}, v17 offset:{3584 + 128*i}")
        if i % 8 == 7 or i == 27:
            base = i - (i % 8)
            e("s_waitcnt lgkmcnt(0)")
            for ii in range(base, i+1):
                b0 = 24 + 2*(ii % 8)
                e(f"v_lshlrev_b32 v{b0}, 16, v{b0}"); e(f"v_lshlrev_b32 v{b0+1}, 16, v{b0+1}")
                e(f"s_waitcnt vmcnt({27-ii})")
                for d in range(4):
                    w = 64 + 4*ii + d
                    e(f"v_lshlrev_b32 v46, 16, v{w}"); e(f"v_and_b32 v47, 0xffff0000, v{w}")
                    for tk in range(2):
                        a = 176 + tk*8 + 2*d
                        e(f"v_fmac_f32 v{a}, v46, v{b0+tk}"); e(f"v_fmac_f32 v{a+1}, v47, v{b0+tk}")
    e("s_nop 1")
    for ror in (4, 8):
        for r in range(176, 192):
            e(f"v_add_f32_dpp v{r}, v{r}, v{r} row_ror:{ror} row_mask:0xf bank_mask:0xf")
    e("v_lshrrev_b32 v41, 4, v0"); e("v_lshlrev_b32 v41, 8, v41"); e("v_lshl_add_u32 v41, v5, 6, v41")
    e("v_and_b32 v42, 15, v2"); e("v_cmp_gt_u32 vcc, 4, v42")
    e("s_and_saveexec_b64 s[40:41], vcc")
    for q in range(4):
        e(f"ds_write_b128 v41, {vr(176+4*q,4)} offset:{8192 + 16*q}")
    e("s_mov_b64 exec, s[40:41]")
    e("s_waitcnt lgkmcnt(0)"); e("s_barrier")
    e("s_cmp_lg_u32 s20, 0"); e("s_cbranch_scc1 K5_END")
    e("v_lshrrev_b32 v41, 5, v2"); e("v_and_b32 v42, 31, v2"); e("v_lshrrev_b32 v43, 3, v42"); e("v_and_b32 v44, 7, v42")
    e("v_lshlrev_b32 v45, 6, v43"); e("v_lshl_add_u32 v45, v41, 5, v45"); e("v_lshl_add_u32 v45, v44, 2, v45")
    for g in range(16):
        e(f"ds_read_b32 v{64+g}, v45 offset:{8192 + 256*g}")
    e("v_cmp_eq_u32 vcc, 0, v41"); e("s_nop 1")
    e("v_cndmask_b32 v48, v21, v20, vcc")
    e("v_cndmask_b32 v49, v23, v22, vcc")
    e("v_and_b32 v48, 0x7ff, v48")
    e("v_lshlrev_b32 v50, 4, v48")
    e("v_lshlrev_b32 v51, 10, v48"); e("v_lshl_add_u32 v51, v42, 1, v51"); e("v_add_u32 v51, s21, v51")
    e(f"s_mov_b32 s36, {WS_ST:#x}"); e(f"s_mov_b32 s37, {WS_H:#x}")
    e("buffer_load_dwordx4 v[52:55], v50, s[12:15], s36 offen")
    e("buffer_load_ushort v56, v51, s[12:15], s37 offen")
    e("s_waitcnt vmcnt(0) lgkmcnt(0)")
    for g in range(1, 16): e(f"v_add_f32 v64, v64, v{64+g}")
    rnd_bf16(e, 64, 64)
    e("v_mul_f32 v64, v64, v49"); rnd_bf16(e, 64, 64)
    ln_scalars(e, 52, 53, 58, (60, 61), "0x3b000000")
    e("v_rcp_f32 v61, v61")
    e("v_lshlrev_b32 v56, 16, v56")
    e("v_sub_f32 v57, v56, v60"); rnd_bf16(e, 57, 57)
    e("v_mul_f32 v57, v57, v61"); rnd_bf16(e, 57, 57)
    e("v_add_f32 v57, v57, v64"); rnd_bf16(e, 57, 57)
    e("v_add_f32 v57, v56, v57"); e("v_cvt_pk_bf16_f32 v57, v57, v57")
    e("buffer_store_short v57, v51, s[16:19], 0 offen")
    e.lab("K5_END"); e("s_endpgm")
    return e.txt(), descr(name, 192, 64), f"; @launch kernel={name} grid=(16,1,1) block=(256,1,1) lds=16384"

def main(out):
    ks = [k1(), k2(), k3(), k4(), k5()]
    s = "; generated 5-kernel pipeline: LN1+QKV | attention | out-proj+stats | LN2 out + top2 + gate/up | down + final rows\n"
    for k in ks: s += k[2] + "\n"
    s += '.amdgcn_target "amdgcn-amd-amdhsa--gfx950"\n.text\n'
    for k in ks: s += k[0]
    s += '.section .rodata,"a"\n'
    for k in ks: s += k[1]
    open(out, "w").write(s)

if __name__ == "__main__":
    for q in range(1536): assert (q * 2731) >> 16 == q // 24
    main(sys.argv[1] if len(sys.argv) > 1 else "sequential_preLN__softmax_full_mha__moe_arch_mod__prompt.s")
```

```python
import sys, math

WS_Q = 0x000000; WS_K = 0x200000; WS_V = 0x400000; WS_O = 0x600000; WS_H = 0x800000
WS_ST = 0xA00000; WS_ACT = 0xA10000; WS_SEL = 0xA20000
C_SCALE = 0.25 * math.log2(math.e)
import struct
def f32bits(x): return struct.unpack("<I", struct.pack("<f", x))[0]

class E:
    def __init__(self): self.l = []
    def __call__(self, s): self.l.append("    " + s)
    def lab(self, s): self.l.append(s + ":")
    def c(self, s): self.l.append("    ; " + s)
    def nop(self, n):
        while n > 0:
            k = min(n, 16); self(f"s_nop {k-1}"); n -= k
    def txt(self): return "\n".join(self.l) + "\n"

def vr(a, n): return f"v[{a}:{a+n-1}]"
def sr(a, n): return f"s[{a}:{a+n-1}]"

def srd(e, d, lo, hi, size):
    e(f"s_mov_b32 s{d}, s{lo}"); e(f"s_mov_b32 s{d+1}, s{hi}"); e(f"s_mov_b32 s{d+2}, {size:#x}"); e(f"s_mov_b32 s{d+3}, 0x00020000")

def header(e, name):
    e.l.append(f".globl {name}"); e.l.append(".p2align 8"); e.l.append(f".type {name},@function"); e.lab(name)

def descr(name, vg, sg=64):
    if DIAG: vg = max(vg, 128); sg = 102
    vg4 = (vg + 3) // 4 * 4
    return f""".p2align 6
.amdhsa_kernel {name}
  .amdhsa_next_free_vgpr {vg}
  .amdhsa_next_free_sgpr {sg}
  .amdhsa_accum_offset {vg4}
  .amdhsa_group_segment_fixed_size 0
  .amdhsa_kernarg_size 88
  .amdhsa_user_sgpr_count 2
  .amdhsa_user_sgpr_kernarg_segment_ptr 1
  .amdhsa_system_sgpr_workgroup_id_x 1
.end_amdhsa_kernel
"""

DIAG = False
WS_DIAG = 0xB00000
def stamp(e, idx):
    if not DIAG: return
    b = 70 + 4*idx
    e(f"s_memtime s[{b}:{b+1}]"); e(f"s_memrealtime s[{b+2}:{b+3}]"); e("s_waitcnt lgkmcnt(0)")
def stamp_out(e, n, kid, srdbase, wavesreg="s20"):
    if not DIAG: return
    e("s_mov_b64 exec, 1")
    e(f"s_lshl_b32 s68, s2, 4"); e(f"s_add_u32 s68, s68, {wavesreg}"); e("s_lshl_b32 s68, s68, 7"); e(f"s_add_u32 s68, s68, {WS_DIAG + kid*0x80000:#x}")
    e("v_mov_b32 v122, 0")
    for i in range(n):
        b = 70 + 4*i
        e(f"v_mov_b32 v124, s{b}"); e(f"v_mov_b32 v125, s{b+1}"); e(f"v_mov_b32 v126, s{b+2}"); e(f"v_mov_b32 v127, s{b+3}")
        e(f"buffer_store_dwordx4 v[124:127], v122, s[{srdbase}:{srdbase+3}], s68 offen offset:{16*i}")
        e("s_nop 1")
    e("s_mov_b64 exec, -1")

def rnd_bf16(e, d, s):
    e(f"v_cvt_pk_bf16_f32 v{d}, v{s}, v{s}")
    e(f"v_lshlrev_b32 v{d}, 16, v{d}")

def ln_scalars(e, sm, sq, t, outs, inv_n):
    mb, sb = outs
    e(f"v_mul_f32 v{t}, {inv_n}, v{sm}")
    e(f"v_mul_f32 v{t+1}, {inv_n}, v{sq}")
    e(f"v_fma_f32 v{t+1}, -v{t}, v{t}, v{t+1}")
    e(f"v_max_f32 v{t+1}, 0, v{t+1}")
    rnd_bf16(e, mb, t)
    rnd_bf16(e, t+1, t+1)
    e(f"v_add_f32 v{t+1}, 0x3727c5ac, v{t+1}")
    rnd_bf16(e, t+1, t+1)
    e(f"v_sqrt_f32 v{t+1}, v{t+1}")
    e("s_nop 0")
    rnd_bf16(e, sb, t+1)

def k1():
    e = E(); name = "k1_kernel"; header(e, name)
    A_BASE = 73728; AP = 1040
    e("s_cmp_ge_u32 s2, 256"); e("s_cbranch_scc1 K1_END")
    e("s_load_dwordx4 s[4:7], s[0:1], 0"); e("s_load_dwordx2 s[8:9], s[0:1], 80")
    e("v_lshrrev_b32 v1, 6, v0"); e("v_and_b32 v2, 63, v0"); e("s_nop 0")
    e("v_readfirstlane_b32 s20, v1")
    e("s_bfe_u32 s21, s2, 0x20001"); e("s_lshl_b32 s21, s21, 3"); e("s_bfe_u32 s22, s2, 0x30003"); e("s_add_u32 s21, s21, s22")
    e("s_and_b32 s22, s2, 1"); e("s_lshl_b32 s22, s22, 2"); e("s_lshr_b32 s23, s2, 6"); e("s_add_u32 s22, s22, s23")
    e("s_waitcnt lgkmcnt(0)")
    srd(e, 12, 4, 5, 2097152); srd(e, 16, 6, 7, 1572864); srd(e, 24, 8, 9, 0x1000000); stamp(e, 0)
    e("v_lshrrev_b32 v4, 3, v2"); e("v_and_b32 v5, 7, v2")
    e("s_cmp_ge_u32 s20, 8"); e("s_cbranch_scc1 K1_NOX")
    e("s_lshl_b32 s23, s21, 6"); e("s_lshl_b32 s31, s20, 3"); e("s_add_u32 s23, s23, s31")
    e("v_add_u32 v3, s23, v4"); e("v_lshlrev_b32 v3, 10, v3"); e("v_lshl_add_u32 v3, v5, 4, v3")
    for i in range(8):
        e(f"buffer_load_dwordx4 {vr(64+4*i,4)}, v3, s[12:15], 0 offen offset:{i*128}")
    e.lab("K1_NOX")
    e("s_lshl_b32 s31, s20, 7")
    e("s_movk_i32 s33, 2731")
    e("s_mul_i32 s34, s22, 384")
    for i in range(2):
        e(f"v_add_u32 v6, s31, v2")
        if i: e(f"v_add_u32 v6, {i*64}, v6")
        e("v_mul_lo_u32 v7, v6, s33"); e("v_lshrrev_b32 v7, 16, v7")
        e("v_mul_u32_u24 v8, 24, v7"); e("v_sub_u32 v8, v6, v8")
        e("v_lshrrev_b32 v9, 2, v8")
        e("v_bfe_u32 v16, v7, 1, 1"); e("v_xor_b32 v9, v9, v16")
        e("v_and_b32 v8, 3, v8")
        e("v_mul_u32_u24 v7, 3072, v7")
        e("v_lshl_add_u32 v7, v9, 6, v7"); e("v_lshl_add_u32 v7, v8, 4, v7")
        e(f"v_add_u32 v{10+i}, s34, v7")
    e("s_lshl_b32 s35, s20, 11")
    def dma_chunk(c):
        buf = c % 3
        e(f"s_mov_b32 s36, {c*196608}")
        for i in range(2):
            e(f"s_add_u32 m0, s35, {buf*24576 + i*1024}")
            e("s_nop 0")
            e(f"buffer_load_dwordx4 v{10+i}, s[16:19], s36 offen lds")
    for c in range(3): dma_chunk(c)
    e("s_cmp_ge_u32 s20, 8"); e("s_cbranch_scc1 K1_NOLN")
    e("s_mov_b32 s38, 0x3f803f80")
    e("v_mov_b32 v17, s38")
    for p in range(4): e(f"v_mov_b32 v{32+p}, 0")
    e("s_lshl_b32 s31, s20, 3")
    e("v_add_u32 v18, s31, v4"); e(f"v_mul_u32_u24 v18, {AP}, v18"); e("v_lshl_add_u32 v18, v5, 4, v18")
    e(f"v_add_u32 v18, {A_BASE}, v18")
    e("s_waitcnt vmcnt(6)"); stamp(e, 1)
    for j in range(32):
        r = 64 + j
        e(f"v_dot2_f32_bf16 v{32+(j&1)}, v{r}, v17, v{32+(j&1)}")
        e(f"v_dot2_f32_bf16 v{34+(j&1)}, v{r}, v{r}, v{34+(j&1)}")
    e("s_nop 2")
    e("v_add_f32 v32, v32, v33"); e("v_add_f32 v34, v34, v35"); e("s_nop 1")
    for m in ("quad_perm:[1,0,3,2]", "quad_perm:[2,3,0,1]", "row_half_mirror"):
        e(f"v_add_f32_dpp v32, v32, v32 {m} row_mask:0xf bank_mask:0xf")
        e(f"v_add_f32_dpp v34, v34, v34 {m} row_mask:0xf bank_mask:0xf")
        e("s_nop 0")
    ln_scalars(e, 32, 34, 48, (50, 51), "0x3b000000")
    e(f"v_rcp_f32 v40, v51"); e("s_nop 0")
    e(f"v_mul_f32 v44, v50, v40"); e(f"v_sub_f32 v44, 0, v44")
    for j in range(32):
        r = 64 + j; t = 52 + 2*(j & 1)
        e(f"v_lshlrev_b32 v{t}, 16, v{r}"); e(f"v_and_b32 v{t+1}, 0xffff0000, v{r}")
        e(f"v_fma_f32 v{t}, v{t}, v40, v44"); e(f"v_fma_f32 v{t+1}, v{t+1}, v40, v44")
        e(f"v_cvt_pk_bf16_f32 v{r}, v{t}, v{t+1}")
        if j % 4 == 3:
            e(f"ds_write_b128 v18, {vr(r-3,4)} offset:{(j//4)*128}")
    e.lab("K1_NOLN")
    e("s_and_b32 s39, s20, 1"); e("s_lshr_b32 s40, s20, 1")
    e("v_and_b32 v19, 31, v2"); e("v_lshrrev_b32 v20, 5, v2")
    e("s_lshl_b32 s31, s39, 5")
    e("v_add_u32 v21, s31, v19"); e(f"v_mul_u32_u24 v21, {AP}, v21"); e("v_lshl_add_u32 v21, v20, 4, v21")
    e(f"v_add_u32 v21, {A_BASE}, v21")
    e("v_bfe_u32 v22, v2, 2, 2")
    e("v_and_b32 v23, 3, v2")
    e("v_bfe_u32 v24, v2, 4, 1")
    e("v_lshl_add_u32 v25, v20, 3, v22")
    e("v_mul_u32_u24 v25, 384, v25")
    e("v_lshl_add_u32 v25, v24, 5, v25"); e("v_lshl_add_u32 v25, v23, 3, v25")
    e("v_lshrrev_b32 v26, 1, v22")
    e("v_xor_b32 v27, s40, v26")
    e("v_lshl_add_u32 v54, v27, 6, v25")
    e("v_add_u32 v55, 49152, v54")
    for r in range(96, 112): e(f"v_mov_b32 v{r}, 0")
    e("s_waitcnt lgkmcnt(0)")
    stamp(e, 2)
    XF = [112, 116]; WF = [120, 124]
    def reads(c, ks, sel):
        buf = c % 3; s = c*4 + ks
        e(f"ds_read_b128 {vr(XF[sel],4)}, v21 offset:{32*s}")
        base = 55 if buf == 2 else 54
        bo = 0 if buf == 2 else buf*24576
        for u in range(2):
            e(f"ds_read_b64_tr_b16 {vr(WF[sel]+2*u,2)}, v{base} offset:{bo + (16*ks+4*u)*384}")
    for c in range(8):
        n = 4 if c == 0 else (0 if c == 7 else 2)
        e(f"s_waitcnt vmcnt({n})"); e("s_barrier")
        reads(c, 0, 0)
        if 1 <= c <= 5: dma_chunk(c+2)
        for ks in range(4):
            sel = ks & 1
            if ks < 3:
                reads(c, ks+1, sel ^ 1); e("s_waitcnt lgkmcnt(3)")
            else:
                e("s_waitcnt lgkmcnt(0)")
            e(f"v_mfma_f32_32x32x16_bf16 {vr(96,16)}, {vr(WF[sel],4)}, {vr(XF[sel],4)}, {vr(96,16)}")
    stamp(e, 3)
    e("s_lshl_b32 s31, s21, 6"); e("s_lshl_b32 s42, s39, 5"); e("s_add_u32 s31, s31, s42")
    e("v_add_u32 v22, s31, v19"); e("v_lshlrev_b32 v22, 5, v22"); e("v_lshl_add_u32 v22, v20, 4, v22")
    e("s_mul_i32 s44, s22, 6"); e("s_add_u32 s44, s44, s40")
    e("s_lshr_b32 s45, s44, 4")
    e("s_and_b32 s46, s44, 15")
    e("s_lshl_b32 s47, s45, 21"); e("s_lshl_b32 s46, s46, 17"); e("s_add_u32 s47, s47, s46")
    e("s_add_u32 s48, s47, 0x10000")
    e("s_cmp_eq_u32 s45, 0"); e(f"s_cselect_b32 s49, {f32bits(C_SCALE):#x}, 1.0")
    e.nop(8)
    a = 96
    for r in range(16): e(f"v_mul_f32 v{a+r}, s49, v{a+r}")
    for r in range(8): e(f"v_cvt_pk_bf16_f32 v{a+r}, v{a+2*r}, v{a+2*r+1}")
    e(f"buffer_store_dwordx4 {vr(a,4)}, v22, s[24:27], s47 offen")
    e(f"buffer_store_dwordx4 {vr(a+4,4)}, v22, s[24:27], s48 offen")
    e("s_cmp_ge_u32 s2, 9"); e("s_cbranch_scc1 K1_NOZ"); e("s_cmp_ge_u32 s20, 4"); e("s_cbranch_scc1 K1_NOZ")
    e("v_mov_b32 v20, 0"); e("v_mov_b32 v21, 0"); e("v_mov_b32 v22, 0"); e("v_mov_b32 v23, 0")
    e("s_lshl_b32 s37, s2, 12"); e("s_cmp_eq_u32 s2, 8"); e("s_cselect_b32 s37, 0x10000, s37"); e(f"s_add_u32 s37, s37, {WS_ST:#x}")
    e("v_lshlrev_b32 v24, 4, v0")
    e("buffer_store_dwordx4 v[20:23], v24, s[24:27], s37 offen")
    e.lab("K1_NOZ")
    if DIAG:
        e("s_waitcnt vmcnt(0)"); stamp(e, 4)
        e("s_cmp_ge_u32 s20, 8"); e("s_cbranch_scc1 K1_END")
        stamp_out(e, 5, 1, 24)
    e.lab("K1_END"); e("s_endpgm")
    return e.txt(), descr(name, 128, 64), f"; @launch kernel={name} grid=(256,1,1) block=(768,1,1) lds=140288"

def k2():
    e = E(); name = "k2_kernel"; header(e, name)
    VB = 65536; CB = 131072; XB = 140288
    Q = 8; NM = 16; S = [32, 48]; O = 64; P2 = [80, 112]; KB = [88, 92]; VF = [96, 104]; T = 120
    e("s_cmp_ge_u32 s2, 256"); e("s_cbranch_scc1 K2_END")
    e("s_load_dwordx2 s[4:5], s[0:1], 80")
    e("v_lshrrev_b32 v1, 6, v0"); e("v_and_b32 v2, 63, v0"); e("s_nop 0")
    e("v_readfirstlane_b32 s20, v1")
    e("s_and_b32 s21, s2, 7"); e("s_lshl_b32 s21, s21, 2"); e("s_bfe_u32 s22, s2, 0x20003"); e("s_add_u32 s21, s21, s22")
    e("s_lshr_b32 s22, s2, 5")
    e("s_and_b32 s31, s20, 7"); e("s_lshr_b32 s32, s20, 3")
    e("s_waitcnt lgkmcnt(0)")
    srd(e, 8, 4, 5, 0x1000000); stamp(e, 0)
    e("v_and_b32 v7, 31, v2"); e("v_lshrrev_b32 v6, 5, v2")
    e("v_lshlrev_b32 v3, 5, v7"); e("v_lshl_add_u32 v3, v6, 4, v3")
    e("v_lshlrev_b32 v4, 4, v2")
    e("s_lshl_b32 s23, s21, 16"); e("s_lshl_b32 s24, s22, 13"); e("s_lshl_b32 s25, s31, 10")
    e("s_add_u32 s24, s24, s25"); e("s_add_u32 s24, s24, s23")
    e(f"buffer_load_dwordx4 {vr(Q,4)}, v3, s[8:11], s24 offen")
    e("s_lshl_b32 s33, s32, 15"); e("s_add_u32 s25, s25, s33")
    e(f"s_add_u32 s26, s23, s25"); e(f"s_add_u32 s26, s26, {WS_K:#x}")
    def dma(c):
        e(f"s_add_u32 s27, s26, {c*8192}"); e(f"s_add_u32 s28, s27, {WS_V-WS_K:#x}")
        e(f"s_add_u32 m0, s25, {c*8192}"); e("s_nop 0")
        e("buffer_load_dwordx4 v4, s[8:11], s27 offen lds")
        e(f"s_add_u32 m0, s25, {VB + c*8192}"); e("s_nop 0")
        e("buffer_load_dwordx4 v4, s[8:11], s28 offen lds")
    dma(0); dma(1)
    e(f"v_and_b32 v{T}, 1, v0")
    e(f"v_mov_b32 v{T+4}, 0x3f80"); e(f"v_mov_b32 v{T+5}, 0"); e(f"v_mov_b32 v{T+7}, 0")
    e(f"v_cmp_eq_u32 vcc, 0, v{T}"); e("s_nop 1")
    e(f"v_cndmask_b32 v{T+4}, 0, v{T+4}, vcc"); e(f"v_mov_b32 v{T+6}, v{T+4}")
    e(f"v_lshlrev_b32 v{T+1}, 4, v0"); e(f"v_add_u32 v{T+1}, {CB}, v{T+1}")
    e("s_cmp_ge_u32 s20, 9"); e("s_cbranch_scc1 K2_NOC")
    e(f"ds_write_b128 v{T+1}, {vr(T+4,4)}")
    e.lab("K2_NOC")
    e("v_add_u32 v3, s33, v3")
    e(f"v_bfe_u32 v{T}, v2, 2, 2"); e(f"v_and_b32 v{T+1}, 3, v2"); e(f"v_bfe_u32 v{T+2}, v2, 4, 1")
    e(f"v_lshl_add_u32 v{T+3}, v6, 2, v{T}")
    e(f"v_lshlrev_b32 v{T+3}, 5, v{T+3}"); e(f"v_lshl_add_u32 v{T+3}, v{T+1}, 3, v{T+3}")
    e(f"v_add_u32 v{T+3}, {VB}, v{T+3}"); e(f"v_add_u32 v{T+3}, s33, v{T+3}")
    e(f"v_lshlrev_b32 v{T+4}, 5, v{T}"); e(f"v_lshl_add_u32 v{T+4}, v{T+1}, 3, v{T+4}"); e(f"v_add_u32 v{T+4}, {CB}, v{T+4}")
    e(f"v_cmp_eq_u32 vcc, 0, v{T+2}"); e(f"v_mov_b32 v{T+5}, 0x2000"); e("s_nop 1")
    e(f"v_cndmask_b32 v5, v{T+4}, v{T+3}, vcc")
    e(f"v_cndmask_b32 v1, 0, v{T+5}, vcc")
    for r in range(16): e(f"v_mov_b32 v{O+r}, 0")
    for r in range(8): e(f"v_mov_b32 v{P2[1]+r}, 0"); e(f"v_mov_b32 v{VF[1]+r}, 0")
    e("s_waitcnt vmcnt(2) lgkmcnt(0)"); e("s_barrier"); stamp(e, 1)
    e(f"ds_read_b128 {vr(KB[0],4)}, v3")
    dma(2); dma(3)
    e("s_waitcnt lgkmcnt(0)")
    e(f"v_mfma_f32_32x32x16_bf16 {vr(S[0],16)}, {vr(KB[0],4)}, {vr(Q,4)}, 0")
    e(f"ds_read_b128 {vr(KB[1],4)}, v3 offset:1024")
    for j in range(2):
        for u in range(2):
            e(f"ds_read_b64_tr_b16 {vr(VF[0]+4*j+2*u,2)}, v5 offset:{j*512+u*256}")
    e.nop(16)
    s0 = S[0]
    e(f"v_max3_f32 v{T}, v{s0}, v{s0+1}, v{s0+2}")
    for r in range(3, 15, 2): e(f"v_max3_f32 v{T}, v{T}, v{s0+r}, v{s0+r+1}")
    e(f"v_max_f32 v{T}, v{T}, v{s0+15}")
    e(f"v_mov_b32 v{T+1}, v{T}"); e("s_nop 1")
    e(f"v_permlane32_swap_b32 v{T}, v{T+1}"); e("s_nop 1")
    e(f"v_max_f32 v{T}, v{T}, v{T+1}")
    e(f"v_sub_f32 v{T}, 0, v{T}")
    for r in range(16): e(f"v_mov_b32 v{NM+r}, v{T}")
    e("s_nop 1")
    e(f"v_mfma_f32_32x32x16_bf16 {vr(S[0],16)}, {vr(KB[0],4)}, {vr(Q,4)}, {vr(NM,16)}")
    stamp(e, 2)
    e("s_mov_b32 s30, 0")
    e.lab("K2_LOOP")
    for i in range(8):
        cur = i & 1; nx = cur ^ 1; sc = S[cur]; Pc = P2[cur]; Pp = P2[nx]
        if i == 5:
            e("s_cmp_gt_u32 s30, 2"); e("s_cbranch_scc1 K2_NW")
            e("s_cmp_eq_u32 s30, 0"); e("s_cbranch_scc0 K2_W1")
            e("s_waitcnt vmcnt(4)"); e("s_branch K2_WB")
            e.lab("K2_W1"); e("s_cmp_eq_u32 s30, 1"); e("s_cbranch_scc0 K2_W2")
            e("s_waitcnt vmcnt(2)"); e("s_branch K2_WB")
            e.lab("K2_W2"); e("s_waitcnt vmcnt(0)")
            e.lab("K2_WB"); e("s_barrier")
            e.lab("K2_NW")
        ex = lambda r: e(f"v_exp_f32 v{sc+r}, v{sc+r}")
        cv = lambda p: e(f"v_cvt_pk_bf16_f32 v{Pc+p}, v{sc+2*p}, v{sc+2*p+1}")
        e("s_waitcnt lgkmcnt(4)")
        e(f"v_mfma_f32_32x32x16_bf16 {vr(S[nx],16)}, {vr(KB[nx],4)}, {vr(Q,4)}, {vr(NM,16)}")
        e(f"ds_read_b128 {vr(KB[cur],4)}, v3 offset:{(i+2)*1024}")
        ex(0); ex(1); ex(2); cv(0); ex(3); ex(4); cv(1)
        e(f"v_mfma_f32_32x32x16_bf16 {vr(O,16)}, {vr(VF[nx],4)}, {vr(Pp,4)}, {vr(O,16)}")
        ex(5); ex(6); cv(2); ex(7); ex(8); cv(3); ex(9); ex(10); cv(4)
        e(f"v_mfma_f32_32x32x16_bf16 {vr(O,16)}, {vr(VF[nx]+4,4)}, {vr(Pp+4,4)}, {vr(O,16)}")
        for j in range(2):
            for u in range(2):
                e(f"ds_read_b64_tr_b16 {vr(VF[nx]+4*j+2*u,2)}, v5 offset:{(i+1)*1024 + j*512+u*256}")
        ex(11); ex(12); cv(5); ex(13); ex(14); cv(6); ex(15); e("s_nop 0"); cv(7)
    e("v_add_u32 v3, 0x2000, v3"); e("v_add_u32 v5, v5, v1")
    e("s_add_u32 s30, s30, 1"); e("s_cmp_lt_u32 s30, 4"); e("s_cbranch_scc1 K2_LOOP")
    e("s_waitcnt lgkmcnt(0)")
    e(f"v_mfma_f32_32x32x16_bf16 {vr(O,16)}, {vr(VF[1],4)}, {vr(P2[1],4)}, {vr(O,16)}")
    e(f"v_mfma_f32_32x32x16_bf16 {vr(O,16)}, {vr(VF[1]+4,4)}, {vr(P2[1]+4,4)}, {vr(O,16)}")
    e.nop(16)
    stamp(e, 3)
    e(f"v_mov_b32 v{T}, 0x5d800000")
    e(f"v_cmp_nlt_f32 vcc, v{O+8}, v{T}"); e("s_nop 4")
    e("s_cbranch_vccnz K2_SLOW")
    e.lab("K2_OUT")
    e("s_mul_i32 s34, s31, 2560"); e(f"s_add_u32 s34, s34, {XB}")
    e(f"v_lshl_add_u32 v{T+1}, v2, 2, s34")
    e("s_cmp_eq_u32 s32, 0"); e("s_cbranch_scc1 K2_LOW")
    for r in range(9): e(f"ds_write_b32 v{T+1}, v{O+r} offset:{256*r}")
    e(f"ds_write_b32 v{T+1}, v{NM} offset:{256*9}")
    e("s_waitcnt lgkmcnt(0)"); e("s_barrier")
    if DIAG: stamp_out(e, 4, 2, 8, "s20")
    e("s_endpgm")
    e.lab("K2_LOW")
    e("s_barrier")
    for r in range(10): e(f"ds_read_b32 v{S[0]+r}, v{T+1} offset:{256*r}")
    e("s_waitcnt lgkmcnt(0)")
    e(f"v_min_f32 v{T}, v{NM}, v{S[0]+9}")
    e(f"v_sub_f32 v{T+2}, v{T}, v{NM}"); e(f"v_sub_f32 v{T+3}, v{T}, v{S[0]+9}")
    e(f"v_exp_f32 v{T+2}, v{T+2}"); e(f"v_exp_f32 v{T+3}, v{T+3}"); e("s_nop 0")
    for r in range(9):
        e(f"v_mul_f32 v{O+r}, v{O+r}, v{T+2}"); e(f"v_fmac_f32 v{O+r}, v{S[0]+r}, v{T+3}")
    e(f"v_rcp_f32 v{T}, v{O+8}"); e("s_nop 0")
    for r in range(8): e(f"v_mul_f32 v{O+r}, v{O+r}, v{T}")
    for r in range(4): e(f"v_cvt_pk_bf16_f32 v{P2[0]+r}, v{O+2*r}, v{O+2*r+1}")
    e("s_lshl_b32 s24, s22, 8"); e("s_lshl_b32 s25, s31, 5"); e("s_add_u32 s24, s24, s25")
    e(f"v_add_u32 v{T+1}, s24, v7"); e(f"v_lshlrev_b32 v{T+1}, 10, v{T+1}"); e(f"v_lshl_add_u32 v{T+1}, v6, 4, v{T+1}")
    e("s_lshl_b32 s25, s21, 5"); e(f"s_add_u32 s25, s25, {WS_O:#x}")
    e(f"buffer_store_dwordx4 {vr(P2[0],4)}, v{T+1}, s[8:11], s25 offen")
    if DIAG: stamp_out(e, 4, 2, 8, "s20")
    e("s_endpgm")
    e.lab("K2_SLOW")
    P = P2[0]
    e("v_subrev_u32 v3, 0x8000, v3")
    e(f"v_lshlrev_b32 v{T+5}, 2, v1"); e(f"v_sub_u32 v5, v5, v{T+5}")
    e(f"v_lshrrev_b32 v1, 3, v1")
    e(f"v_sub_f32 v{NM}, 0, v{NM}")
    for r in range(16): e(f"v_mov_b32 v{O+r}, 0")
    e("s_mov_b32 s30, 0")
    e.lab("K2_SL")
    e(f"ds_read_b128 {vr(KB[0],4)}, v3")
    for j in range(2):
        for u in range(2):
            e(f"ds_read_b64_tr_b16 {vr(VF[0]+4*j+2*u,2)}, v5 offset:{j*512+u*256}")
    e("s_waitcnt lgkmcnt(0)")
    e(f"v_mfma_f32_32x32x16_bf16 {vr(S[0],16)}, {vr(KB[0],4)}, {vr(Q,4)}, 0")
    e.nop(16)
    e(f"v_max3_f32 v{T}, v{s0}, v{s0+1}, v{s0+2}")
    for r in range(3, 15, 2): e(f"v_max3_f32 v{T}, v{T}, v{s0+r}, v{s0+r+1}")
    e(f"v_max3_f32 v{T}, v{T}, v{s0+15}, v{NM}")
    e(f"v_mov_b32 v{T+1}, v{T}"); e("s_nop 1")
    e(f"v_permlane32_swap_b32 v{T}, v{T+1}"); e("s_nop 1")
    e(f"v_max_f32 v{T}, v{T}, v{T+1}")
    e(f"v_sub_f32 v{T+1}, v{NM}, v{T}"); e(f"v_exp_f32 v{T+1}, v{T+1}"); e(f"v_mov_b32 v{NM}, v{T}")
    for r in range(16): e(f"v_mul_f32 v{O+r}, v{O+r}, v{T+1}")
    for r in range(16): e(f"v_sub_f32 v{s0+r}, v{s0+r}, v{T}")
    for r in range(16): e(f"v_exp_f32 v{s0+r}, v{s0+r}")
    e("s_nop 0")
    for p in range(8): e(f"v_cvt_pk_bf16_f32 v{P+p}, v{s0+2*p}, v{s0+2*p+1}")
    e("s_nop 1")
    e(f"v_mfma_f32_32x32x16_bf16 {vr(O,16)}, {vr(VF[0],4)}, {vr(P,4)}, {vr(O,16)}")
    e(f"v_mfma_f32_32x32x16_bf16 {vr(O,16)}, {vr(VF[0]+4,4)}, {vr(P+4,4)}, {vr(O,16)}")
    e("v_add_u32 v3, 0x400, v3"); e("v_add_u32 v5, v5, v1")
    e.nop(16)
    e("s_add_u32 s30, s30, 1"); e("s_cmp_lt_u32 s30, 32"); e("s_cbranch_scc1 K2_SL")
    e(f"v_sub_f32 v{NM}, 0, v{NM}")
    e("s_branch K2_OUT")
    e.lab("K2_END"); e("s_endpgm")
    return e.txt(), descr(name, 128, 64), f"; @launch kernel={name} grid=(256,1,1) block=(1024,1,1) lds=160768"

def k3():
    e = E(); name = "k3_kernel"; header(e, name)
    OB = 65536; AP = 1040
    e("s_cmp_ge_u32 s2, 256"); e("s_cbranch_scc1 K3_END")
    e("s_load_dwordx2 s[4:5], s[0:1], 0"); e("s_load_dwordx2 s[6:7], s[0:1], 16"); e("s_load_dwordx2 s[8:9], s[0:1], 80"); e("s_load_dwordx2 s[10:11], s[0:1], 32")
    e("v_lshrrev_b32 v1, 6, v0"); e("v_and_b32 v2, 63, v0"); e("s_nop 0")
    e("v_readfirstlane_b32 s20, v1")
    e("s_and_b32 s21, s2, 7"); e("s_lshl_b32 s21, s21, 2"); e("s_bfe_u32 s22, s2, 0x20003"); e("s_add_u32 s21, s21, s22"); e("s_lshr_b32 s22, s2, 5")
    e("s_and_b32 s39, s20, 1"); e("s_lshr_b32 s40, s20, 1")
    e("s_waitcnt lgkmcnt(0)")
    srd(e, 12, 4, 5, 2097152); srd(e, 16, 6, 7, 524288); srd(e, 24, 8, 9, 0x1000000); srd(e, 44, 10, 11, 1024); stamp(e, 0)
    e("v_lshrrev_b32 v4, 3, v2"); e("v_lshlrev_b32 v4, 10, v4")
    e("v_bfe_u32 v5, v2, 2, 1"); e("v_bfe_u32 v6, v2, 4, 1"); e("v_xor_b32 v5, v5, v6")
    e("v_lshl_add_u32 v4, v5, 6, v4"); e("v_and_b32 v5, 3, v2"); e("v_lshl_add_u32 v4, v5, 4, v4")
    e("s_lshl_b32 s31, s22, 7"); e("v_add_u32 v4, s31, v4")
    e("v_lshlrev_b32 v3, 4, v2")
    e("s_lshl_b32 s32, s20, 17")
    e("s_lshl_b32 s33, s20, 14")
    e("s_lshl_b32 s35, s21, 16"); e("s_lshl_b32 s36, s20, 14"); e("s_add_u32 s35, s35, s36"); e(f"s_add_u32 s35, s35, {WS_O:#x}")
    e(f"s_mul_i32 s36, s20, {16*AP}"); e(f"s_add_u32 s36, s36, {OB}")
    for i in range(16):
        e(f"s_add_u32 s34, s35, {i*1024}"); e(f"s_add_u32 m0, s36, {i*AP}"); e("s_nop 0")
        e("buffer_load_dwordx4 v3, s[24:27], s34 offen lds")
        e(f"s_add_u32 s34, s32, {i*8192}"); e(f"s_add_u32 m0, s33, {i*1024}"); e("s_nop 0")
        e("buffer_load_dwordx4 v4, s[16:19], s34 offen lds")
    e("v_and_b32 v19, 31, v2"); e("v_lshrrev_b32 v20, 5, v2")
    e("s_lshl_b32 s31, s21, 6"); e("s_lshl_b32 s35, s39, 5"); e("s_add_u32 s31, s31, s35")
    e("v_add_u32 v21, s31, v19")
    e("v_lshlrev_b32 v22, 10, v21")
    e("s_lshl_b32 s37, s22, 7"); e("s_lshl_b32 s38, s40, 6"); e("s_add_u32 s37, s37, s38")
    e("v_lshlrev_b32 v23, 3, v20"); e("v_add_u32 v23, s37, v23")
    e("v_add_u32 v24, v22, v23")
    for g in range(4):
        e(f"buffer_load_dwordx2 {vr(32+2*g,2)}, v24, s[12:15], 0 offen offset:{16*g}")
    for g in range(4):
        e(f"buffer_load_dwordx2 {vr(40+2*g,2)}, v23, s[44:47], 0 offen offset:{16*g}")
    e("v_add_u32 v26, s35, v19"); e(f"v_mul_u32_u24 v26, {AP}, v26"); e("v_lshl_add_u32 v26, v20, 4, v26"); e(f"v_add_u32 v26, {OB}, v26")
    e("v_bfe_u32 v5, v2, 2, 2"); e("v_and_b32 v6, 3, v2"); e("v_bfe_u32 v7, v2, 4, 1")
    e("v_lshl_add_u32 v25, v20, 3, v5"); e("v_lshlrev_b32 v25, 7, v25")
    e("v_lshl_add_u32 v25, v7, 5, v25"); e("v_lshl_add_u32 v25, v6, 3, v25")
    e("v_lshrrev_b32 v5, 1, v5"); e("v_xor_b32 v5, s40, v5"); e("v_lshl_add_u32 v25, v5, 6, v25")
    for r in range(16): e(f"v_mov_b32 v{48+r}, 0")
    e("s_waitcnt vmcnt(8)"); e("s_barrier"); stamp(e, 1)
    NB = 4
    WF = [64 + 8*i for i in range(NB)]; XF = [68 + 8*i for i in range(NB)]
    def rd(s):
        sel = s % NB
        e(f"ds_read_b128 {vr(XF[sel],4)}, v26 offset:{32*s}")
        for u in range(2):
            e(f"ds_read_b64_tr_b16 {vr(WF[sel]+2*u,2)}, v25 offset:{(16*s+4*u)*128}")
    for s in range(NB-1): rd(s)
    for s in range(32):
        sel = s % NB
        if s + NB - 1 < 32: rd(s + NB - 1)
        rem = min(31 - s, NB - 1)
        e(f"s_waitcnt lgkmcnt({3*rem})")
        e(f"v_mfma_f32_32x32x16_bf16 {vr(48,16)}, {vr(WF[sel],4)}, {vr(XF[sel],4)}, {vr(48,16)}")
    stamp(e, 2)
    e("s_mov_b32 s41, 0x3f803f80"); e("v_mov_b32 v8, s41")
    e("v_mov_b32 v9, 0"); e("v_mov_b32 v10, 0"); e("v_mov_b32 v11, 0")
    e("s_waitcnt vmcnt(0)")
    e.nop(12)
    for p in range(8):
        a = 48 + 2*p; x = 32 + p
        e(f"v_cvt_pk_bf16_f32 v12, v{a}, v{a+1}")
        e("v_lshlrev_b32 v13, 16, v12"); e("v_and_b32 v14, 0xffff0000, v12")
        e(f"v_lshlrev_b32 v15, 16, v{x}"); e(f"v_and_b32 v16, 0xffff0000, v{x}")
        e("v_add_f32 v13, v13, v15"); e("v_add_f32 v14, v14, v16")
        e(f"v_cvt_pk_bf16_f32 v{x}, v13, v14")
        e(f"v_dot2_f32_bf16 v9, v{x}, v8, v9")
        e(f"v_dot2_f32_bf16 v10, v{x}, v{x}, v10")
        e(f"v_dot2_f32_bf16 v11, v{x}, v{40+p}, v11")
    e(f"s_mov_b32 s36, {WS_H:#x}")
    for g in range(4):
        e(f"buffer_store_dwordx2 {vr(32+2*g,2)}, v24, s[24:27], s36 offen offset:{16*g}")
    e("s_nop 2")
    for q in range(3): e(f"v_mov_b32 v{12+q}, v{9+q}")
    e("s_nop 1")
    for q in range(3): e(f"v_permlane32_swap_b32 v{9+q}, v{12+q}")
    e("s_nop 1")
    for q in range(3): e(f"v_add_f32 v{9+q}, v{9+q}, v{12+q}")
    e("v_lshlrev_b32 v15, 4, v21")
    e(f"s_mov_b32 s36, {WS_ST:#x}")
    e("s_mov_b64 exec, 0xffffffff")
    for q in range(3):
        e(f"buffer_atomic_add_f32 v{9+q}, v15, s[24:27], s36 offen offset:{4*q}")
    if DIAG:
        e("s_waitcnt vmcnt(0)"); stamp(e, 3); stamp_out(e, 4, 3, 24)
    e.lab("K3_END"); e("s_endpgm")
    return e.txt(), descr(name, 96, 64), f"; @launch kernel={name} grid=(256,1,1) block=(256,1,1) lds=132096"

def ln2_elem(e, x, mb, rinv, t):
    e(f"v_lshlrev_b32 v{t}, 16, v{x}"); e(f"v_and_b32 v{t+1}, 0xffff0000, v{x}")
    e(f"v_sub_f32 v{t+2}, v{t}, v{mb}"); e(f"v_sub_f32 v{t+3}, v{t+1}, v{mb}")
    e(f"v_cvt_pk_bf16_f32 v{t+2}, v{t+2}, v{t+3}")
    e(f"v_and_b32 v{t+3}, 0xffff0000, v{t+2}"); e(f"v_lshlrev_b32 v{t+2}, 16, v{t+2}")
    e(f"v_mul_f32 v{t+2}, v{t+2}, v{rinv}"); e(f"v_mul_f32 v{t+3}, v{t+3}, v{rinv}")
    e(f"v_cvt_pk_bf16_f32 v{t+2}, v{t+2}, v{t+3}")

WS_Y = 0xA10000
def k4():
    e = E(); name = "k4_kernel"; header(e, name)
    NF = 56; NE = 32
    L_XS = 1024; L_H = 5120; L_G = 8192; L_S2 = 40960; L_ACT = 45056; L_D = 49152; L_FLAG = 65536
    e(f"s_cmp_ge_u32 s2, {NF+NE}"); e("s_cbranch_scc1 K4_END")
    e("s_load_dwordx2 s[4:5], s[0:1], 80"); e("s_load_dwordx4 s[8:11], s[0:1], 64")
    e("s_load_dwordx8 s[44:51], s[0:1], 32")
    e("v_lshrrev_b32 v1, 6, v0"); e("v_and_b32 v2, 63, v0"); e("s_nop 0")
    e("v_readfirstlane_b32 s20, v1")
    e("s_waitcnt lgkmcnt(0)")
    srd(e, 12, 4, 5, 0x1000000); srd(e, 16, 8, 9, 2097152); srd(e, 24, 44, 45, 1024)
    srd(e, 28, 46, 47, 1835008); srd(e, 32, 48, 49, 1835008); srd(e, 36, 50, 51, 1835008); srd(e, 40, 10, 11, 256)
    stamp(e, 0)
    e("v_lshlrev_b32 v7, 4, v0")
    e(f"s_mov_b32 s52, {WS_ST:#x}"); e(f"s_mov_b32 s53, {WS_ST + 16384:#x}"); e(f"s_mov_b32 s54, {WS_H:#x}")
    e("buffer_load_dwordx4 v[64:67], v7, s[12:15], s52 offen")
    e("buffer_load_dwordx4 v[68:71], v7, s[12:15], s53 offen")
    e("v_lshlrev_b32 v8, 4, v2")
    e("buffer_load_dwordx4 v[12:15], v8, s[24:27], 0 offen")
    e(f"s_cmp_lt_u32 s2, {NF}"); e("s_cbranch_scc1 K4_LF")
    e(f"s_sub_u32 s21, s2, {NF}"); e("s_lshl_b32 s21, s21, 6"); e("s_lshl_b32 s22, s20, 2"); e("s_add_u32 s21, s21, s22")
    e("v_lshrrev_b32 v4, 4, v2"); e("v_and_b32 v5, 15, v2")
    e("v_add_u32 v6, s21, v4")
    e("v_lshlrev_b32 v3, 10, v6"); e("v_lshl_add_u32 v3, v5, 4, v3")
    e("v_lshlrev_b32 v9, 4, v6")
    e("buffer_load_dwordx4 v[72:75], v9, s[12:15], s52 offen")
    for i in range(4):
        e(f"buffer_load_dwordx4 {vr(80+4*i,4)}, v3, s[12:15], s54 offen offset:{256*i}")
    e("s_waitcnt vmcnt(5)"); e("s_branch K4_TOP")
    e.lab("K4_LF")
    e("v_lshrrev_b32 v4, 4, v0"); e("v_and_b32 v5, 15, v0")
    e("v_mul_u32_u24 v3, 3584, v4"); e("v_lshl_add_u32 v3, v5, 2, v3")
    e("s_lshl_b32 s21, s2, 6"); e("v_add_u32 v3, s21, v3")
    for i in range(8):
        e(f"s_mov_b32 s55, {i*64*3584}")
        e(f"buffer_load_dword v{80+i}, v3, s[28:31], s55 offen")
        e(f"buffer_load_dword v{88+i}, v3, s[32:35], s55 offen")
    e("v_lshrrev_b32 v6, 8, v0"); e("v_and_b32 v9, 255, v0")
    e("v_lshlrev_b32 v11, 13, v6"); e("v_lshl_add_u32 v11, v9, 2, v11")
    e("s_lshl_b32 s21, s2, 15"); e("s_add_u32 s22, s21, 4096")
    for i in range(8):
        e(f"buffer_load_dword v{96+i}, v11, s[36:39], {'s21' if i < 4 else 's22'} offen offset:{(i&3)*1024}")
    e("s_waitcnt vmcnt(24)")
    e.lab("K4_TOP"); stamp(e, 1)
    e("s_mov_b32 s56, 0x3f803f80"); e("v_mov_b32 v18, s56"); e("v_mov_b32 v10, 0")
    for q in range(4): e(f"v_dot2_f32_bf16 v10, v{12+q}, v18, v10")
    e("s_nop 2")
    for ror in (8, 4, 2, 1):
        e(f"v_add_f32_dpp v10, v10, v10 row_ror:{ror} row_mask:0xf bank_mask:0xf"); e("s_nop 1")
    for q in range(4): e(f"v_readlane_b32 s{56+q}, v10, {16*q}")
    e("s_nop 1")
    e("v_mov_b32 v10, s56"); e("v_add_f32 v10, s57, v10"); e("v_add_f32 v10, s58, v10"); e("v_add_f32 v10, s59, v10")
    for i in range(2):
        b = 64 + 4*i; t = 18 + 8*i
        ln_scalars(e, b, b+1, t, (t+2, t+3), "0x3b000000")
        e(f"v_rcp_f32 v{t+3}, v{t+3}")
        e(f"v_fma_f32 v{t+4}, -v{t+2}, v10, v{b+2}")
        e(f"v_mul_f32 v{t+4}, v{t+4}, v{t+3}")
        e(f"v_cvt_pk_bf16_f32 v{t+4}, v{t+4}, v{t+4}")
        e(f"v_ashrrev_i32 v{t+5}, 31, v{t+4}")
        e(f"v_or_b32 v{t+5}, 0x80000000, v{t+5}")
        e(f"v_xor_b32 v{t+4}, v{t+4}, v{t+5}")
        e(f"v_and_b32 v{t+4}, 0xffff0000, v{t+4}")
        e(f"v_sub_u32 v{t+5}, {2047 - 1024*i}, v0")
        e(f"v_or_b32 v{t+4}, v{t+4}, v{t+5}")
    e("v_max_u32 v16, v22, v30"); e("v_min_u32 v17, v22, v30")
    def red16():
        for ror in (8, 4, 2, 1):
            e("s_nop 1")
            e(f"v_mov_b32_dpp v18, v16 row_ror:{ror} row_mask:0xf bank_mask:0xf")
            e(f"v_mov_b32_dpp v19, v17 row_ror:{ror} row_mask:0xf bank_mask:0xf")
            e("v_min_u32 v20, v16, v18"); e("v_max_u32 v16, v16, v18"); e("v_max3_u32 v17, v17, v19, v20")
    red16()
    e("v_lshrrev_b32 v18, 4, v0"); e("v_lshlrev_b32 v18, 3, v18")
    e("ds_write_b64 v18, v[16:17]")
    e("s_waitcnt lgkmcnt(0)"); e("s_barrier")
    e("v_lshlrev_b32 v18, 3, v2")
    e("ds_read_b64 v[16:17], v18")
    e("s_waitcnt lgkmcnt(0)")
    red16()
    e("s_nop 0")
    for q in range(4):
        e(f"v_readlane_b32 s{56+2*q}, v16, {16*q}"); e(f"v_readlane_b32 s{57+2*q}, v17, {16*q}")
    def smerge(d, a, b):
        e(f"s_min_u32 s64, s{a}, s{b}"); e(f"s_max_u32 s65, s{a+1}, s{b+1}"); e(f"s_max_u32 s{d}, s{a}, s{b}"); e(f"s_max_u32 s{d+1}, s64, s65")
    smerge(56, 56, 58); smerge(60, 60, 62); smerge(56, 56, 60)
    e("s_and_b32 s56, s56, 0x7ff"); e("s_and_b32 s57, s57, 0x7ff")
    e("s_sub_u32 s56, 2047, s56"); e("s_sub_u32 s57, 2047, s57")
    stamp(e, 2)
    e(f"s_cmp_lt_u32 s2, {NF}"); e("s_cbranch_scc1 K4_FFN")
    e("s_waitcnt vmcnt(0)")
    ln_scalars(e, 72, 73, 12, (14, 15), "0x3b000000")
    e("v_rcp_f32 v15, v15"); e("s_nop 0")
    for j in range(16):
        x = 80 + j
        ln2_elem(e, x, 14, 15, 32)
        e("v_and_b32 v35, 0xffff0000, v34"); e("v_lshlrev_b32 v34, 16, v34")
        e("v_add_f32 v34, v32, v34"); e("v_add_f32 v35, v33, v35")
        e(f"v_cvt_pk_bf16_f32 v{x}, v34, v35")
    e("v_cmp_ne_u32 vcc, s56, v6"); e("v_cmp_ne_u32 s[60:61], s57, v6"); e("s_nop 1")
    e("s_and_b64 s[60:61], s[60:61], vcc"); e("s_and_b64 exec, exec, s[60:61]")
    e("s_cbranch_execz K4_END")
    for i in range(4):
        e(f"buffer_store_dwordx4 {vr(80+4*i,4)}, v3, s[16:19], 0 offen offset:{256*i}")
    e("s_endpgm")
    e.lab("K4_FFN")
    e("s_cmp_ge_u32 s20, 8"); e("s_cbranch_scc1 K4_NOXS")
    e("s_cmp_lt_u32 s20, 4"); e("s_cselect_b32 s58, s56, s57")
    e("s_lshl_b32 s59, s58, 4"); e("s_add_u32 s59, s59, s52")
    e("s_lshl_b32 s60, s58, 10"); e("s_add_u32 s60, s60, s54")
    e("v_and_b32 v19, 255, v0"); e("v_lshlrev_b32 v20, 2, v19"); e("v_mov_b32 v21, 0")
    e("buffer_load_dwordx4 v[24:27], v21, s[12:15], s59 offen")
    e("buffer_load_dword v28, v20, s[12:15], s60 offen")
    e("buffer_load_dword v30, v20, s[24:27], 0 offen")
    e("v_lshrrev_b32 v41, 8, v0")
    e("s_waitcnt vmcnt(0)")
    ln_scalars(e, 24, 25, 32, (34, 35), "0x3b000000")
    e("v_rcp_f32 v35, v35"); e("s_nop 0")
    ln2_elem(e, 28, 34, 35, 36)
    e("v_mov_b32 v40, 0"); e("v_dot2_f32_bf16 v40, v38, v30, v40")
    e("v_lshlrev_b32 v42, 2, v41"); e("v_lshl_add_u32 v42, v19, 4, v42")
    e("v_lshlrev_b32 v43, 16, v38"); e("v_and_b32 v44, 0xffff0000, v38")
    e(f"ds_write_b32 v42, v43 offset:{L_XS}"); e(f"ds_write_b32 v42, v44 offset:{L_XS+8}")
    e("v_lshlrev_b32 v45, 2, v0")
    e(f"ds_write_b32 v45, v28 offset:{L_H}")
    for ror in (8, 4, 2, 1):
        e("s_nop 1"); e(f"v_add_f32_dpp v40, v40, v40 row_ror:{ror} row_mask:0xf bank_mask:0xf")
    e("v_lshrrev_b32 v45, 4, v0"); e("v_lshlrev_b32 v45, 2, v45")
    e("ds_write_b32 v45, v40 offset:512")
    e.lab("K4_NOXS")
    e("s_waitcnt vmcnt(0) lgkmcnt(0)"); e("s_barrier"); stamp(e, 3)
    for r in range(104, 112): e(f"v_mov_b32 v{r}, 0")
    e("v_lshlrev_b32 v41, 3, v4")
    for i in range(8):
        e(f"ds_read_b64 {vr(48+2*i,2)}, v41 offset:{L_XS + i*512}")
    for i in range(8):
        e(f"s_waitcnt lgkmcnt({7-i})")
        for m in range(2):
            w = 80 + 8*m + i
            e(f"v_lshlrev_b32 v46, 16, v{w}"); e(f"v_and_b32 v47, 0xffff0000, v{w}")
            for tk in range(2):
                a = 104 + m*4 + tk*2
                e(f"v_fmac_f32 v{a}, v46, v{48+2*i+tk}"); e(f"v_fmac_f32 v{a+1}, v47, v{48+2*i+tk}")
    e("v_lshlrev_b32 v41, 5, v0")
    e(f"ds_write_b128 v41, v[104:107] offset:{L_G}"); e(f"ds_write_b128 v41, v[108:111] offset:{L_G+16}")
    e("s_waitcnt lgkmcnt(0)"); e("s_barrier")
    e("v_and_b32 v41, 127, v0"); e("v_lshrrev_b32 v42, 7, v0")
    e("v_lshlrev_b32 v43, 12, v42"); e("v_lshl_add_u32 v43, v41, 2, v43")
    for g in range(8): e(f"ds_read_b32 v{48+g}, v43 offset:{L_G + 512*g}")
    e("s_waitcnt lgkmcnt(0)")
    for g in range(1, 8): e(f"v_add_f32 v48, v48, v{48+g}")
    e("v_lshlrev_b32 v43, 2, v0")
    e(f"ds_write_b32 v43, v48 offset:{L_S2}")
    e("s_waitcnt lgkmcnt(0)"); e("s_barrier")
    e("s_cmp_lg_u32 s20, 0"); e("s_cbranch_scc1 K4_NS3")
    e("v_lshrrev_b32 v41, 5, v2"); e("v_and_b32 v42, 31, v2"); e("v_lshrrev_b32 v43, 1, v42"); e("v_and_b32 v44, 1, v42")
    e("v_lshlrev_b32 v45, 5, v43"); e("v_lshl_add_u32 v45, v41, 3, v45"); e("v_lshl_add_u32 v45, v44, 2, v45")
    for g in range(8):
        e(f"ds_read_b32 v{48+g}, v45 offset:{L_S2 + 512*g}")
        e(f"ds_read_b32 v{56+g}, v45 offset:{L_S2 + 512*g + 16}")
    e("s_waitcnt lgkmcnt(0)")
    for g in range(1, 8):
        e(f"v_add_f32 v48, v48, v{48+g}"); e(f"v_add_f32 v56, v56, v{56+g}")
    rnd_bf16(e, 48, 48); rnd_bf16(e, 56, 56)
    e("v_mul_f32 v49, 0xbfb8aa3b, v48"); e("v_exp_f32 v49, v49"); e("s_nop 0")
    e("v_add_f32 v49, 1.0, v49"); e("v_rcp_f32 v49, v49"); e("s_nop 0")
    e("v_mul_f32 v49, v48, v49"); rnd_bf16(e, 49, 49)
    e("v_mul_f32 v49, v49, v56"); rnd_bf16(e, 49, 49)
    e("v_lshlrev_b32 v50, 3, v42"); e("v_lshl_add_u32 v50, v41, 2, v50")
    e(f"ds_write_b32 v50, v49 offset:{L_ACT}")
    e("s_waitcnt lgkmcnt(0)")
    e.lab("K4_NS3")
    e("s_barrier"); stamp(e, 4)
    e("v_lshlrev_b32 v41, 6, v6")
    for i in range(8): e(f"ds_read_b64 {vr(48+2*i,2)}, v41 offset:{L_ACT + 8*i}")
    for r in range(104, 108): e(f"v_mov_b32 v{r}, 0")
    for i in range(8):
        e(f"s_waitcnt lgkmcnt({7-i})")
        w = 96 + i
        e(f"v_lshlrev_b32 v46, 16, v{w}"); e(f"v_and_b32 v47, 0xffff0000, v{w}")
        for tk in range(2):
            a = 104 + tk*2
            e(f"v_fmac_f32 v{a}, v46, v{48+2*i+tk}"); e(f"v_fmac_f32 v{a+1}, v47, v{48+2*i+tk}")
    e("v_lshlrev_b32 v41, 4, v0")
    e(f"ds_write_b128 v41, v[104:107] offset:{L_D}")
    e("s_waitcnt lgkmcnt(0)"); e("s_barrier")
    e("v_lshrrev_b32 v41, 9, v0"); e("v_and_b32 v42, 511, v0"); e("v_lshrrev_b32 v43, 1, v42"); e("v_and_b32 v44, 1, v42")
    e("v_lshlrev_b32 v45, 4, v43"); e("v_lshl_add_u32 v45, v41, 3, v45"); e("v_lshl_add_u32 v45, v44, 2, v45")
    for g in range(4): e(f"ds_read_b32 v{48+g}, v45 offset:{L_D + 4096*g}")
    e("s_waitcnt lgkmcnt(0)")
    e("v_add_f32 v48, v48, v49"); e("v_add_f32 v50, v50, v51"); e("v_add_f32 v48, v48, v50")
    e("v_lshlrev_b32 v46, 2, v0"); e(f"s_mov_b32 s58, {WS_Y:#x}")
    e("buffer_atomic_add_f32 v48, v46, s[12:15], s58 offen")
    e("s_waitcnt vmcnt(0)"); e("s_barrier"); stamp(e, 5)
    e("s_cmp_lg_u32 s20, 0"); e("s_cbranch_scc1 K4_NCNT")
    e("v_mov_b32 v48, 1"); e("v_mov_b32 v49, 0"); e(f"v_mov_b32 v50, {L_FLAG}")
    e("s_mov_b64 exec, 1")
    e("buffer_atomic_add v48, v49, s[40:43], 0 offen sc0")
    e("s_waitcnt vmcnt(0)")
    e("ds_write_b32 v50, v48")
    e("s_mov_b64 exec, -1")
    e("s_waitcnt lgkmcnt(0)")
    e.lab("K4_NCNT")
    e("s_barrier")
    e(f"v_mov_b32 v50, {L_FLAG}"); e("ds_read_b32 v48, v50"); e("s_waitcnt lgkmcnt(0)")
    e("v_readfirstlane_b32 s59, v48")
    if DIAG:
        stamp(e, 6); e("s_cmp_lg_u32 s20, 0"); e("s_cbranch_scc1 K4_NODIAG"); stamp_out(e, 7, 4, 12); e.lab("K4_NODIAG")
    e(f"s_cmp_lg_u32 s59, {NF-1}"); e("s_cbranch_scc1 K4_END")
    e("v_mov_b32 v48, 0")
    e("buffer_atomic_add_f32 v48, v46, s[12:15], s58 offen sc0")
    e("v_lshlrev_b32 v47, 6, v41")
    for q in range(4): e(f"ds_read_b128 {vr(52+4*q,4)}, v47 offset:{512 + 16*q}")
    e("v_lshlrev_b32 v47, 3, v42"); e("v_lshl_add_u32 v47, v41, 2, v47")
    e(f"ds_read_b32 v49, v47 offset:{L_XS}")
    e("v_lshlrev_b32 v47, 1, v0")
    e(f"ds_read_u16 v50, v47 offset:{L_H}")
    e("s_waitcnt lgkmcnt(0)")
    for q in range(1, 16): e(f"v_add_f32 v52, v52, v{52+q}")
    rnd_bf16(e, 52, 52)
    e("v_mul_f32 v52, 0xbfb8aa3b, v52"); e("v_exp_f32 v52, v52"); e("s_nop 0")
    e("v_add_f32 v52, 1.0, v52"); e("v_rcp_f32 v52, v52"); e("s_nop 0")
    rnd_bf16(e, 52, 52)
    e("v_lshlrev_b32 v50, 16, v50")
    e("s_cmp_lt_u32 s20, 8"); e("s_cselect_b32 s60, s56, s57"); e("s_lshl_b32 s60, s60, 10")
    e("v_lshlrev_b32 v51, 1, v42")
    e("s_waitcnt vmcnt(0)")
    rnd_bf16(e, 48, 48)
    e("v_mul_f32 v48, v48, v52"); rnd_bf16(e, 48, 48)
    e("v_add_f32 v48, v49, v48"); rnd_bf16(e, 48, 48)
    e("v_add_f32 v48, v50, v48"); e("v_cvt_pk_bf16_f32 v48, v48, v48")
    e("buffer_store_short v48, v51, s[16:19], s60 offen")
    e.lab("K4_END"); e("s_endpgm")
    return e.txt(), descr(name, 112, 96), f"; @launch kernel={name} grid=({NF+NE},1,1) block=(1024,1,1) lds=66048"

def main(out):
    ks = [k1(), k2(), k3(), k4()]
    s = "; generated 5-kernel pipeline: LN1+QKV | attention | out-proj+stats | LN2 out + top2 + gate/up | down + final rows\n"
    for k in ks: s += k[2] + "\n"
    s += '.amdgcn_target "amdgcn-amd-amdhsa--gfx950"\n.text\n'
    for k in ks: s += k[0]
    s += '.section .rodata,"a"\n'
    for k in ks: s += k[1]
    open(out, "w").write(s)

if __name__ == "__main__":
    if len(sys.argv) > 2 and sys.argv[2] == "diag": DIAG = True
    for q in range(1536): assert (q * 2731) >> 16 == q // 24
    main(sys.argv[1] if len(sys.argv) > 1 else "sequential_preLN__softmax_full_mha__moe_arch_mod__prompt.s")
```

```python
import sys, math

WS_Q = 0x000000; WS_K = 0x200000; WS_V = 0x400000; WS_O = 0x600000; WS_H = 0x800000
WS_ST = 0xA00000; WS_ACT = 0xA10000; WS_SEL = 0xA20000
C_SCALE = 0.25 * math.log2(math.e)
import struct
def f32bits(x): return struct.unpack("<I", struct.pack("<f", x))[0]

class E:
    def __init__(self): self.l = []
    def __call__(self, s): self.l.append("    " + s)
    def lab(self, s): self.l.append(s + ":")
    def c(self, s): self.l.append("    ; " + s)
    def nop(self, n):
        while n > 0:
            k = min(n, 16); self(f"s_nop {k-1}"); n -= k
    def txt(self): return "\n".join(self.l) + "\n"

def vr(a, n): return f"v[{a}:{a+n-1}]"
def sr(a, n): return f"s[{a}:{a+n-1}]"

def srd(e, d, lo, hi, size):
    e(f"s_mov_b32 s{d}, s{lo}"); e(f"s_mov_b32 s{d+1}, s{hi}"); e(f"s_mov_b32 s{d+2}, {size:#x}"); e(f"s_mov_b32 s{d+3}, 0x00020000")

def header(e, name):
    e.l.append(f".globl {name}"); e.l.append(".p2align 8"); e.l.append(f".type {name},@function"); e.lab(name)

def descr(name, vg, sg=64):
    if DIAG: vg = max(vg, 128); sg = 102
    vg4 = (vg + 3) // 4 * 4
    return f""".p2align 6
.amdhsa_kernel {name}
  .amdhsa_next_free_vgpr {vg}
  .amdhsa_next_free_sgpr {sg}
  .amdhsa_accum_offset {vg4}
  .amdhsa_group_segment_fixed_size 0
  .amdhsa_kernarg_size 88
  .amdhsa_user_sgpr_count 2
  .amdhsa_user_sgpr_kernarg_segment_ptr 1
  .amdhsa_system_sgpr_workgroup_id_x 1
.end_amdhsa_kernel
"""

DIAG = False
WS_DIAG = 0xB00000
def stamp(e, idx):
    if not DIAG: return
    b = 70 + 4*idx
    e(f"s_memtime s[{b}:{b+1}]"); e(f"s_memrealtime s[{b+2}:{b+3}]"); e("s_waitcnt lgkmcnt(0)")
def stamp_out(e, n, kid, srdbase, wavesreg="s20"):
    if not DIAG: return
    e("s_mov_b64 exec, 1")
    e(f"s_lshl_b32 s68, s2, 4"); e(f"s_add_u32 s68, s68, {wavesreg}"); e("s_lshl_b32 s68, s68, 7"); e(f"s_add_u32 s68, s68, {WS_DIAG + kid*0x80000:#x}")
    e("v_mov_b32 v122, 0")
    for i in range(n):
        b = 70 + 4*i
        e(f"v_mov_b32 v124, s{b}"); e(f"v_mov_b32 v125, s{b+1}"); e(f"v_mov_b32 v126, s{b+2}"); e(f"v_mov_b32 v127, s{b+3}")
        e(f"buffer_store_dwordx4 v[124:127], v122, s[{srdbase}:{srdbase+3}], s68 offen offset:{16*i}")
        e("s_nop 1")
    e("s_mov_b64 exec, -1")

def rnd_bf16(e, d, s):
    e(f"v_cvt_pk_bf16_f32 v{d}, v{s}, v{s}")
    e(f"v_lshlrev_b32 v{d}, 16, v{d}")

def ln_scalars(e, sm, sq, t, outs, inv_n):
    mb, sb = outs
    e(f"v_mul_f32 v{t}, {inv_n}, v{sm}")
    e(f"v_mul_f32 v{t+1}, {inv_n}, v{sq}")
    e(f"v_fma_f32 v{t+1}, -v{t}, v{t}, v{t+1}")
    e(f"v_max_f32 v{t+1}, 0, v{t+1}")
    rnd_bf16(e, mb, t)
    rnd_bf16(e, t+1, t+1)
    e(f"v_add_f32 v{t+1}, 0x3727c5ac, v{t+1}")
    rnd_bf16(e, t+1, t+1)
    e(f"v_sqrt_f32 v{t+1}, v{t+1}")
    e("s_nop 0")
    rnd_bf16(e, sb, t+1)

def k1():
    e = E(); name = "k1_kernel"; header(e, name)
    A_BASE = 73728; AP = 1040
    e("s_cmp_ge_u32 s2, 256"); e("s_cbranch_scc1 K1_END")
    e("s_load_dwordx4 s[4:7], s[0:1], 0"); e("s_load_dwordx2 s[8:9], s[0:1], 80")
    e("v_lshrrev_b32 v1, 6, v0"); e("v_and_b32 v2, 63, v0"); e("s_nop 0")
    e("v_readfirstlane_b32 s20, v1")
    e("s_bfe_u32 s21, s2, 0x20001"); e("s_lshl_b32 s21, s21, 3"); e("s_bfe_u32 s22, s2, 0x30003"); e("s_add_u32 s21, s21, s22")
    e("s_and_b32 s22, s2, 1"); e("s_lshl_b32 s22, s22, 2"); e("s_lshr_b32 s23, s2, 6"); e("s_add_u32 s22, s22, s23")
    e("s_waitcnt lgkmcnt(0)")
    srd(e, 12, 4, 5, 2097152); srd(e, 16, 6, 7, 1572864); srd(e, 24, 8, 9, 0x1000000); stamp(e, 0)
    e("v_lshrrev_b32 v4, 3, v2"); e("v_and_b32 v5, 7, v2")
    e("s_cmp_ge_u32 s20, 8"); e("s_cbranch_scc1 K1_NOX")
    e("s_lshl_b32 s23, s21, 6"); e("s_lshl_b32 s31, s20, 3"); e("s_add_u32 s23, s23, s31")
    e("v_add_u32 v3, s23, v4"); e("v_lshlrev_b32 v3, 10, v3"); e("v_lshl_add_u32 v3, v5, 4, v3")
    for i in range(8):
        e(f"buffer_load_dwordx4 {vr(64+4*i,4)}, v3, s[12:15], 0 offen offset:{i*128}")
    e.lab("K1_NOX")
    e("s_lshl_b32 s31, s20, 7")
    e("s_movk_i32 s33, 2731")
    e("s_mul_i32 s34, s22, 384")
    for i in range(2):
        e(f"v_add_u32 v6, s31, v2")
        if i: e(f"v_add_u32 v6, {i*64}, v6")
        e("v_mul_lo_u32 v7, v6, s33"); e("v_lshrrev_b32 v7, 16, v7")
        e("v_mul_u32_u24 v8, 24, v7"); e("v_sub_u32 v8, v6, v8")
        e("v_lshrrev_b32 v9, 2, v8")
        e("v_bfe_u32 v16, v7, 1, 1"); e("v_xor_b32 v9, v9, v16")
        e("v_and_b32 v8, 3, v8")
        e("v_mul_u32_u24 v7, 3072, v7")
        e("v_lshl_add_u32 v7, v9, 6, v7"); e("v_lshl_add_u32 v7, v8, 4, v7")
        e(f"v_add_u32 v{10+i}, s34, v7")
    e("s_lshl_b32 s35, s20, 11")
    def dma_chunk(c):
        buf = c % 3
        e(f"s_mov_b32 s36, {c*196608}")
        for i in range(2):
            e(f"s_add_u32 m0, s35, {buf*24576 + i*1024}")
            e("s_nop 0")
            e(f"buffer_load_dwordx4 v{10+i}, s[16:19], s36 offen lds")
    for c in range(3): dma_chunk(c)
    e("s_cmp_ge_u32 s20, 8"); e("s_cbranch_scc1 K1_NOLN")
    e("s_mov_b32 s38, 0x3f803f80")
    e("v_mov_b32 v17, s38")
    for p in range(4): e(f"v_mov_b32 v{32+p}, 0")
    e("s_lshl_b32 s31, s20, 3")
    e("v_add_u32 v18, s31, v4"); e(f"v_mul_u32_u24 v18, {AP}, v18"); e("v_lshl_add_u32 v18, v5, 4, v18")
    e(f"v_add_u32 v18, {A_BASE}, v18")
    e("s_waitcnt vmcnt(6)"); stamp(e, 1)
    for j in range(32):
        r = 64 + j
        e(f"v_dot2_f32_bf16 v{32+(j&1)}, v{r}, v17, v{32+(j&1)}")
        e(f"v_dot2_f32_bf16 v{34+(j&1)}, v{r}, v{r}, v{34+(j&1)}")
    e("s_nop 2")
    e("v_add_f32 v32, v32, v33"); e("v_add_f32 v34, v34, v35"); e("s_nop 1")
    for m in ("quad_perm:[1,0,3,2]", "quad_perm:[2,3,0,1]", "row_half_mirror"):
        e(f"v_add_f32_dpp v32, v32, v32 {m} row_mask:0xf bank_mask:0xf")
        e(f"v_add_f32_dpp v34, v34, v34 {m} row_mask:0xf bank_mask:0xf")
        e("s_nop 0")
    ln_scalars(e, 32, 34, 48, (50, 51), "0x3b000000")
    e(f"v_rcp_f32 v40, v51"); e("s_nop 0")
    e(f"v_mul_f32 v44, v50, v40"); e(f"v_sub_f32 v44, 0, v44")
    for j in range(32):
        r = 64 + j; t = 52 + 2*(j & 1)
        e(f"v_lshlrev_b32 v{t}, 16, v{r}"); e(f"v_and_b32 v{t+1}, 0xffff0000, v{r}")
        e(f"v_fma_f32 v{t}, v{t}, v40, v44"); e(f"v_fma_f32 v{t+1}, v{t+1}, v40, v44")
        e(f"v_cvt_pk_bf16_f32 v{r}, v{t}, v{t+1}")
        if j % 4 == 3:
            e(f"ds_write_b128 v18, {vr(r-3,4)} offset:{(j//4)*128}")
    e.lab("K1_NOLN")
    e("s_and_b32 s39, s20, 1"); e("s_lshr_b32 s40, s20, 1")
    e("v_and_b32 v19, 31, v2"); e("v_lshrrev_b32 v20, 5, v2")
    e("s_lshl_b32 s31, s39, 5")
    e("v_add_u32 v21, s31, v19"); e(f"v_mul_u32_u24 v21, {AP}, v21"); e("v_lshl_add_u32 v21, v20, 4, v21")
    e(f"v_add_u32 v21, {A_BASE}, v21")
    e("v_bfe_u32 v22, v2, 2, 2")
    e("v_and_b32 v23, 3, v2")
    e("v_bfe_u32 v24, v2, 4, 1")
    e("v_lshl_add_u32 v25, v20, 3, v22")
    e("v_mul_u32_u24 v25, 384, v25")
    e("v_lshl_add_u32 v25, v24, 5, v25"); e("v_lshl_add_u32 v25, v23, 3, v25")
    e("v_lshrrev_b32 v26, 1, v22")
    e("v_xor_b32 v27, s40, v26")
    e("v_lshl_add_u32 v54, v27, 6, v25")
    e("v_add_u32 v55, 49152, v54")
    for r in range(96, 112): e(f"v_mov_b32 v{r}, 0")
    e("s_waitcnt lgkmcnt(0)")
    stamp(e, 2)
    XF = [112, 116]; WF = [120, 124]
    def reads(c, ks, sel):
        buf = c % 3; s = c*4 + ks
        e(f"ds_read_b128 {vr(XF[sel],4)}, v21 offset:{32*s}")
        base = 55 if buf == 2 else 54
        bo = 0 if buf == 2 else buf*24576
        for u in range(2):
            e(f"ds_read_b64_tr_b16 {vr(WF[sel]+2*u,2)}, v{base} offset:{bo + (16*ks+4*u)*384}")
    for c in range(8):
        n = 4 if c == 0 else (0 if c == 7 else 2)
        e(f"s_waitcnt vmcnt({n})"); e("s_barrier")
        reads(c, 0, 0)
        if 1 <= c <= 5: dma_chunk(c+2)
        for ks in range(4):
            sel = ks & 1
            if ks < 3:
                reads(c, ks+1, sel ^ 1); e("s_waitcnt lgkmcnt(3)")
            else:
                e("s_waitcnt lgkmcnt(0)")
            e(f"v_mfma_f32_32x32x16_bf16 {vr(96,16)}, {vr(WF[sel],4)}, {vr(XF[sel],4)}, {vr(96,16)}")
    stamp(e, 3)
    e("s_lshl_b32 s31, s21, 6"); e("s_lshl_b32 s42, s39, 5"); e("s_add_u32 s31, s31, s42")
    e("v_add_u32 v22, s31, v19"); e("v_lshlrev_b32 v22, 5, v22"); e("v_lshl_add_u32 v22, v20, 4, v22")
    e("s_mul_i32 s44, s22, 6"); e("s_add_u32 s44, s44, s40")
    e("s_lshr_b32 s45, s44, 4")
    e("s_and_b32 s46, s44, 15")
    e("s_lshl_b32 s47, s45, 21"); e("s_lshl_b32 s46, s46, 17"); e("s_add_u32 s47, s47, s46")
    e("s_add_u32 s48, s47, 0x10000")
    e("s_cmp_eq_u32 s45, 0"); e(f"s_cselect_b32 s49, {f32bits(C_SCALE):#x}, 1.0")
    e.nop(8)
    a = 96
    for r in range(16): e(f"v_mul_f32 v{a+r}, s49, v{a+r}")
    for r in range(8): e(f"v_cvt_pk_bf16_f32 v{a+r}, v{a+2*r}, v{a+2*r+1}")
    e(f"buffer_store_dwordx4 {vr(a,4)}, v22, s[24:27], s47 offen")
    e(f"buffer_store_dwordx4 {vr(a+4,4)}, v22, s[24:27], s48 offen")
    e("s_cmp_ge_u32 s2, 9"); e("s_cbranch_scc1 K1_NOZ"); e("s_cmp_ge_u32 s20, 4"); e("s_cbranch_scc1 K1_NOZ")
    e("v_mov_b32 v20, 0"); e("v_mov_b32 v21, 0"); e("v_mov_b32 v22, 0"); e("v_mov_b32 v23, 0")
    e("s_lshl_b32 s37, s2, 12"); e("s_cmp_eq_u32 s2, 8"); e("s_cselect_b32 s37, 0x10000, s37"); e(f"s_add_u32 s37, s37, {WS_ST:#x}")
    e("v_lshlrev_b32 v24, 4, v0")
    e("buffer_store_dwordx4 v[20:23], v24, s[24:27], s37 offen")
    e.lab("K1_NOZ")
    e("s_cmp_lg_u32 s2, 9"); e("s_cbranch_scc1 K1_NOS"); e("s_cmp_lg_u32 s20, 0"); e("s_cbranch_scc1 K1_NOS")
    e("s_load_dwordx2 s[4:5], s[0:1], 32"); e("s_waitcnt lgkmcnt(0)")
    srd(e, 52, 4, 5, 1024)
    e("v_lshlrev_b32 v8, 4, v2")
    e("buffer_load_dwordx4 v[12:15], v8, s[52:55], 0 offen")
    e("s_mov_b32 s56, 0x3f803f80"); e("v_mov_b32 v18, s56"); e("v_mov_b32 v10, 0")
    e("s_waitcnt vmcnt(0)")
    for q in range(4): e(f"v_dot2_f32_bf16 v10, v{12+q}, v18, v10")
    e("s_nop 2")
    for ror in (8, 4, 2, 1):
        e(f"v_add_f32_dpp v10, v10, v10 row_ror:{ror} row_mask:0xf bank_mask:0xf"); e("s_nop 1")
    for q in range(4): e(f"v_readlane_b32 s{56+q}, v10, {16*q}")
    e("s_nop 1")
    e("v_mov_b32 v10, s56"); e("v_add_f32 v10, s57, v10"); e("v_add_f32 v10, s58, v10"); e("v_add_f32 v10, s59, v10")
    e("v_mov_b32 v8, 0"); e(f"s_mov_b32 s37, {WS_ST + 0x8000:#x}")
    e("buffer_store_dword v10, v8, s[24:27], s37 offen")
    e.lab("K1_NOS")
    if DIAG:
        e("s_waitcnt vmcnt(0)"); stamp(e, 4)
        e("s_cmp_ge_u32 s20, 8"); e("s_cbranch_scc1 K1_END")
        stamp_out(e, 5, 1, 24)
    e.lab("K1_END"); e("s_endpgm")
    return e.txt(), descr(name, 128, 64), f"; @launch kernel={name} grid=(256,1,1) block=(768,1,1) lds=140288"

def k2():
    e = E(); name = "k2_kernel"; header(e, name)
    VB = 65536; CB = 131072; XB = 140288
    Q = 8; NM = 16; S = [32, 48]; O = 64; P2 = [80, 112]; KB = [88, 92]; VF = [96, 104]; T = 120
    e("s_cmp_ge_u32 s2, 256"); e("s_cbranch_scc1 K2_END")
    e("s_load_dwordx2 s[4:5], s[0:1], 80")
    e("v_lshrrev_b32 v1, 6, v0"); e("v_and_b32 v2, 63, v0"); e("s_nop 0")
    e("v_readfirstlane_b32 s20, v1")
    e("s_and_b32 s21, s2, 7"); e("s_lshl_b32 s21, s21, 2"); e("s_bfe_u32 s22, s2, 0x20003"); e("s_add_u32 s21, s21, s22")
    e("s_lshr_b32 s22, s2, 5")
    e("s_and_b32 s31, s20, 7"); e("s_lshr_b32 s32, s20, 3")
    e("s_waitcnt lgkmcnt(0)")
    srd(e, 8, 4, 5, 0x1000000); stamp(e, 0)
    e("v_and_b32 v7, 31, v2"); e("v_lshrrev_b32 v6, 5, v2")
    e("v_lshlrev_b32 v3, 5, v7"); e("v_lshl_add_u32 v3, v6, 4, v3")
    e("v_lshlrev_b32 v4, 4, v2")
    e("s_lshl_b32 s23, s21, 16"); e("s_lshl_b32 s24, s22, 13"); e("s_lshl_b32 s25, s31, 10")
    e("s_add_u32 s24, s24, s25"); e("s_add_u32 s24, s24, s23")
    e(f"buffer_load_dwordx4 {vr(Q,4)}, v3, s[8:11], s24 offen")
    e("s_lshl_b32 s33, s32, 15"); e("s_add_u32 s25, s25, s33")
    e(f"s_add_u32 s26, s23, s25"); e(f"s_add_u32 s26, s26, {WS_K:#x}")
    def dma(c):
        e(f"s_add_u32 s27, s26, {c*8192}"); e(f"s_add_u32 s28, s27, {WS_V-WS_K:#x}")
        e(f"s_add_u32 m0, s25, {c*8192}"); e("s_nop 0")
        e("buffer_load_dwordx4 v4, s[8:11], s27 offen lds")
        e(f"s_add_u32 m0, s25, {VB + c*8192}"); e("s_nop 0")
        e("buffer_load_dwordx4 v4, s[8:11], s28 offen lds")
    dma(0); dma(1)
    e(f"v_and_b32 v{T}, 1, v0")
    e(f"v_mov_b32 v{T+4}, 0x3f80"); e(f"v_mov_b32 v{T+5}, 0"); e(f"v_mov_b32 v{T+7}, 0")
    e(f"v_cmp_eq_u32 vcc, 0, v{T}"); e("s_nop 1")
    e(f"v_cndmask_b32 v{T+4}, 0, v{T+4}, vcc"); e(f"v_mov_b32 v{T+6}, v{T+4}")
    e(f"v_lshlrev_b32 v{T+1}, 4, v0"); e(f"v_add_u32 v{T+1}, {CB}, v{T+1}")
    e("s_cmp_ge_u32 s20, 9"); e("s_cbranch_scc1 K2_NOC")
    e(f"ds_write_b128 v{T+1}, {vr(T+4,4)}")
    e.lab("K2_NOC")
    e("v_add_u32 v3, s33, v3")
    e(f"v_bfe_u32 v{T}, v2, 2, 2"); e(f"v_and_b32 v{T+1}, 3, v2"); e(f"v_bfe_u32 v{T+2}, v2, 4, 1")
    e(f"v_lshl_add_u32 v{T+3}, v6, 2, v{T}")
    e(f"v_lshlrev_b32 v{T+3}, 5, v{T+3}"); e(f"v_lshl_add_u32 v{T+3}, v{T+1}, 3, v{T+3}")
    e(f"v_add_u32 v{T+3}, {VB}, v{T+3}"); e(f"v_add_u32 v{T+3}, s33, v{T+3}")
    e(f"v_lshlrev_b32 v{T+4}, 5, v{T}"); e(f"v_lshl_add_u32 v{T+4}, v{T+1}, 3, v{T+4}"); e(f"v_add_u32 v{T+4}, {CB}, v{T+4}")
    e(f"v_cmp_eq_u32 vcc, 0, v{T+2}"); e(f"v_mov_b32 v{T+5}, 0x2000"); e("s_nop 1")
    e(f"v_cndmask_b32 v5, v{T+4}, v{T+3}, vcc")
    e(f"v_cndmask_b32 v1, 0, v{T+5}, vcc")
    for r in range(16): e(f"v_mov_b32 v{O+r}, 0")
    for r in range(8): e(f"v_mov_b32 v{P2[1]+r}, 0"); e(f"v_mov_b32 v{VF[1]+r}, 0")
    e("s_waitcnt vmcnt(2) lgkmcnt(0)"); e("s_barrier"); stamp(e, 1)
    e(f"ds_read_b128 {vr(KB[0],4)}, v3")
    dma(2); dma(3)
    e("s_waitcnt lgkmcnt(0)")
    e(f"v_mfma_f32_32x32x16_bf16 {vr(S[0],16)}, {vr(KB[0],4)}, {vr(Q,4)}, 0")
    e(f"ds_read_b128 {vr(KB[1],4)}, v3 offset:1024")
    for j in range(2):
        for u in range(2):
            e(f"ds_read_b64_tr_b16 {vr(VF[0]+4*j+2*u,2)}, v5 offset:{j*512+u*256}")
    e.nop(16)
    s0 = S[0]
    e(f"v_max3_f32 v{T}, v{s0}, v{s0+1}, v{s0+2}")
    for r in range(3, 15, 2): e(f"v_max3_f32 v{T}, v{T}, v{s0+r}, v{s0+r+1}")
    e(f"v_max_f32 v{T}, v{T}, v{s0+15}")
    e(f"v_mov_b32 v{T+1}, v{T}"); e("s_nop 1")
    e(f"v_permlane32_swap_b32 v{T}, v{T+1}"); e("s_nop 1")
    e(f"v_max_f32 v{T}, v{T}, v{T+1}")
    e(f"v_sub_f32 v{T}, 0, v{T}")
    for r in range(16): e(f"v_mov_b32 v{NM+r}, v{T}")
    e("s_nop 1")
    e(f"v_mfma_f32_32x32x16_bf16 {vr(S[0],16)}, {vr(KB[0],4)}, {vr(Q,4)}, {vr(NM,16)}")
    stamp(e, 2)
    e("s_mov_b32 s30, 0")
    e.lab("K2_LOOP")
    for i in range(8):
        cur = i & 1; nx = cur ^ 1; sc = S[cur]; Pc = P2[cur]; Pp = P2[nx]
        if i == 5:
            e("s_cmp_gt_u32 s30, 2"); e("s_cbranch_scc1 K2_NW")
            e("s_cmp_eq_u32 s30, 0"); e("s_cbranch_scc0 K2_W1")
            e("s_waitcnt vmcnt(4)"); e("s_branch K2_WB")
            e.lab("K2_W1"); e("s_cmp_eq_u32 s30, 1"); e("s_cbranch_scc0 K2_W2")
            e("s_waitcnt vmcnt(2)"); e("s_branch K2_WB")
            e.lab("K2_W2"); e("s_waitcnt vmcnt(0)")
            e("s_load_dwordx2 s[40:41], s[0:1], 16"); e("s_load_dwordx4 s[44:47], s[0:1], 40"); e("s_load_dwordx2 s[48:49], s[0:1], 56")
            e("s_lshl_b32 s42, s2, 4"); e("s_add_u32 s42, s42, s20")
            e("s_waitcnt lgkmcnt(0)")
            e("s_cmp_lt_u32 s42, 1792"); e("s_cselect_b32 s52, s44, s46"); e("s_cselect_b32 s53, s45, s47"); e("s_cselect_b32 s43, 0, 1792")
            e("s_cmp_lt_u32 s42, 3584"); e("s_cselect_b32 s52, s52, s48"); e("s_cselect_b32 s53, s53, s49"); e("s_cselect_b32 s43, s43, 3584")
            e("s_mov_b32 s54, 1835008"); e("s_mov_b32 s55, 0x00020000")
            e("s_sub_u32 s43, s42, s43"); e("s_lshl_b32 s43, s43, 10")
            e("buffer_load_dwordx4 v[12:15], v4, s[52:55], s43 offen")
            e("s_add_u32 s43, s42, 512"); e("s_sub_u32 s50, s42, 1280"); e("s_mov_b32 s51, 524288")
            e("s_cmp_lt_u32 s42, 1280"); e("s_cselect_b32 s56, s48, s40"); e("s_cselect_b32 s57, s49, s41"); e("s_cselect_b32 s58, s54, s51")
            e("s_cselect_b32 s43, s43, s50"); e("s_mov_b32 s59, 0x00020000"); e("s_lshl_b32 s43, s43, 10")
            e("buffer_load_dwordx4 v[12:15], v4, s[56:59], s43 offen")
            e.lab("K2_WB"); e("s_barrier")
            e.lab("K2_NW")
        ex = lambda r: e(f"v_exp_f32 v{sc+r}, v{sc+r}")
        cv = lambda p: e(f"v_cvt_pk_bf16_f32 v{Pc+p}, v{sc+2*p}, v{sc+2*p+1}")
        e("s_waitcnt lgkmcnt(4)")
        e(f"v_mfma_f32_32x32x16_bf16 {vr(S[nx],16)}, {vr(KB[nx],4)}, {vr(Q,4)}, {vr(NM,16)}")
        e(f"ds_read_b128 {vr(KB[cur],4)}, v3 offset:{(i+2)*1024}")
        ex(0); ex(1); ex(2); cv(0); ex(3); ex(4); cv(1)
        e(f"v_mfma_f32_32x32x16_bf16 {vr(O,16)}, {vr(VF[nx],4)}, {vr(Pp,4)}, {vr(O,16)}")
        ex(5); ex(6); cv(2); ex(7); ex(8); cv(3); ex(9); ex(10); cv(4)
        e(f"v_mfma_f32_32x32x16_bf16 {vr(O,16)}, {vr(VF[nx]+4,4)}, {vr(Pp+4,4)}, {vr(O,16)}")
        for j in range(2):
            for u in range(2):
                e(f"ds_read_b64_tr_b16 {vr(VF[nx]+4*j+2*u,2)}, v5 offset:{(i+1)*1024 + j*512+u*256}")
        ex(11); ex(12); cv(5); ex(13); ex(14); cv(6); ex(15); e("s_nop 0"); cv(7)
    e("v_add_u32 v3, 0x2000, v3"); e("v_add_u32 v5, v5, v1")
    e("s_add_u32 s30, s30, 1"); e("s_cmp_lt_u32 s30, 4"); e("s_cbranch_scc1 K2_LOOP")
    e("s_waitcnt lgkmcnt(0)")
    e(f"v_mfma_f32_32x32x16_bf16 {vr(O,16)}, {vr(VF[1],4)}, {vr(P2[1],4)}, {vr(O,16)}")
    e(f"v_mfma_f32_32x32x16_bf16 {vr(O,16)}, {vr(VF[1]+4,4)}, {vr(P2[1]+4,4)}, {vr(O,16)}")
    e.nop(16)
    stamp(e, 3)
    e(f"v_mov_b32 v{T}, 0x5d800000")
    e(f"v_cmp_nlt_f32 vcc, v{O+8}, v{T}"); e("s_nop 4")
    e("s_cbranch_vccnz K2_SLOW")
    e.lab("K2_OUT")
    e("s_mul_i32 s34, s31, 2560"); e(f"s_add_u32 s34, s34, {XB}")
    e(f"v_lshl_add_u32 v{T+1}, v2, 2, s34")
    e("s_cmp_eq_u32 s32, 0"); e("s_cbranch_scc1 K2_LOW")
    for r in range(9): e(f"ds_write_b32 v{T+1}, v{O+r} offset:{256*r}")
    e(f"ds_write_b32 v{T+1}, v{NM} offset:{256*9}")
    e("s_waitcnt lgkmcnt(0)"); e("s_barrier")
    if DIAG: stamp_out(e, 4, 2, 8, "s20")
    e("s_endpgm")
    e.lab("K2_LOW")
    e("s_barrier")
    for r in range(10): e(f"ds_read_b32 v{S[0]+r}, v{T+1} offset:{256*r}")
    e("s_waitcnt lgkmcnt(0)")
    e(f"v_min_f32 v{T}, v{NM}, v{S[0]+9}")
    e(f"v_sub_f32 v{T+2}, v{T}, v{NM}"); e(f"v_sub_f32 v{T+3}, v{T}, v{S[0]+9}")
    e(f"v_exp_f32 v{T+2}, v{T+2}"); e(f"v_exp_f32 v{T+3}, v{T+3}"); e("s_nop 0")
    for r in range(9):
        e(f"v_mul_f32 v{O+r}, v{O+r}, v{T+2}"); e(f"v_fmac_f32 v{O+r}, v{S[0]+r}, v{T+3}")
    e(f"v_rcp_f32 v{T}, v{O+8}"); e("s_nop 0")
    for r in range(8): e(f"v_mul_f32 v{O+r}, v{O+r}, v{T}")
    for r in range(4): e(f"v_cvt_pk_bf16_f32 v{P2[0]+r}, v{O+2*r}, v{O+2*r+1}")
    e("s_lshl_b32 s24, s22, 8"); e("s_lshl_b32 s25, s31, 5"); e("s_add_u32 s24, s24, s25")
    e(f"v_add_u32 v{T+1}, s24, v7"); e(f"v_lshlrev_b32 v{T+1}, 10, v{T+1}"); e(f"v_lshl_add_u32 v{T+1}, v6, 4, v{T+1}")
    e("s_lshl_b32 s25, s21, 5"); e(f"s_add_u32 s25, s25, {WS_O:#x}")
    e(f"buffer_store_dwordx4 {vr(P2[0],4)}, v{T+1}, s[8:11], s25 offen")
    if DIAG: stamp_out(e, 4, 2, 8, "s20")
    e("s_endpgm")
    e.lab("K2_SLOW")
    P = P2[0]
    e("v_subrev_u32 v3, 0x8000, v3")
    e(f"v_lshlrev_b32 v{T+5}, 2, v1"); e(f"v_sub_u32 v5, v5, v{T+5}")
    e(f"v_lshrrev_b32 v1, 3, v1")
    e(f"v_sub_f32 v{NM}, 0, v{NM}")
    for r in range(16): e(f"v_mov_b32 v{O+r}, 0")
    e("s_mov_b32 s30, 0")
    e.lab("K2_SL")
    e(f"ds_read_b128 {vr(KB[0],4)}, v3")
    for j in range(2):
        for u in range(2):
            e(f"ds_read_b64_tr_b16 {vr(VF[0]+4*j+2*u,2)}, v5 offset:{j*512+u*256}")
    e("s_waitcnt lgkmcnt(0)")
    e(f"v_mfma_f32_32x32x16_bf16 {vr(S[0],16)}, {vr(KB[0],4)}, {vr(Q,4)}, 0")
    e.nop(16)
    e(f"v_max3_f32 v{T}, v{s0}, v{s0+1}, v{s0+2}")
    for r in range(3, 15, 2): e(f"v_max3_f32 v{T}, v{T}, v{s0+r}, v{s0+r+1}")
    e(f"v_max3_f32 v{T}, v{T}, v{s0+15}, v{NM}")
    e(f"v_mov_b32 v{T+1}, v{T}"); e("s_nop 1")
    e(f"v_permlane32_swap_b32 v{T}, v{T+1}"); e("s_nop 1")
    e(f"v_max_f32 v{T}, v{T}, v{T+1}")
    e(f"v_sub_f32 v{T+1}, v{NM}, v{T}"); e(f"v_exp_f32 v{T+1}, v{T+1}"); e(f"v_mov_b32 v{NM}, v{T}")
    for r in range(16): e(f"v_mul_f32 v{O+r}, v{O+r}, v{T+1}")
    for r in range(16): e(f"v_sub_f32 v{s0+r}, v{s0+r}, v{T}")
    for r in range(16): e(f"v_exp_f32 v{s0+r}, v{s0+r}")
    e("s_nop 0")
    for p in range(8): e(f"v_cvt_pk_bf16_f32 v{P+p}, v{s0+2*p}, v{s0+2*p+1}")
    e("s_nop 1")
    e(f"v_mfma_f32_32x32x16_bf16 {vr(O,16)}, {vr(VF[0],4)}, {vr(P,4)}, {vr(O,16)}")
    e(f"v_mfma_f32_32x32x16_bf16 {vr(O,16)}, {vr(VF[0]+4,4)}, {vr(P+4,4)}, {vr(O,16)}")
    e("v_add_u32 v3, 0x400, v3"); e("v_add_u32 v5, v5, v1")
    e.nop(16)
    e("s_add_u32 s30, s30, 1"); e("s_cmp_lt_u32 s30, 32"); e("s_cbranch_scc1 K2_SL")
    e(f"v_sub_f32 v{NM}, 0, v{NM}")
    e("s_branch K2_OUT")
    e.lab("K2_END"); e("s_endpgm")
    return e.txt(), descr(name, 128, 64), f"; @launch kernel={name} grid=(256,1,1) block=(1024,1,1) lds=160768"

def k3():
    e = E(); name = "k3_kernel"; header(e, name)
    OB = 65536; AP = 1040
    e("s_cmp_ge_u32 s2, 256"); e("s_cbranch_scc1 K3_END")
    e("s_load_dwordx2 s[4:5], s[0:1], 0"); e("s_load_dwordx2 s[6:7], s[0:1], 16"); e("s_load_dwordx2 s[8:9], s[0:1], 80"); e("s_load_dwordx2 s[10:11], s[0:1], 32")
    e("v_lshrrev_b32 v1, 6, v0"); e("v_and_b32 v2, 63, v0"); e("s_nop 0")
    e("v_readfirstlane_b32 s20, v1")
    e("s_and_b32 s21, s2, 7"); e("s_lshl_b32 s21, s21, 2"); e("s_bfe_u32 s22, s2, 0x20003"); e("s_add_u32 s21, s21, s22"); e("s_lshr_b32 s22, s2, 5")
    e("s_and_b32 s39, s20, 1"); e("s_lshr_b32 s40, s20, 1")
    e("s_waitcnt lgkmcnt(0)")
    srd(e, 12, 4, 5, 2097152); srd(e, 16, 6, 7, 524288); srd(e, 24, 8, 9, 0x1000000); srd(e, 44, 10, 11, 1024); stamp(e, 0)
    e("v_lshrrev_b32 v4, 3, v2"); e("v_lshlrev_b32 v4, 10, v4")
    e("v_bfe_u32 v5, v2, 2, 1"); e("v_bfe_u32 v6, v2, 4, 1"); e("v_xor_b32 v5, v5, v6")
    e("v_lshl_add_u32 v4, v5, 6, v4"); e("v_and_b32 v5, 3, v2"); e("v_lshl_add_u32 v4, v5, 4, v4")
    e("s_lshl_b32 s31, s22, 7"); e("v_add_u32 v4, s31, v4")
    e("v_lshlrev_b32 v3, 4, v2")
    e("s_lshl_b32 s32, s20, 17")
    e("s_lshl_b32 s33, s20, 14")
    e("s_lshl_b32 s35, s21, 16"); e("s_lshl_b32 s36, s20, 14"); e("s_add_u32 s35, s35, s36"); e(f"s_add_u32 s35, s35, {WS_O:#x}")
    e(f"s_mul_i32 s36, s20, {16*AP}"); e(f"s_add_u32 s36, s36, {OB}")
    for i in range(16):
        e(f"s_add_u32 s34, s35, {i*1024}"); e(f"s_add_u32 m0, s36, {i*AP}"); e("s_nop 0")
        e("buffer_load_dwordx4 v3, s[24:27], s34 offen lds")
        e(f"s_add_u32 s34, s32, {i*8192}"); e(f"s_add_u32 m0, s33, {i*1024}"); e("s_nop 0")
        e("buffer_load_dwordx4 v4, s[16:19], s34 offen lds")
    e("v_and_b32 v19, 31, v2"); e("v_lshrrev_b32 v20, 5, v2")
    e("s_lshl_b32 s31, s21, 6"); e("s_lshl_b32 s35, s39, 5"); e("s_add_u32 s31, s31, s35")
    e("v_add_u32 v21, s31, v19")
    e("v_lshlrev_b32 v22, 10, v21")
    e("s_lshl_b32 s37, s22, 7"); e("s_lshl_b32 s38, s40, 6"); e("s_add_u32 s37, s37, s38")
    e("v_lshlrev_b32 v23, 3, v20"); e("v_add_u32 v23, s37, v23")
    e("v_add_u32 v24, v22, v23")
    for g in range(4):
        e(f"buffer_load_dwordx2 {vr(32+2*g,2)}, v24, s[12:15], 0 offen offset:{16*g}")
    for g in range(4):
        e(f"buffer_load_dwordx2 {vr(40+2*g,2)}, v23, s[44:47], 0 offen offset:{16*g}")
    e("v_add_u32 v26, s35, v19"); e(f"v_mul_u32_u24 v26, {AP}, v26"); e("v_lshl_add_u32 v26, v20, 4, v26"); e(f"v_add_u32 v26, {OB}, v26")
    e("v_bfe_u32 v5, v2, 2, 2"); e("v_and_b32 v6, 3, v2"); e("v_bfe_u32 v7, v2, 4, 1")
    e("v_lshl_add_u32 v25, v20, 3, v5"); e("v_lshlrev_b32 v25, 7, v25")
    e("v_lshl_add_u32 v25, v7, 5, v25"); e("v_lshl_add_u32 v25, v6, 3, v25")
    e("v_lshrrev_b32 v5, 1, v5"); e("v_xor_b32 v5, s40, v5"); e("v_lshl_add_u32 v25, v5, 6, v25")
    for r in range(16): e(f"v_mov_b32 v{48+r}, 0")
    e("s_waitcnt vmcnt(8)"); e("s_barrier"); stamp(e, 1)
    NB = 4
    WF = [64 + 8*i for i in range(NB)]; XF = [68 + 8*i for i in range(NB)]
    def rd(s):
        sel = s % NB
        e(f"ds_read_b128 {vr(XF[sel],4)}, v26 offset:{32*s}")
        for u in range(2):
            e(f"ds_read_b64_tr_b16 {vr(WF[sel]+2*u,2)}, v25 offset:{(16*s+4*u)*128}")
    for s in range(NB-1): rd(s)
    for s in range(32):
        sel = s % NB
        if s + NB - 1 < 32: rd(s + NB - 1)
        rem = min(31 - s, NB - 1)
        e(f"s_waitcnt lgkmcnt({3*rem})")
        e(f"v_mfma_f32_32x32x16_bf16 {vr(48,16)}, {vr(WF[sel],4)}, {vr(XF[sel],4)}, {vr(48,16)}")
    stamp(e, 2)
    e("s_mov_b32 s41, 0x3f803f80"); e("v_mov_b32 v8, s41")
    e("v_mov_b32 v9, 0"); e("v_mov_b32 v10, 0"); e("v_mov_b32 v11, 0")
    e("s_waitcnt vmcnt(0)")
    e.nop(12)
    for p in range(8):
        a = 48 + 2*p; x = 32 + p
        e(f"v_cvt_pk_bf16_f32 v12, v{a}, v{a+1}")
        e("v_lshlrev_b32 v13, 16, v12"); e("v_and_b32 v14, 0xffff0000, v12")
        e(f"v_lshlrev_b32 v15, 16, v{x}"); e(f"v_and_b32 v16, 0xffff0000, v{x}")
        e("v_add_f32 v13, v13, v15"); e("v_add_f32 v14, v14, v16")
        e(f"v_cvt_pk_bf16_f32 v{x}, v13, v14")
        e(f"v_dot2_f32_bf16 v9, v{x}, v8, v9")
        e(f"v_dot2_f32_bf16 v10, v{x}, v{x}, v10")
        e(f"v_dot2_f32_bf16 v11, v{x}, v{40+p}, v11")
    e(f"s_mov_b32 s36, {WS_H:#x}")
    for g in range(4):
        e(f"buffer_store_dwordx2 {vr(32+2*g,2)}, v24, s[24:27], s36 offen offset:{16*g}")
    e("s_nop 2")
    for q in range(3): e(f"v_mov_b32 v{12+q}, v{9+q}")
    e("s_nop 1")
    for q in range(3): e(f"v_permlane32_swap_b32 v{9+q}, v{12+q}")
    e("s_nop 1")
    for q in range(3): e(f"v_add_f32 v{9+q}, v{9+q}, v{12+q}")
    e("v_lshlrev_b32 v15, 4, v21")
    e(f"s_mov_b32 s36, {WS_ST:#x}")
    e("s_mov_b64 exec, 0xffffffff")
    for q in range(3):
        e(f"buffer_atomic_add_f32 v{9+q}, v15, s[24:27], s36 offen offset:{4*q}")
    if DIAG:
        e("s_waitcnt vmcnt(0)"); stamp(e, 3); stamp_out(e, 4, 3, 24)
    e.lab("K3_END"); e("s_endpgm")
    return e.txt(), descr(name, 96, 64), f"; @launch kernel={name} grid=(256,1,1) block=(256,1,1) lds=132096"

def ln2_elem(e, x, mb, rinv, t):
    e(f"v_lshlrev_b32 v{t}, 16, v{x}"); e(f"v_and_b32 v{t+1}, 0xffff0000, v{x}")
    e(f"v_sub_f32 v{t+2}, v{t}, v{mb}"); e(f"v_sub_f32 v{t+3}, v{t+1}, v{mb}")
    e(f"v_cvt_pk_bf16_f32 v{t+2}, v{t+2}, v{t+3}")
    e(f"v_and_b32 v{t+3}, 0xffff0000, v{t+2}"); e(f"v_lshlrev_b32 v{t+2}, 16, v{t+2}")
    e(f"v_mul_f32 v{t+2}, v{t+2}, v{rinv}"); e(f"v_mul_f32 v{t+3}, v{t+3}, v{rinv}")
    e(f"v_cvt_pk_bf16_f32 v{t+2}, v{t+2}, v{t+3}")

WS_Y = 0xA10000
def k4():
    e = E(); name = "k4_kernel"; header(e, name)
    NF = 56; NE = 32
    L_XS = 1024; L_H = 5120; L_G = 8192; L_S2 = 40960; L_ACT = 45056; L_D = 49152; L_FLAG = 65536
    e(f"s_cmp_ge_u32 s2, {NF+NE}"); e("s_cbranch_scc1 K4_END")
    e("s_load_dwordx2 s[4:5], s[0:1], 80"); e("s_load_dwordx4 s[8:11], s[0:1], 64")
    e("s_load_dwordx8 s[44:51], s[0:1], 32")
    e("v_lshrrev_b32 v1, 6, v0"); e("v_and_b32 v2, 63, v0"); e("s_nop 0")
    e("v_readfirstlane_b32 s20, v1")
    e("s_waitcnt lgkmcnt(0)")
    srd(e, 12, 4, 5, 0x1000000); srd(e, 16, 8, 9, 2097152); srd(e, 24, 44, 45, 1024)
    srd(e, 28, 46, 47, 1835008); srd(e, 32, 48, 49, 1835008); srd(e, 36, 50, 51, 1835008); srd(e, 40, 10, 11, 256)
    stamp(e, 0)
    e("v_lshlrev_b32 v7, 4, v0")
    e(f"s_mov_b32 s52, {WS_ST:#x}"); e(f"s_mov_b32 s53, {WS_ST + 16384:#x}"); e(f"s_mov_b32 s54, {WS_H:#x}")
    e("buffer_load_dwordx4 v[64:67], v7, s[12:15], s52 offen")
    e("buffer_load_dwordx4 v[68:71], v7, s[12:15], s53 offen")
    e("v_mov_b32 v8, 0"); e(f"s_mov_b32 s55, {WS_ST + 0x8000:#x}")
    e("buffer_load_dword v10, v8, s[12:15], s55 offen")
    e(f"s_cmp_lt_u32 s2, {NF}"); e("s_cbranch_scc1 K4_LF")
    e(f"s_sub_u32 s21, s2, {NF}"); e("s_lshl_b32 s21, s21, 6"); e("s_lshl_b32 s22, s20, 2"); e("s_add_u32 s21, s21, s22")
    e("v_lshrrev_b32 v4, 4, v2"); e("v_and_b32 v5, 15, v2")
    e("v_add_u32 v6, s21, v4")
    e("v_lshlrev_b32 v3, 10, v6"); e("v_lshl_add_u32 v3, v5, 4, v3")
    e("v_lshlrev_b32 v9, 4, v6")
    e("buffer_load_dwordx4 v[72:75], v9, s[12:15], s52 offen")
    for i in range(4):
        e(f"buffer_load_dwordx4 {vr(80+4*i,4)}, v3, s[12:15], s54 offen offset:{256*i}")
    e("s_waitcnt vmcnt(5)"); e("s_branch K4_TOP")
    e.lab("K4_LF")
    e("v_lshrrev_b32 v4, 4, v0"); e("v_and_b32 v5, 15, v0")
    e("v_mul_u32_u24 v3, 3584, v4"); e("v_lshl_add_u32 v3, v5, 2, v3")
    e("s_lshl_b32 s21, s2, 6"); e("v_add_u32 v3, s21, v3")
    for i in range(8):
        e(f"s_mov_b32 s55, {i*64*3584}")
        e(f"buffer_load_dword v{80+i}, v3, s[28:31], s55 offen")
        e(f"buffer_load_dword v{88+i}, v3, s[32:35], s55 offen")
    e("v_lshrrev_b32 v6, 8, v0"); e("v_and_b32 v9, 255, v0")
    e("v_lshlrev_b32 v11, 13, v6"); e("v_lshl_add_u32 v11, v9, 2, v11")
    e("s_lshl_b32 s21, s2, 15"); e("s_add_u32 s22, s21, 4096")
    for i in range(8):
        e(f"buffer_load_dword v{96+i}, v11, s[36:39], {'s21' if i < 4 else 's22'} offen offset:{(i&3)*1024}")
    e("s_waitcnt vmcnt(24)")
    e.lab("K4_TOP"); stamp(e, 1)
    e("s_mov_b32 s56, 0xfffff800")
    for i in range(2):
        b = 64 + 4*i; t = 18 + 8*i
        e(f"v_mul_f32 v{t}, 0x3b000000, v{b}")
        e(f"v_mul_f32 v{t+1}, 0x3b000000, v{b+1}")
        e(f"v_fma_f32 v{t+1}, -v{t}, v{t}, v{t+1}")
        e(f"v_max_f32 v{t+1}, 0, v{t+1}")
        e(f"v_add_f32 v{t+1}, 0x3727c5ac, v{t+1}")
        e(f"v_rsq_f32 v{t+1}, v{t+1}")
        e(f"v_fma_f32 v{t+4}, -v{t}, v10, v{b+2}")
        e(f"v_sub_u32 v{t+5}, {2047 - 1024*i}, v0")
        e(f"v_mul_f32 v{t+4}, v{t+4}, v{t+1}")
        e(f"v_ashrrev_i32 v{t+2}, 31, v{t+4}")
        e(f"v_or_b32 v{t+2}, 0x80000000, v{t+2}")
        e(f"v_xor_b32 v{t+4}, v{t+4}, v{t+2}")
        e(f"v_and_or_b32 v{t+4}, v{t+4}, s56, v{t+5}")
    e("v_max_u32 v16, v22, v30"); e("v_min_u32 v17, v22, v30")
    def red16():
        for ror in (8, 4, 2, 1):
            e("s_nop 1")
            e(f"v_mov_b32_dpp v18, v16 row_ror:{ror} row_mask:0xf bank_mask:0xf")
            e(f"v_mov_b32_dpp v19, v17 row_ror:{ror} row_mask:0xf bank_mask:0xf")
            e("v_min_u32 v20, v16, v18"); e("v_max_u32 v16, v16, v18"); e("v_max3_u32 v17, v17, v19, v20")
    red16()
    e("v_lshrrev_b32 v18, 4, v0"); e("v_lshlrev_b32 v18, 3, v18")
    e("ds_write_b64 v18, v[16:17]")
    e("s_waitcnt lgkmcnt(0)"); e("s_barrier")
    e("v_lshlrev_b32 v18, 3, v2")
    e("ds_read_b64 v[16:17], v18")
    e("s_waitcnt lgkmcnt(0)")
    red16()
    e("s_nop 0")
    for q in range(4):
        e(f"v_readlane_b32 s{56+2*q}, v16, {16*q}"); e(f"v_readlane_b32 s{57+2*q}, v17, {16*q}")
    def smerge(d, a, b):
        e(f"s_min_u32 s64, s{a}, s{b}"); e(f"s_max_u32 s65, s{a+1}, s{b+1}"); e(f"s_max_u32 s{d}, s{a}, s{b}"); e(f"s_max_u32 s{d+1}, s64, s65")
    smerge(56, 56, 58); smerge(60, 60, 62); smerge(56, 56, 60)
    e("s_and_b32 s56, s56, 0x7ff"); e("s_and_b32 s57, s57, 0x7ff")
    e("s_sub_u32 s56, 2047, s56"); e("s_sub_u32 s57, 2047, s57")
    stamp(e, 2)
    e(f"s_cmp_lt_u32 s2, {NF}"); e("s_cbranch_scc1 K4_FFN")
    e("s_waitcnt vmcnt(0)")
    ln_scalars(e, 72, 73, 12, (14, 15), "0x3b000000")
    e("v_rcp_f32 v15, v15"); e("s_nop 0")
    for j in range(16):
        x = 80 + j
        ln2_elem(e, x, 14, 15, 32)
        e("v_and_b32 v35, 0xffff0000, v34"); e("v_lshlrev_b32 v34, 16, v34")
        e("v_add_f32 v34, v32, v34"); e("v_add_f32 v35, v33, v35")
        e(f"v_cvt_pk_bf16_f32 v{x}, v34, v35")
    e("v_cmp_ne_u32 vcc, s56, v6"); e("v_cmp_ne_u32 s[60:61], s57, v6"); e("s_nop 1")
    e("s_and_b64 s[60:61], s[60:61], vcc"); e("s_and_b64 exec, exec, s[60:61]")
    e("s_cbranch_execz K4_END")
    for i in range(4):
        e(f"buffer_store_dwordx4 {vr(80+4*i,4)}, v3, s[16:19], 0 offen offset:{256*i}")
    e("s_endpgm")
    e.lab("K4_FFN")
    e("s_cmp_ge_u32 s20, 8"); e("s_cbranch_scc1 K4_NOXS")
    e("s_cmp_lt_u32 s20, 4"); e("s_cselect_b32 s58, s56, s57")
    e("s_lshl_b32 s59, s58, 4"); e("s_add_u32 s59, s59, s52")
    e("s_lshl_b32 s60, s58, 10"); e("s_add_u32 s60, s60, s54")
    e("v_and_b32 v19, 255, v0"); e("v_lshlrev_b32 v20, 2, v19"); e("v_mov_b32 v21, 0")
    e("buffer_load_dwordx4 v[24:27], v21, s[12:15], s59 offen")
    e("buffer_load_dword v28, v20, s[12:15], s60 offen")
    e("buffer_load_dword v30, v20, s[24:27], 0 offen")
    e("v_lshrrev_b32 v41, 8, v0")
    e("s_waitcnt vmcnt(0)")
    ln_scalars(e, 24, 25, 32, (34, 35), "0x3b000000")
    e("v_rcp_f32 v35, v35"); e("s_nop 0")
    ln2_elem(e, 28, 34, 35, 36)
    e("v_mov_b32 v40, 0"); e("v_dot2_f32_bf16 v40, v38, v30, v40")
    e("v_lshlrev_b32 v42, 2, v41"); e("v_lshl_add_u32 v42, v19, 4, v42")
    e("v_lshlrev_b32 v43, 16, v38"); e("v_and_b32 v44, 0xffff0000, v38")
    e(f"ds_write_b32 v42, v43 offset:{L_XS}"); e(f"ds_write_b32 v42, v44 offset:{L_XS+8}")
    e("v_lshlrev_b32 v45, 2, v0")
    e(f"ds_write_b32 v45, v28 offset:{L_H}")
    for ror in (8, 4, 2, 1):
        e("s_nop 1"); e(f"v_add_f32_dpp v40, v40, v40 row_ror:{ror} row_mask:0xf bank_mask:0xf")
    e("v_lshrrev_b32 v45, 4, v0"); e("v_lshlrev_b32 v45, 2, v45")
    e("ds_write_b32 v45, v40 offset:512")
    e.lab("K4_NOXS")
    e("s_waitcnt vmcnt(0) lgkmcnt(0)"); e("s_barrier"); stamp(e, 3)
    for r in range(104, 112): e(f"v_mov_b32 v{r}, 0")
    e("v_lshlrev_b32 v41, 3, v4")
    for i in range(8):
        e(f"ds_read_b64 {vr(48+2*i,2)}, v41 offset:{L_XS + i*512}")
    for i in range(8):
        e(f"s_waitcnt lgkmcnt({7-i})")
        for m in range(2):
            w = 80 + 8*m + i
            e(f"v_lshlrev_b32 v46, 16, v{w}"); e(f"v_and_b32 v47, 0xffff0000, v{w}")
            for tk in range(2):
                a = 104 + m*4 + tk*2
                e(f"v_fmac_f32 v{a}, v46, v{48+2*i+tk}"); e(f"v_fmac_f32 v{a+1}, v47, v{48+2*i+tk}")
    e("v_lshlrev_b32 v41, 5, v0")
    e(f"ds_write_b128 v41, v[104:107] offset:{L_G}"); e(f"ds_write_b128 v41, v[108:111] offset:{L_G+16}")
    e("s_waitcnt lgkmcnt(0)"); e("s_barrier")
    e("v_and_b32 v41, 127, v0"); e("v_lshrrev_b32 v42, 7, v0")
    e("v_lshlrev_b32 v43, 12, v42"); e("v_lshl_add_u32 v43, v41, 2, v43")
    for g in range(8): e(f"ds_read_b32 v{48+g}, v43 offset:{L_G + 512*g}")
    e("s_waitcnt lgkmcnt(0)")
    for g in range(1, 8): e(f"v_add_f32 v48, v48, v{48+g}")
    e("v_lshlrev_b32 v43, 2, v0")
    e(f"ds_write_b32 v43, v48 offset:{L_S2}")
    e("s_waitcnt lgkmcnt(0)"); e("s_barrier")
    e("s_cmp_lg_u32 s20, 0"); e("s_cbranch_scc1 K4_NS3")
    e("v_lshrrev_b32 v41, 5, v2"); e("v_and_b32 v42, 31, v2"); e("v_lshrrev_b32 v43, 1, v42"); e("v_and_b32 v44, 1, v42")
    e("v_lshlrev_b32 v45, 5, v43"); e("v_lshl_add_u32 v45, v41, 3, v45"); e("v_lshl_add_u32 v45, v44, 2, v45")
    for g in range(8):
        e(f"ds_read_b32 v{48+g}, v45 offset:{L_S2 + 512*g}")
        e(f"ds_read_b32 v{56+g}, v45 offset:{L_S2 + 512*g + 16}")
    e("s_waitcnt lgkmcnt(0)")
    for g in range(1, 8):
        e(f"v_add_f32 v48, v48, v{48+g}"); e(f"v_add_f32 v56, v56, v{56+g}")
    rnd_bf16(e, 48, 48); rnd_bf16(e, 56, 56)
    e("v_mul_f32 v49, 0xbfb8aa3b, v48"); e("v_exp_f32 v49, v49"); e("s_nop 0")
    e("v_add_f32 v49, 1.0, v49"); e("v_rcp_f32 v49, v49"); e("s_nop 0")
    e("v_mul_f32 v49, v48, v49"); rnd_bf16(e, 49, 49)
    e("v_mul_f32 v49, v49, v56"); rnd_bf16(e, 49, 49)
    e("v_lshlrev_b32 v50, 3, v42"); e("v_lshl_add_u32 v50, v41, 2, v50")
    e(f"ds_write_b32 v50, v49 offset:{L_ACT}")
    e("s_waitcnt lgkmcnt(0)")
    e.lab("K4_NS3")
    e("s_barrier"); stamp(e, 4)
    e("v_lshlrev_b32 v41, 6, v6")
    for i in range(8): e(f"ds_read_b64 {vr(48+2*i,2)}, v41 offset:{L_ACT + 8*i}")
    for r in range(104, 108): e(f"v_mov_b32 v{r}, 0")
    for i in range(8):
        e(f"s_waitcnt lgkmcnt({7-i})")
        w = 96 + i
        e(f"v_lshlrev_b32 v46, 16, v{w}"); e(f"v_and_b32 v47, 0xffff0000, v{w}")
        for tk in range(2):
            a = 104 + tk*2
            e(f"v_fmac_f32 v{a}, v46, v{48+2*i+tk}"); e(f"v_fmac_f32 v{a+1}, v47, v{48+2*i+tk}")
    e("v_lshlrev_b32 v41, 4, v0")
    e(f"ds_write_b128 v41, v[104:107] offset:{L_D}")
    e("s_waitcnt lgkmcnt(0)"); e("s_barrier")
    e("v_lshrrev_b32 v41, 9, v0"); e("v_and_b32 v42, 511, v0"); e("v_lshrrev_b32 v43, 1, v42"); e("v_and_b32 v44, 1, v42")
    e("v_lshlrev_b32 v45, 4, v43"); e("v_lshl_add_u32 v45, v41, 3, v45"); e("v_lshl_add_u32 v45, v44, 2, v45")
    for g in range(4): e(f"ds_read_b32 v{48+g}, v45 offset:{L_D + 4096*g}")
    e("s_waitcnt lgkmcnt(0)")
    e("v_add_f32 v48, v48, v49"); e("v_add_f32 v50, v50, v51"); e("v_add_f32 v48, v48, v50")
    e("v_lshlrev_b32 v46, 2, v0"); e(f"s_mov_b32 s58, {WS_Y:#x}")
    e("buffer_atomic_add_f32 v48, v46, s[12:15], s58 offen")
    e("s_waitcnt vmcnt(0)"); e("s_barrier"); stamp(e, 5)
    e("s_cmp_lg_u32 s20, 0"); e("s_cbranch_scc1 K4_NCNT")
    e("v_mov_b32 v48, 1"); e("v_mov_b32 v49, 0"); e(f"v_mov_b32 v50, {L_FLAG}")
    e("s_mov_b64 exec, 1")
    e("buffer_atomic_add v48, v49, s[40:43], 0 offen sc0")
    e("s_waitcnt vmcnt(0)")
    e("ds_write_b32 v50, v48")
    e("s_mov_b64 exec, -1")
    e("s_waitcnt lgkmcnt(0)")
    e.lab("K4_NCNT")
    e("s_barrier")
    e(f"v_mov_b32 v50, {L_FLAG}"); e("ds_read_b32 v48, v50"); e("s_waitcnt lgkmcnt(0)")
    e("v_readfirstlane_b32 s59, v48")
    if DIAG:
        stamp(e, 6); e("s_cmp_lg_u32 s20, 0"); e("s_cbranch_scc1 K4_NODIAG"); stamp_out(e, 7, 4, 12); e.lab("K4_NODIAG")
    e(f"s_cmp_lg_u32 s59, {NF-1}"); e("s_cbranch_scc1 K4_END")
    e("v_mov_b32 v48, 0")
    e("buffer_atomic_add_f32 v48, v46, s[12:15], s58 offen sc0")
    e("v_lshlrev_b32 v47, 6, v41")
    for q in range(4): e(f"ds_read_b128 {vr(52+4*q,4)}, v47 offset:{512 + 16*q}")
    e("v_lshlrev_b32 v47, 3, v42"); e("v_lshl_add_u32 v47, v41, 2, v47")
    e(f"ds_read_b32 v49, v47 offset:{L_XS}")
    e("v_lshlrev_b32 v47, 1, v0")
    e(f"ds_read_u16 v50, v47 offset:{L_H}")
    e("s_waitcnt lgkmcnt(0)")
    for q in range(1, 16): e(f"v_add_f32 v52, v52, v{52+q}")
    rnd_bf16(e, 52, 52)
    e("v_mul_f32 v52, 0xbfb8aa3b, v52"); e("v_exp_f32 v52, v52"); e("s_nop 0")
    e("v_add_f32 v52, 1.0, v52"); e("v_rcp_f32 v52, v52"); e("s_nop 0")
    rnd_bf16(e, 52, 52)
    e("v_lshlrev_b32 v50, 16, v50")
    e("s_cmp_lt_u32 s20, 8"); e("s_cselect_b32 s60, s56, s57"); e("s_lshl_b32 s60, s60, 10")
    e("v_lshlrev_b32 v51, 1, v42")
    e("s_waitcnt vmcnt(0)")
    rnd_bf16(e, 48, 48)
    e("v_mul_f32 v48, v48, v52"); rnd_bf16(e, 48, 48)
    e("v_add_f32 v48, v49, v48"); rnd_bf16(e, 48, 48)
    e("v_add_f32 v48, v50, v48"); e("v_cvt_pk_bf16_f32 v48, v48, v48")
    e("buffer_store_short v48, v51, s[16:19], s60 offen")
    e.lab("K4_END"); e("s_endpgm")
    return e.txt(), descr(name, 112, 96), f"; @launch kernel={name} grid=({NF+NE},1,1) block=(1024,1,1) lds=66048"

def main(out):
    ks = [k1(), k2(), k3(), k4()]
    s = "; generated 5-kernel pipeline: LN1+QKV | attention | out-proj+stats | LN2 out + top2 + gate/up | down + final rows\n"
    for k in ks: s += k[2] + "\n"
    s += '.amdgcn_target "amdgcn-amd-amdhsa--gfx950"\n.text\n'
    for k in ks: s += k[0]
    s += '.section .rodata,"a"\n'
    for k in ks: s += k[1]
    open(out, "w").write(s)

if __name__ == "__main__":
    if len(sys.argv) > 2 and sys.argv[2] == "diag": DIAG = True
    for q in range(1536): assert (q * 2731) >> 16 == q // 24
    main(sys.argv[1] if len(sys.argv) > 1 else "sequential_preLN__softmax_full_mha__moe_arch_mod__prompt.s")
```

```python
import sys, math

WS_Q = 0x000000; WS_K = 0x200000; WS_V = 0x400000; WS_O = 0x600000; WS_H = 0x800000
WS_ST = 0xA00000; WS_ACT = 0xA10000; WS_SEL = 0xA20000
C_SCALE = 0.25 * math.log2(math.e)
import struct
def f32bits(x): return struct.unpack("<I", struct.pack("<f", x))[0]

class E:
    def __init__(self): self.l = []
    def __call__(self, s): self.l.append("    " + s)
    def lab(self, s): self.l.append(s + ":")
    def c(self, s): self.l.append("    ; " + s)
    def nop(self, n):
        while n > 0:
            k = min(n, 16); self(f"s_nop {k-1}"); n -= k
    def txt(self): return "\n".join(self.l) + "\n"

def vr(a, n): return f"v[{a}:{a+n-1}]"
def sr(a, n): return f"s[{a}:{a+n-1}]"

def srd(e, d, lo, hi, size):
    e(f"s_mov_b32 s{d}, s{lo}"); e(f"s_mov_b32 s{d+1}, s{hi}"); e(f"s_mov_b32 s{d+2}, {size:#x}"); e(f"s_mov_b32 s{d+3}, 0x00020000")

def header(e, name):
    e.l.append(f".globl {name}"); e.l.append(".p2align 8"); e.l.append(f".type {name},@function"); e.lab(name)

def descr(name, vg, sg=64):
    if DIAG: vg = max(vg, 128); sg = 102
    vg4 = (vg + 3) // 4 * 4
    return f""".p2align 6
.amdhsa_kernel {name}
  .amdhsa_next_free_vgpr {vg}
  .amdhsa_next_free_sgpr {sg}
  .amdhsa_accum_offset {vg4}
  .amdhsa_group_segment_fixed_size 0
  .amdhsa_kernarg_size 88
  .amdhsa_user_sgpr_count 2
  .amdhsa_user_sgpr_kernarg_segment_ptr 1
  .amdhsa_system_sgpr_workgroup_id_x 1
.end_amdhsa_kernel
"""

DIAG = False
WS_DIAG = 0xB00000
def stamp(e, idx):
    if not DIAG: return
    b = 70 + 4*idx
    e(f"s_memtime s[{b}:{b+1}]"); e(f"s_memrealtime s[{b+2}:{b+3}]"); e("s_waitcnt lgkmcnt(0)")
def stamp_out(e, n, kid, srdbase, wavesreg="s20"):
    if not DIAG: return
    e("s_mov_b64 exec, 1")
    e(f"s_lshl_b32 s68, s2, 4"); e(f"s_add_u32 s68, s68, {wavesreg}"); e("s_lshl_b32 s68, s68, 7"); e(f"s_add_u32 s68, s68, {WS_DIAG + kid*0x80000:#x}")
    e("v_mov_b32 v122, 0")
    for i in range(n):
        b = 70 + 4*i
        e(f"v_mov_b32 v124, s{b}"); e(f"v_mov_b32 v125, s{b+1}"); e(f"v_mov_b32 v126, s{b+2}"); e(f"v_mov_b32 v127, s{b+3}")
        e(f"buffer_store_dwordx4 v[124:127], v122, s[{srdbase}:{srdbase+3}], s68 offen offset:{16*i}")
        e("s_nop 1")
    e("s_mov_b64 exec, -1")

def rnd_bf16(e, d, s):
    e(f"v_cvt_pk_bf16_f32 v{d}, v{s}, v{s}")
    e(f"v_lshlrev_b32 v{d}, 16, v{d}")

def ln_scalars(e, sm, sq, t, outs, inv_n):
    mb, sb = outs
    e(f"v_mul_f32 v{t}, {inv_n}, v{sm}")
    e(f"v_mul_f32 v{t+1}, {inv_n}, v{sq}")
    e(f"v_fma_f32 v{t+1}, -v{t}, v{t}, v{t+1}")
    e(f"v_max_f32 v{t+1}, 0, v{t+1}")
    rnd_bf16(e, mb, t)
    rnd_bf16(e, t+1, t+1)
    e(f"v_add_f32 v{t+1}, 0x3727c5ac, v{t+1}")
    rnd_bf16(e, t+1, t+1)
    e(f"v_sqrt_f32 v{t+1}, v{t+1}")
    e("s_nop 0")
    rnd_bf16(e, sb, t+1)

def k1():
    e = E(); name = "k1_kernel"; header(e, name)
    A_BASE = 73728; AP = 1040
    e("s_cmp_ge_u32 s2, 256"); e("s_cbranch_scc1 K1_END")
    e("s_load_dwordx4 s[4:7], s[0:1], 0"); e("s_load_dwordx2 s[8:9], s[0:1], 80")
    e("v_lshrrev_b32 v1, 6, v0"); e("v_and_b32 v2, 63, v0"); e("s_nop 0")
    e("v_readfirstlane_b32 s20, v1")
    e("s_bfe_u32 s21, s2, 0x20001"); e("s_lshl_b32 s21, s21, 3"); e("s_bfe_u32 s22, s2, 0x30003"); e("s_add_u32 s21, s21, s22")
    e("s_and_b32 s22, s2, 1"); e("s_lshl_b32 s22, s22, 2"); e("s_lshr_b32 s23, s2, 6"); e("s_add_u32 s22, s22, s23")
    e("s_waitcnt lgkmcnt(0)")
    srd(e, 12, 4, 5, 2097152); srd(e, 16, 6, 7, 1572864); srd(e, 24, 8, 9, 0x1000000); stamp(e, 0)
    e("v_lshrrev_b32 v4, 3, v2"); e("v_and_b32 v5, 7, v2")
    e("s_cmp_ge_u32 s20, 8"); e("s_cbranch_scc1 K1_NOX")
    e("s_lshl_b32 s23, s21, 6"); e("s_lshl_b32 s31, s20, 3"); e("s_add_u32 s23, s23, s31")
    e("v_add_u32 v3, s23, v4"); e("v_lshlrev_b32 v3, 10, v3"); e("v_lshl_add_u32 v3, v5, 4, v3")
    for i in range(8):
        e(f"buffer_load_dwordx4 {vr(64+4*i,4)}, v3, s[12:15], 0 offen offset:{i*128}")
    e.lab("K1_NOX")
    e("s_lshl_b32 s31, s20, 7")
    e("s_movk_i32 s33, 2731")
    e("s_mul_i32 s34, s22, 384")
    for i in range(2):
        e(f"v_add_u32 v6, s31, v2")
        if i: e(f"v_add_u32 v6, {i*64}, v6")
        e("v_mul_lo_u32 v7, v6, s33"); e("v_lshrrev_b32 v7, 16, v7")
        e("v_mul_u32_u24 v8, 24, v7"); e("v_sub_u32 v8, v6, v8")
        e("v_lshrrev_b32 v9, 2, v8")
        e("v_bfe_u32 v16, v7, 1, 1"); e("v_xor_b32 v9, v9, v16")
        e("v_and_b32 v8, 3, v8")
        e("v_mul_u32_u24 v7, 3072, v7")
        e("v_lshl_add_u32 v7, v9, 6, v7"); e("v_lshl_add_u32 v7, v8, 4, v7")
        e(f"v_add_u32 v{10+i}, s34, v7")
    e("s_lshl_b32 s35, s20, 11")
    def dma_chunk(c):
        buf = c % 3
        e(f"s_mov_b32 s36, {c*196608}")
        for i in range(2):
            e(f"s_add_u32 m0, s35, {buf*24576 + i*1024}")
            e("s_nop 0")
            e(f"buffer_load_dwordx4 v{10+i}, s[16:19], s36 offen lds")
    for c in range(3): dma_chunk(c)
    e("s_cmp_ge_u32 s20, 8"); e("s_cbranch_scc1 K1_NOLN")
    e("s_mov_b32 s38, 0x3f803f80")
    e("v_mov_b32 v17, s38")
    for p in range(4): e(f"v_mov_b32 v{32+p}, 0")
    e("s_lshl_b32 s31, s20, 3")
    e("v_add_u32 v18, s31, v4"); e(f"v_mul_u32_u24 v18, {AP}, v18"); e("v_lshl_add_u32 v18, v5, 4, v18")
    e(f"v_add_u32 v18, {A_BASE}, v18")
    e("s_waitcnt vmcnt(6)"); stamp(e, 1)
    for j in range(32):
        r = 64 + j
        e(f"v_dot2_f32_bf16 v{32+(j&1)}, v{r}, v17, v{32+(j&1)}")
        e(f"v_dot2_f32_bf16 v{34+(j&1)}, v{r}, v{r}, v{34+(j&1)}")
    e("s_nop 2")
    e("v_add_f32 v32, v32, v33"); e("v_add_f32 v34, v34, v35"); e("s_nop 1")
    for m in ("quad_perm:[1,0,3,2]", "quad_perm:[2,3,0,1]", "row_half_mirror"):
        e(f"v_add_f32_dpp v32, v32, v32 {m} row_mask:0xf bank_mask:0xf")
        e(f"v_add_f32_dpp v34, v34, v34 {m} row_mask:0xf bank_mask:0xf")
        e("s_nop 0")
    ln_scalars(e, 32, 34, 48, (50, 51), "0x3b000000")
    e(f"v_rcp_f32 v40, v51"); e("s_nop 0")
    e(f"v_mul_f32 v44, v50, v40"); e(f"v_sub_f32 v44, 0, v44")
    for j in range(32):
        r = 64 + j; t = 52 + 2*(j & 1)
        e(f"v_lshlrev_b32 v{t}, 16, v{r}"); e(f"v_and_b32 v{t+1}, 0xffff0000, v{r}")
        e(f"v_fma_f32 v{t}, v{t}, v40, v44"); e(f"v_fma_f32 v{t+1}, v{t+1}, v40, v44")
        e(f"v_cvt_pk_bf16_f32 v{r}, v{t}, v{t+1}")
        if j % 4 == 3:
            e(f"ds_write_b128 v18, {vr(r-3,4)} offset:{(j//4)*128}")
    e.lab("K1_NOLN")
    e("s_and_b32 s39, s20, 1"); e("s_lshr_b32 s40, s20, 1")
    e("v_and_b32 v19, 31, v2"); e("v_lshrrev_b32 v20, 5, v2")
    e("s_lshl_b32 s31, s39, 5")
    e("v_add_u32 v21, s31, v19"); e(f"v_mul_u32_u24 v21, {AP}, v21"); e("v_lshl_add_u32 v21, v20, 4, v21")
    e(f"v_add_u32 v21, {A_BASE}, v21")
    e("v_bfe_u32 v22, v2, 2, 2")
    e("v_and_b32 v23, 3, v2")
    e("v_bfe_u32 v24, v2, 4, 1")
    e("v_lshl_add_u32 v25, v20, 3, v22")
    e("v_mul_u32_u24 v25, 384, v25")
    e("v_lshl_add_u32 v25, v24, 5, v25"); e("v_lshl_add_u32 v25, v23, 3, v25")
    e("v_lshrrev_b32 v26, 1, v22")
    e("v_xor_b32 v27, s40, v26")
    e("v_lshl_add_u32 v54, v27, 6, v25")
    e("v_add_u32 v55, 49152, v54")
    for r in range(96, 112): e(f"v_mov_b32 v{r}, 0")
    e("s_waitcnt lgkmcnt(0)")
    stamp(e, 2)
    XF = [112, 116]; WF = [120, 124]
    def reads(c, ks, sel):
        buf = c % 3; s = c*4 + ks
        e(f"ds_read_b128 {vr(XF[sel],4)}, v21 offset:{32*s}")
        base = 55 if buf == 2 else 54
        bo = 0 if buf == 2 else buf*24576
        for u in range(2):
            e(f"ds_read_b64_tr_b16 {vr(WF[sel]+2*u,2)}, v{base} offset:{bo + (16*ks+4*u)*384}")
    for c in range(8):
        n = 4 if c == 0 else (0 if c == 7 else 2)
        e(f"s_waitcnt vmcnt({n})"); e("s_barrier")
        reads(c, 0, 0)
        if 1 <= c <= 5: dma_chunk(c+2)
        for ks in range(4):
            sel = ks & 1
            if ks < 3:
                reads(c, ks+1, sel ^ 1); e("s_waitcnt lgkmcnt(3)")
            else:
                e("s_waitcnt lgkmcnt(0)")
            e(f"v_mfma_f32_32x32x16_bf16 {vr(96,16)}, {vr(WF[sel],4)}, {vr(XF[sel],4)}, {vr(96,16)}")
    stamp(e, 3)
    e("s_lshl_b32 s31, s21, 6"); e("s_lshl_b32 s42, s39, 5"); e("s_add_u32 s31, s31, s42")
    e("v_add_u32 v22, s31, v19"); e("v_lshlrev_b32 v22, 5, v22"); e("v_lshl_add_u32 v22, v20, 4, v22")
    e("s_mul_i32 s44, s22, 6"); e("s_add_u32 s44, s44, s40")
    e("s_lshr_b32 s45, s44, 4")
    e("s_and_b32 s46, s44, 15")
    e("s_lshl_b32 s47, s45, 21"); e("s_lshl_b32 s46, s46, 17"); e("s_add_u32 s47, s47, s46")
    e("s_add_u32 s48, s47, 0x10000")
    e("s_cmp_eq_u32 s45, 0"); e(f"s_cselect_b32 s49, {f32bits(C_SCALE):#x}, 1.0")
    e.nop(8)
    a = 96
    for r in range(16): e(f"v_mul_f32 v{a+r}, s49, v{a+r}")
    for r in range(8): e(f"v_cvt_pk_bf16_f32 v{a+r}, v{a+2*r}, v{a+2*r+1}")
    e(f"buffer_store_dwordx4 {vr(a,4)}, v22, s[24:27], s47 offen")
    e(f"buffer_store_dwordx4 {vr(a+4,4)}, v22, s[24:27], s48 offen")
    e("s_cmp_ge_u32 s2, 9"); e("s_cbranch_scc1 K1_NOZ"); e("s_cmp_ge_u32 s20, 4"); e("s_cbranch_scc1 K1_NOZ")
    e("v_mov_b32 v20, 0"); e("v_mov_b32 v21, 0"); e("v_mov_b32 v22, 0"); e("v_mov_b32 v23, 0")
    e("s_lshl_b32 s37, s2, 12"); e("s_cmp_eq_u32 s2, 8"); e("s_cselect_b32 s37, 0x10000, s37"); e(f"s_add_u32 s37, s37, {WS_ST:#x}")
    e("v_lshlrev_b32 v24, 4, v0")
    e("buffer_store_dwordx4 v[20:23], v24, s[24:27], s37 offen")
    e.lab("K1_NOZ")
    e("s_cmp_lg_u32 s2, 9"); e("s_cbranch_scc1 K1_NOS"); e("s_cmp_lg_u32 s20, 0"); e("s_cbranch_scc1 K1_NOS")
    e("s_load_dwordx2 s[4:5], s[0:1], 32"); e("s_waitcnt lgkmcnt(0)")
    srd(e, 52, 4, 5, 1024)
    e("v_lshlrev_b32 v8, 4, v2")
    e("buffer_load_dwordx4 v[12:15], v8, s[52:55], 0 offen")
    e("s_mov_b32 s56, 0x3f803f80"); e("v_mov_b32 v18, s56"); e("v_mov_b32 v10, 0")
    e("s_waitcnt vmcnt(0)")
    for q in range(4): e(f"v_dot2_f32_bf16 v10, v{12+q}, v18, v10")
    e("s_nop 2")
    for ror in (8, 4, 2, 1):
        e(f"v_add_f32_dpp v10, v10, v10 row_ror:{ror} row_mask:0xf bank_mask:0xf"); e("s_nop 1")
    for q in range(4): e(f"v_readlane_b32 s{56+q}, v10, {16*q}")
    e("s_nop 1")
    e("v_mov_b32 v10, s56"); e("v_add_f32 v10, s57, v10"); e("v_add_f32 v10, s58, v10"); e("v_add_f32 v10, s59, v10")
    e("v_mov_b32 v8, 0"); e(f"s_mov_b32 s37, {WS_ST + 0x8000:#x}")
    e("buffer_store_dword v10, v8, s[24:27], s37 offen")
    e.lab("K1_NOS")
    if DIAG:
        e("s_waitcnt vmcnt(0)"); stamp(e, 4)
        e("s_cmp_ge_u32 s20, 8"); e("s_cbranch_scc1 K1_END")
        stamp_out(e, 5, 1, 24)
    e.lab("K1_END"); e("s_endpgm")
    return e.txt(), descr(name, 128, 64), f"; @launch kernel={name} grid=(256,1,1) block=(768,1,1) lds=140288"

def k2():
    e = E(); name = "k2_kernel"; header(e, name)
    VB = 65536; CB = 131072; XB = 140288
    Q = 8; NM = 16; S = [32, 48]; O = 64; P2 = [80, 112]; KB = [88, 92]; VF = [96, 104]; T = 120
    e("s_cmp_ge_u32 s2, 256"); e("s_cbranch_scc1 K2_END")
    e("s_load_dwordx2 s[4:5], s[0:1], 80")
    e("v_lshrrev_b32 v1, 6, v0"); e("v_and_b32 v2, 63, v0"); e("s_nop 0")
    e("v_readfirstlane_b32 s20, v1")
    e("s_and_b32 s21, s2, 7"); e("s_lshl_b32 s21, s21, 2"); e("s_bfe_u32 s22, s2, 0x20003"); e("s_add_u32 s21, s21, s22")
    e("s_lshr_b32 s22, s2, 5")
    e("s_and_b32 s31, s20, 7"); e("s_lshr_b32 s32, s20, 3")
    e("s_waitcnt lgkmcnt(0)")
    srd(e, 8, 4, 5, 0x1000000); stamp(e, 0)
    e("v_and_b32 v7, 31, v2"); e("v_lshrrev_b32 v6, 5, v2")
    e("v_lshlrev_b32 v3, 5, v7"); e("v_lshl_add_u32 v3, v6, 4, v3")
    e("v_lshlrev_b32 v4, 4, v2")
    e("s_lshl_b32 s23, s21, 16"); e("s_lshl_b32 s24, s22, 13"); e("s_lshl_b32 s25, s31, 10")
    e("s_add_u32 s24, s24, s25"); e("s_add_u32 s24, s24, s23")
    e(f"buffer_load_dwordx4 {vr(Q,4)}, v3, s[8:11], s24 offen")
    e("s_lshl_b32 s33, s32, 15"); e("s_add_u32 s25, s25, s33")
    e(f"s_add_u32 s26, s23, s25"); e(f"s_add_u32 s26, s26, {WS_K:#x}")
    def dma(c):
        e(f"s_add_u32 s27, s26, {c*8192}"); e(f"s_add_u32 s28, s27, {WS_V-WS_K:#x}")
        e(f"s_add_u32 m0, s25, {c*8192}"); e("s_nop 0")
        e("buffer_load_dwordx4 v4, s[8:11], s27 offen lds")
        e(f"s_add_u32 m0, s25, {VB + c*8192}"); e("s_nop 0")
        e("buffer_load_dwordx4 v4, s[8:11], s28 offen lds")
    dma(0); dma(1)
    e(f"v_and_b32 v{T}, 1, v0")
    e(f"v_mov_b32 v{T+4}, 0x3f80"); e(f"v_mov_b32 v{T+5}, 0"); e(f"v_mov_b32 v{T+7}, 0")
    e(f"v_cmp_eq_u32 vcc, 0, v{T}"); e("s_nop 1")
    e(f"v_cndmask_b32 v{T+4}, 0, v{T+4}, vcc"); e(f"v_mov_b32 v{T+6}, v{T+4}")
    e(f"v_lshlrev_b32 v{T+1}, 4, v0"); e(f"v_add_u32 v{T+1}, {CB}, v{T+1}")
    e("s_cmp_ge_u32 s20, 9"); e("s_cbranch_scc1 K2_NOC")
    e(f"ds_write_b128 v{T+1}, {vr(T+4,4)}")
    e.lab("K2_NOC")
    e("v_add_u32 v3, s33, v3")
    e(f"v_bfe_u32 v{T}, v2, 2, 2"); e(f"v_and_b32 v{T+1}, 3, v2"); e(f"v_bfe_u32 v{T+2}, v2, 4, 1")
    e(f"v_lshl_add_u32 v{T+3}, v6, 2, v{T}")
    e(f"v_lshlrev_b32 v{T+3}, 5, v{T+3}"); e(f"v_lshl_add_u32 v{T+3}, v{T+1}, 3, v{T+3}")
    e(f"v_add_u32 v{T+3}, {VB}, v{T+3}"); e(f"v_add_u32 v{T+3}, s33, v{T+3}")
    e(f"v_lshlrev_b32 v{T+4}, 5, v{T}"); e(f"v_lshl_add_u32 v{T+4}, v{T+1}, 3, v{T+4}"); e(f"v_add_u32 v{T+4}, {CB}, v{T+4}")
    e(f"v_cmp_eq_u32 vcc, 0, v{T+2}"); e(f"v_mov_b32 v{T+5}, 0x2000"); e("s_nop 1")
    e(f"v_cndmask_b32 v5, v{T+4}, v{T+3}, vcc")
    e(f"v_cndmask_b32 v1, 0, v{T+5}, vcc")
    for r in range(16): e(f"v_mov_b32 v{O+r}, 0")
    for r in range(8): e(f"v_mov_b32 v{P2[1]+r}, 0"); e(f"v_mov_b32 v{VF[1]+r}, 0")
    e("s_waitcnt vmcnt(2) lgkmcnt(0)"); e("s_barrier"); stamp(e, 1)
    e(f"ds_read_b128 {vr(KB[0],4)}, v3")
    e("s_waitcnt lgkmcnt(0)")
    e(f"v_mfma_f32_32x32x16_bf16 {vr(S[0],16)}, {vr(KB[0],4)}, {vr(Q,4)}, 0")
    e(f"ds_read_b128 {vr(KB[1],4)}, v3 offset:1024")
    for j in range(2):
        for u in range(2):
            e(f"ds_read_b64_tr_b16 {vr(VF[0]+4*j+2*u,2)}, v5 offset:{j*512+u*256}")
    dma(2); dma(3)
    s0 = S[0]
    e(f"v_max3_f32 v{T}, v{s0}, v{s0+1}, v{s0+2}")
    for r in range(3, 15, 2): e(f"v_max3_f32 v{T}, v{T}, v{s0+r}, v{s0+r+1}")
    e(f"v_max_f32 v{T}, v{T}, v{s0+15}")
    e(f"v_mov_b32 v{T+1}, v{T}"); e("s_nop 1")
    e(f"v_permlane32_swap_b32 v{T}, v{T+1}"); e("s_nop 1")
    e(f"v_max_f32 v{T}, v{T}, v{T+1}")
    e(f"v_sub_f32 v{T}, 0, v{T}")
    for r in range(16): e(f"v_mov_b32 v{NM+r}, v{T}")
    e("s_nop 1")
    e(f"v_mfma_f32_32x32x16_bf16 {vr(S[0],16)}, {vr(KB[0],4)}, {vr(Q,4)}, {vr(NM,16)}")
    stamp(e, 2)
    e("s_mov_b32 s30, 0"); e.nop(10)
    e.lab("K2_LOOP")
    for i in range(8):
        cur = i & 1; nx = cur ^ 1; sc = S[cur]; Pc = P2[cur]; Pp = P2[nx]
        if i == 5:
            e("s_cmp_gt_u32 s30, 2"); e("s_cbranch_scc1 K2_NW")
            e("s_cmp_eq_u32 s30, 0"); e("s_cbranch_scc0 K2_W1")
            e("s_waitcnt vmcnt(4)"); e("s_branch K2_WB")
            e.lab("K2_W1"); e("s_cmp_eq_u32 s30, 1"); e("s_cbranch_scc0 K2_W2")
            e("s_waitcnt vmcnt(2)"); e("s_branch K2_WB")
            e.lab("K2_W2"); e("s_waitcnt vmcnt(0)")
            e("s_load_dwordx2 s[40:41], s[0:1], 16"); e("s_load_dwordx4 s[44:47], s[0:1], 40"); e("s_load_dwordx2 s[48:49], s[0:1], 56")
            e("s_lshl_b32 s42, s2, 4"); e("s_add_u32 s42, s42, s20")
            e("s_waitcnt lgkmcnt(0)")
            e("s_cmp_lt_u32 s42, 1792"); e("s_cselect_b32 s52, s44, s46"); e("s_cselect_b32 s53, s45, s47"); e("s_cselect_b32 s43, 0, 1792")
            e("s_cmp_lt_u32 s42, 3584"); e("s_cselect_b32 s52, s52, s48"); e("s_cselect_b32 s53, s53, s49"); e("s_cselect_b32 s43, s43, 3584")
            e("s_mov_b32 s54, 1835008"); e("s_mov_b32 s55, 0x00020000")
            e("s_sub_u32 s43, s42, s43"); e("s_lshl_b32 s43, s43, 10")
            e("buffer_load_dwordx4 v[12:15], v4, s[52:55], s43 offen")
            e("s_add_u32 s43, s42, 512"); e("s_sub_u32 s50, s42, 1280"); e("s_mov_b32 s51, 524288")
            e("s_cmp_lt_u32 s42, 1280"); e("s_cselect_b32 s56, s48, s40"); e("s_cselect_b32 s57, s49, s41"); e("s_cselect_b32 s58, s54, s51")
            e("s_cselect_b32 s43, s43, s50"); e("s_mov_b32 s59, 0x00020000"); e("s_lshl_b32 s43, s43, 10")
            e("buffer_load_dwordx4 v[12:15], v4, s[56:59], s43 offen")
            e.lab("K2_WB"); e("s_barrier")
            e.lab("K2_NW")
        ex = lambda r: e(f"v_exp_f32 v{sc+r}, v{sc+r}")
        cv = lambda p: e(f"v_cvt_pk_bf16_f32 v{Pc+p}, v{sc+2*p}, v{sc+2*p+1}")
        e("s_waitcnt lgkmcnt(4)")
        e(f"v_mfma_f32_32x32x16_bf16 {vr(S[nx],16)}, {vr(KB[nx],4)}, {vr(Q,4)}, {vr(NM,16)}")
        e(f"ds_read_b128 {vr(KB[cur],4)}, v3 offset:{(i+2)*1024}")
        ex(0); ex(1); ex(2); cv(0); ex(3); ex(4); cv(1)
        e(f"v_mfma_f32_32x32x16_bf16 {vr(O,16)}, {vr(VF[nx],4)}, {vr(Pp,4)}, {vr(O,16)}")
        ex(5); ex(6); cv(2); ex(7); ex(8); cv(3); ex(9); ex(10); cv(4)
        e(f"v_mfma_f32_32x32x16_bf16 {vr(O,16)}, {vr(VF[nx]+4,4)}, {vr(Pp+4,4)}, {vr(O,16)}")
        for j in range(2):
            for u in range(2):
                e(f"ds_read_b64_tr_b16 {vr(VF[nx]+4*j+2*u,2)}, v5 offset:{(i+1)*1024 + j*512+u*256}")
        ex(11); ex(12); cv(5); ex(13); ex(14); cv(6); ex(15); e("s_nop 0"); cv(7)
    e("v_add_u32 v3, 0x2000, v3"); e("v_add_u32 v5, v5, v1")
    e("s_add_u32 s30, s30, 1"); e("s_cmp_lt_u32 s30, 4"); e("s_cbranch_scc1 K2_LOOP")
    e("s_waitcnt lgkmcnt(0)")
    e(f"v_mfma_f32_32x32x16_bf16 {vr(O,16)}, {vr(VF[1],4)}, {vr(P2[1],4)}, {vr(O,16)}")
    e(f"v_mfma_f32_32x32x16_bf16 {vr(O,16)}, {vr(VF[1]+4,4)}, {vr(P2[1]+4,4)}, {vr(O,16)}")
    e.nop(16)
    stamp(e, 3)
    e(f"v_mov_b32 v{T}, 0x5d800000")
    e(f"v_cmp_nlt_f32 vcc, v{O+8}, v{T}"); e("s_nop 4")
    e("s_cbranch_vccnz K2_SLOW")
    e.lab("K2_OUT")
    e("s_mul_i32 s34, s31, 2560"); e(f"s_add_u32 s34, s34, {XB}")
    e(f"v_lshl_add_u32 v{T+1}, v2, 2, s34")
    e("s_cmp_eq_u32 s32, 0"); e("s_cbranch_scc1 K2_LOW")
    for r in range(9): e(f"ds_write_b32 v{T+1}, v{O+r} offset:{256*r}")
    e(f"ds_write_b32 v{T+1}, v{NM} offset:{256*9}")
    e("s_waitcnt lgkmcnt(0)"); e("s_barrier")
    if DIAG: stamp_out(e, 4, 2, 8, "s20")
    e("s_endpgm")
    e.lab("K2_LOW")
    e("s_barrier")
    for r in range(10): e(f"ds_read_b32 v{S[0]+r}, v{T+1} offset:{256*r}")
    e("s_waitcnt lgkmcnt(0)")
    e(f"v_min_f32 v{T}, v{NM}, v{S[0]+9}")
    e(f"v_sub_f32 v{T+2}, v{T}, v{NM}"); e(f"v_sub_f32 v{T+3}, v{T}, v{S[0]+9}")
    e(f"v_exp_f32 v{T+2}, v{T+2}"); e(f"v_exp_f32 v{T+3}, v{T+3}"); e("s_nop 0")
    for r in range(9):
        e(f"v_mul_f32 v{O+r}, v{O+r}, v{T+2}"); e(f"v_fmac_f32 v{O+r}, v{S[0]+r}, v{T+3}")
    e(f"v_rcp_f32 v{T}, v{O+8}"); e("s_nop 0")
    for r in range(8): e(f"v_mul_f32 v{O+r}, v{O+r}, v{T}")
    for r in range(4): e(f"v_cvt_pk_bf16_f32 v{P2[0]+r}, v{O+2*r}, v{O+2*r+1}")
    e("s_lshl_b32 s24, s22, 8"); e("s_lshl_b32 s25, s31, 5"); e("s_add_u32 s24, s24, s25")
    e(f"v_add_u32 v{T+1}, s24, v7"); e(f"v_lshlrev_b32 v{T+1}, 10, v{T+1}"); e(f"v_lshl_add_u32 v{T+1}, v6, 4, v{T+1}")
    e("s_lshl_b32 s25, s21, 5"); e(f"s_add_u32 s25, s25, {WS_O:#x}")
    e(f"buffer_store_dwordx4 {vr(P2[0],4)}, v{T+1}, s[8:11], s25 offen")
    if DIAG: stamp_out(e, 4, 2, 8, "s20")
    e("s_endpgm")
    e.lab("K2_SLOW")
    P = P2[0]
    e("v_subrev_u32 v3, 0x8000, v3")
    e(f"v_lshlrev_b32 v{T+5}, 2, v1"); e(f"v_sub_u32 v5, v5, v{T+5}")
    e(f"v_lshrrev_b32 v1, 3, v1")
    e(f"v_sub_f32 v{NM}, 0, v{NM}")
    for r in range(16): e(f"v_mov_b32 v{O+r}, 0")
    e("s_mov_b32 s30, 0")
    e.lab("K2_SL")
    e(f"ds_read_b128 {vr(KB[0],4)}, v3")
    for j in range(2):
        for u in range(2):
            e(f"ds_read_b64_tr_b16 {vr(VF[0]+4*j+2*u,2)}, v5 offset:{j*512+u*256}")
    e("s_waitcnt lgkmcnt(0)")
    e(f"v_mfma_f32_32x32x16_bf16 {vr(S[0],16)}, {vr(KB[0],4)}, {vr(Q,4)}, 0")
    e.nop(16)
    e(f"v_max3_f32 v{T}, v{s0}, v{s0+1}, v{s0+2}")
    for r in range(3, 15, 2): e(f"v_max3_f32 v{T}, v{T}, v{s0+r}, v{s0+r+1}")
    e(f"v_max3_f32 v{T}, v{T}, v{s0+15}, v{NM}")
    e(f"v_mov_b32 v{T+1}, v{T}"); e("s_nop 1")
    e(f"v_permlane32_swap_b32 v{T}, v{T+1}"); e("s_nop 1")
    e(f"v_max_f32 v{T}, v{T}, v{T+1}")
    e(f"v_sub_f32 v{T+1}, v{NM}, v{T}"); e(f"v_exp_f32 v{T+1}, v{T+1}"); e(f"v_mov_b32 v{NM}, v{T}")
    for r in range(16): e(f"v_mul_f32 v{O+r}, v{O+r}, v{T+1}")
    for r in range(16): e(f"v_sub_f32 v{s0+r}, v{s0+r}, v{T}")
    for r in range(16): e(f"v_exp_f32 v{s0+r}, v{s0+r}")
    e("s_nop 0")
    for p in range(8): e(f"v_cvt_pk_bf16_f32 v{P+p}, v{s0+2*p}, v{s0+2*p+1}")
    e("s_nop 1")
    e(f"v_mfma_f32_32x32x16_bf16 {vr(O,16)}, {vr(VF[0],4)}, {vr(P,4)}, {vr(O,16)}")
    e(f"v_mfma_f32_32x32x16_bf16 {vr(O,16)}, {vr(VF[0]+4,4)}, {vr(P+4,4)}, {vr(O,16)}")
    e("v_add_u32 v3, 0x400, v3"); e("v_add_u32 v5, v5, v1")
    e.nop(16)
    e("s_add_u32 s30, s30, 1"); e("s_cmp_lt_u32 s30, 32"); e("s_cbranch_scc1 K2_SL")
    e(f"v_sub_f32 v{NM}, 0, v{NM}")
    e("s_branch K2_OUT")
    e.lab("K2_END"); e("s_endpgm")
    return e.txt(), descr(name, 128, 64), f"; @launch kernel={name} grid=(256,1,1) block=(1024,1,1) lds=160768"

def k3():
    e = E(); name = "k3_kernel"; header(e, name)
    OB = 65536; AP = 1040
    e("s_cmp_ge_u32 s2, 256"); e("s_cbranch_scc1 K3_END")
    e("s_load_dwordx2 s[4:5], s[0:1], 0"); e("s_load_dwordx2 s[6:7], s[0:1], 16"); e("s_load_dwordx2 s[8:9], s[0:1], 80"); e("s_load_dwordx2 s[10:11], s[0:1], 32")
    e("v_lshrrev_b32 v1, 6, v0"); e("v_and_b32 v2, 63, v0"); e("s_nop 0")
    e("v_readfirstlane_b32 s20, v1")
    e("s_and_b32 s21, s2, 7"); e("s_lshl_b32 s21, s21, 2"); e("s_bfe_u32 s22, s2, 0x20003"); e("s_add_u32 s21, s21, s22"); e("s_lshr_b32 s22, s2, 5")
    e("s_and_b32 s39, s20, 1"); e("s_lshr_b32 s40, s20, 1")
    e("s_waitcnt lgkmcnt(0)")
    srd(e, 12, 4, 5, 2097152); srd(e, 16, 6, 7, 524288); srd(e, 24, 8, 9, 0x1000000); srd(e, 44, 10, 11, 1024); stamp(e, 0)
    e("v_lshrrev_b32 v4, 3, v2"); e("v_lshlrev_b32 v4, 10, v4")
    e("v_bfe_u32 v5, v2, 2, 1"); e("v_bfe_u32 v6, v2, 4, 1"); e("v_xor_b32 v5, v5, v6")
    e("v_lshl_add_u32 v4, v5, 6, v4"); e("v_and_b32 v5, 3, v2"); e("v_lshl_add_u32 v4, v5, 4, v4")
    e("s_lshl_b32 s31, s22, 7"); e("v_add_u32 v4, s31, v4")
    e("v_lshlrev_b32 v3, 4, v2")
    e("s_lshl_b32 s32, s20, 17")
    e("s_lshl_b32 s33, s20, 14")
    e("s_lshl_b32 s35, s21, 16"); e("s_lshl_b32 s36, s20, 14"); e("s_add_u32 s35, s35, s36"); e(f"s_add_u32 s35, s35, {WS_O:#x}")
    e(f"s_mul_i32 s36, s20, {16*AP}"); e(f"s_add_u32 s36, s36, {OB}")
    for i in range(16):
        e(f"s_add_u32 s34, s35, {i*1024}"); e(f"s_add_u32 m0, s36, {i*AP}"); e("s_nop 0")
        e("buffer_load_dwordx4 v3, s[24:27], s34 offen lds")
        e(f"s_add_u32 s34, s32, {i*8192}"); e(f"s_add_u32 m0, s33, {i*1024}"); e("s_nop 0")
        e("buffer_load_dwordx4 v4, s[16:19], s34 offen lds")
    e("v_and_b32 v19, 31, v2"); e("v_lshrrev_b32 v20, 5, v2")
    e("s_lshl_b32 s31, s21, 6"); e("s_lshl_b32 s35, s39, 5"); e("s_add_u32 s31, s31, s35")
    e("v_add_u32 v21, s31, v19")
    e("v_lshlrev_b32 v22, 10, v21")
    e("s_lshl_b32 s37, s22, 7"); e("s_lshl_b32 s38, s40, 6"); e("s_add_u32 s37, s37, s38")
    e("v_lshlrev_b32 v23, 3, v20"); e("v_add_u32 v23, s37, v23")
    e("v_add_u32 v24, v22, v23")
    for g in range(4):
        e(f"buffer_load_dwordx2 {vr(32+2*g,2)}, v24, s[12:15], 0 offen offset:{16*g}")
    for g in range(4):
        e(f"buffer_load_dwordx2 {vr(40+2*g,2)}, v23, s[44:47], 0 offen offset:{16*g}")
    e("v_add_u32 v26, s35, v19"); e(f"v_mul_u32_u24 v26, {AP}, v26"); e("v_lshl_add_u32 v26, v20, 4, v26"); e(f"v_add_u32 v26, {OB}, v26")
    e("v_bfe_u32 v5, v2, 2, 2"); e("v_and_b32 v6, 3, v2"); e("v_bfe_u32 v7, v2, 4, 1")
    e("v_lshl_add_u32 v25, v20, 3, v5"); e("v_lshlrev_b32 v25, 7, v25")
    e("v_lshl_add_u32 v25, v7, 5, v25"); e("v_lshl_add_u32 v25, v6, 3, v25")
    e("v_lshrrev_b32 v5, 1, v5"); e("v_xor_b32 v5, s40, v5"); e("v_lshl_add_u32 v25, v5, 6, v25")
    for r in range(16): e(f"v_mov_b32 v{48+r}, 0")
    e("s_waitcnt vmcnt(8)"); e("s_barrier"); stamp(e, 1)
    NB = 4
    WF = [64 + 8*i for i in range(NB)]; XF = [68 + 8*i for i in range(NB)]
    def rd(s):
        sel = s % NB
        e(f"ds_read_b128 {vr(XF[sel],4)}, v26 offset:{32*s}")
        for u in range(2):
            e(f"ds_read_b64_tr_b16 {vr(WF[sel]+2*u,2)}, v25 offset:{(16*s+4*u)*128}")
    for s in range(NB-1): rd(s)
    for s in range(32):
        sel = s % NB
        if s + NB - 1 < 32: rd(s + NB - 1)
        rem = min(31 - s, NB - 1)
        e(f"s_waitcnt lgkmcnt({3*rem})")
        e(f"v_mfma_f32_32x32x16_bf16 {vr(48,16)}, {vr(WF[sel],4)}, {vr(XF[sel],4)}, {vr(48,16)}")
    stamp(e, 2)
    e("s_mov_b32 s41, 0x3f803f80"); e("v_mov_b32 v8, s41")
    e("v_mov_b32 v9, 0"); e("v_mov_b32 v10, 0"); e("v_mov_b32 v11, 0")
    e("s_waitcnt vmcnt(0)")
    e.nop(12)
    for p in range(8):
        a = 48 + 2*p; x = 32 + p
        e(f"v_cvt_pk_bf16_f32 v12, v{a}, v{a+1}")
        e("v_lshlrev_b32 v13, 16, v12"); e("v_and_b32 v14, 0xffff0000, v12")
        e(f"v_lshlrev_b32 v15, 16, v{x}"); e(f"v_and_b32 v16, 0xffff0000, v{x}")
        e("v_add_f32 v13, v13, v15"); e("v_add_f32 v14, v14, v16")
        e(f"v_cvt_pk_bf16_f32 v{x}, v13, v14")
        e(f"v_dot2_f32_bf16 v9, v{x}, v8, v9")
        e(f"v_dot2_f32_bf16 v10, v{x}, v{x}, v10")
        e(f"v_dot2_f32_bf16 v11, v{x}, v{40+p}, v11")
    e(f"s_mov_b32 s36, {WS_H:#x}")
    for g in range(4):
        e(f"buffer_store_dwordx2 {vr(32+2*g,2)}, v24, s[24:27], s36 offen offset:{16*g}")
    e("s_nop 2")
    for q in range(3): e(f"v_mov_b32 v{12+q}, v{9+q}")
    e("s_nop 1")
    for q in range(3): e(f"v_permlane32_swap_b32 v{9+q}, v{12+q}")
    e("s_nop 1")
    for q in range(3): e(f"v_add_f32 v{9+q}, v{9+q}, v{12+q}")
    e("v_lshlrev_b32 v15, 4, v21")
    e(f"s_mov_b32 s36, {WS_ST:#x}")
    e("s_mov_b64 exec, 0xffffffff")
    for q in range(3):
        e(f"buffer_atomic_add_f32 v{9+q}, v15, s[24:27], s36 offen offset:{4*q}")
    if DIAG:
        e("s_waitcnt vmcnt(0)"); stamp(e, 3); stamp_out(e, 4, 3, 24)
    e.lab("K3_END"); e("s_endpgm")
    return e.txt(), descr(name, 96, 64), f"; @launch kernel={name} grid=(256,1,1) block=(256,1,1) lds=132096"

def ln2_elem(e, x, mb, rinv, t):
    e(f"v_lshlrev_b32 v{t}, 16, v{x}"); e(f"v_and_b32 v{t+1}, 0xffff0000, v{x}")
    e(f"v_sub_f32 v{t+2}, v{t}, v{mb}"); e(f"v_sub_f32 v{t+3}, v{t+1}, v{mb}")
    e(f"v_cvt_pk_bf16_f32 v{t+2}, v{t+2}, v{t+3}")
    e(f"v_and_b32 v{t+3}, 0xffff0000, v{t+2}"); e(f"v_lshlrev_b32 v{t+2}, 16, v{t+2}")
    e(f"v_mul_f32 v{t+2}, v{t+2}, v{rinv}"); e(f"v_mul_f32 v{t+3}, v{t+3}, v{rinv}")
    e(f"v_cvt_pk_bf16_f32 v{t+2}, v{t+2}, v{t+3}")

WS_Y = 0xA10000
def k4():
    e = E(); name = "k4_kernel"; header(e, name)
    NF = 56; NE = 32
    L_XS = 1024; L_H = 5120; L_G = 8192; L_S2 = 40960; L_ACT = 45056; L_D = 49152; L_FLAG = 8064
    e(f"s_cmp_ge_u32 s2, {NF+NE}"); e("s_cbranch_scc1 K4_END")
    e("s_load_dwordx2 s[4:5], s[0:1], 80"); e("s_load_dwordx4 s[8:11], s[0:1], 64")
    e("s_load_dwordx8 s[44:51], s[0:1], 32")
    e("v_lshrrev_b32 v1, 6, v0"); e("v_and_b32 v2, 63, v0"); e("s_nop 0")
    e("v_readfirstlane_b32 s20, v1")
    e("s_waitcnt lgkmcnt(0)")
    srd(e, 12, 4, 5, 0x1000000); srd(e, 16, 8, 9, 2097152); srd(e, 24, 44, 45, 1024)
    srd(e, 28, 46, 47, 1835008); srd(e, 32, 48, 49, 1835008); srd(e, 36, 50, 51, 1835008); srd(e, 40, 10, 11, 256)
    stamp(e, 0)
    e("v_lshlrev_b32 v7, 4, v0"); e("v_mov_b32 v3, 0"); e("v_mov_b32 v6, 0"); e("v_mov_b32 v11, 0")
    e(f"s_mov_b32 s52, {WS_ST:#x}"); e(f"s_mov_b32 s53, {WS_ST + 16384:#x}"); e(f"s_mov_b32 s54, {WS_H:#x}")
    e("buffer_load_dwordx4 v[64:67], v7, s[12:15], s52 offen")
    e("buffer_load_dwordx4 v[68:71], v7, s[12:15], s53 offen")
    e(f"s_mov_b32 s55, {WS_ST + 0x8000:#x}")
    e("s_load_dword s66, s[4:5], s55")
    e(f"s_cmp_lt_u32 s2, {NF}"); e("s_cbranch_scc1 K4_LF")
    e(f"s_sub_u32 s21, s2, {NF}"); e("s_lshl_b32 s21, s21, 6"); e("s_lshl_b32 s22, s20, 2"); e("s_add_u32 s21, s21, s22")
    e("v_lshrrev_b32 v4, 4, v2"); e("v_and_b32 v5, 15, v2")
    e("v_add_u32 v6, s21, v4")
    e("v_lshlrev_b32 v3, 10, v6"); e("v_lshl_add_u32 v3, v5, 4, v3")
    e("v_lshlrev_b32 v9, 4, v6")
    e("buffer_load_dwordx4 v[72:75], v9, s[12:15], s52 offen")
    for i in range(4):
        e(f"buffer_load_dwordx4 {vr(80+4*i,4)}, v3, s[12:15], s54 offen offset:{256*i}")
    e("s_waitcnt vmcnt(5) lgkmcnt(0)"); e("s_branch K4_TOP")
    e.lab("K4_LF")
    e("s_waitcnt vmcnt(0) lgkmcnt(0)")
    e.lab("K4_TOP"); stamp(e, 1)
    e("s_mov_b32 s56, 0xfffff800")
    for i in range(2):
        b = 64 + 4*i; t = 18 + 8*i
        e(f"v_mul_f32 v{t}, 0x3b000000, v{b}")
        e(f"v_mul_f32 v{t+1}, 0x3b000000, v{b+1}")
        e(f"v_fma_f32 v{t+1}, -v{t}, v{t}, v{t+1}")
        e(f"v_max_f32 v{t+1}, 0, v{t+1}")
        e(f"v_add_f32 v{t+1}, 0x3727c5ac, v{t+1}")
        e(f"v_rsq_f32 v{t+1}, v{t+1}")
        e(f"v_fma_f32 v{t+4}, -v{t}, s66, v{b+2}")
        e(f"v_sub_u32 v{t+5}, {2047 - 1024*i}, v0")
        e(f"v_mul_f32 v{t+4}, v{t+4}, v{t+1}")
        e(f"v_ashrrev_i32 v{t+2}, 31, v{t+4}")
        e(f"v_or_b32 v{t+2}, 0x80000000, v{t+2}")
        e(f"v_xor_b32 v{t+4}, v{t+4}, v{t+2}")
        e(f"v_and_or_b32 v{t+4}, v{t+4}, s56, v{t+5}")
    e("v_max_u32 v16, v22, v30"); e("v_min_u32 v17, v22, v30")
    def red16():
        for ror in (8, 4, 2, 1):
            e("s_nop 1")
            e(f"v_mov_b32_dpp v18, v16 row_ror:{ror} row_mask:0xf bank_mask:0xf")
            e(f"v_mov_b32_dpp v19, v17 row_ror:{ror} row_mask:0xf bank_mask:0xf")
            e("v_min_u32 v20, v16, v18"); e("v_max_u32 v16, v16, v18"); e("v_max3_u32 v17, v17, v19, v20")
    red16()
    e("v_lshrrev_b32 v18, 4, v0"); e("v_lshlrev_b32 v18, 3, v18")
    e("ds_write_b64 v18, v[16:17]")
    e("s_waitcnt lgkmcnt(0)"); e("s_barrier")
    e("v_lshlrev_b32 v18, 3, v2")
    e("ds_read_b64 v[16:17], v18")
    e("s_waitcnt lgkmcnt(0)")
    red16()
    e("s_nop 0")
    for q in range(4):
        e(f"v_readlane_b32 s{56+2*q}, v16, {16*q}"); e(f"v_readlane_b32 s{57+2*q}, v17, {16*q}")
    def smerge(d, a, b):
        e(f"s_min_u32 s64, s{a}, s{b}"); e(f"s_max_u32 s65, s{a+1}, s{b+1}"); e(f"s_max_u32 s{d}, s{a}, s{b}"); e(f"s_max_u32 s{d+1}, s64, s65")
    smerge(56, 56, 58); smerge(60, 60, 62); smerge(56, 56, 60)
    e("s_and_b32 s56, s56, 0x7ff"); e("s_and_b32 s57, s57, 0x7ff")
    e("s_sub_u32 s56, 2047, s56"); e("s_sub_u32 s57, 2047, s57")
    stamp(e, 2)
    e(f"s_cmp_lt_u32 s2, {NF}"); e("s_cbranch_scc1 K4_FFN")
    e("s_waitcnt vmcnt(0)")
    ln_scalars(e, 72, 73, 12, (14, 15), "0x3b000000")
    e("v_rcp_f32 v15, v15"); e("s_nop 0")
    for j in range(16):
        x = 80 + j
        ln2_elem(e, x, 14, 15, 32)
        e("v_and_b32 v35, 0xffff0000, v34"); e("v_lshlrev_b32 v34, 16, v34")
        e("v_add_f32 v34, v32, v34"); e("v_add_f32 v35, v33, v35")
        e(f"v_cvt_pk_bf16_f32 v{x}, v34, v35")
    e("v_cmp_ne_u32 vcc, s56, v6"); e("v_cmp_ne_u32 s[60:61], s57, v6"); e("s_nop 1")
    e("s_and_b64 s[60:61], s[60:61], vcc"); e("s_and_b64 exec, exec, s[60:61]")
    e("s_cbranch_execz K4_END")
    for i in range(4):
        e(f"buffer_store_dwordx4 {vr(80+4*i,4)}, v3, s[16:19], 0 offen offset:{256*i}")
    e("s_endpgm")
    e.lab("K4_FFN")
    e("s_cmp_ge_u32 s20, 8"); e("s_cbranch_scc1 K4_NOXL")
    e("s_cmp_lt_u32 s20, 4"); e("s_cselect_b32 s58, s56, s57")
    e("s_lshl_b32 s59, s58, 4"); e("s_add_u32 s59, s59, s52")
    e("s_lshl_b32 s60, s58, 10"); e("s_add_u32 s60, s60, s54")
    e("v_and_b32 v19, 255, v0"); e("v_lshlrev_b32 v20, 2, v19"); e("v_mov_b32 v21, 0")
    e("buffer_load_dwordx4 v[24:27], v21, s[12:15], s59 offen")
    e("buffer_load_dword v28, v20, s[12:15], s60 offen")
    e("buffer_load_dword v30, v20, s[24:27], 0 offen")
    e("v_lshrrev_b32 v41, 8, v0")
    e.lab("K4_NOXL")
    e("s_barrier")
    e("v_lshrrev_b32 v4, 4, v0"); e("v_and_b32 v5, 15, v0")
    e("v_mul_u32_u24 v3, 3584, v4"); e("v_lshl_add_u32 v3, v5, 2, v3")
    e("s_lshl_b32 s21, s2, 6"); e("v_add_u32 v3, s21, v3")
    for i in range(8):
        e(f"s_mov_b32 s55, {i*64*3584}")
        e(f"buffer_load_dword v{80+i}, v3, s[28:31], s55 offen")
        e(f"buffer_load_dword v{88+i}, v3, s[32:35], s55 offen")
    e("v_lshrrev_b32 v6, 8, v0"); e("v_and_b32 v9, 255, v0")
    e("v_lshlrev_b32 v11, 13, v6"); e("v_lshl_add_u32 v11, v9, 2, v11")
    e("s_lshl_b32 s21, s2, 15"); e("s_add_u32 s22, s21, 4096")
    for i in range(8):
        e(f"buffer_load_dword v{96+i}, v11, s[36:39], {'s21' if i < 4 else 's22'} offen offset:{(i&3)*1024}")
    e("s_cmp_ge_u32 s20, 8"); e("s_cbranch_scc1 K4_NOXS")
    e("s_waitcnt vmcnt(24)")
    ln_scalars(e, 24, 25, 32, (34, 35), "0x3b000000")
    e("v_rcp_f32 v35, v35"); e("s_nop 0")
    ln2_elem(e, 28, 34, 35, 36)
    e("v_mov_b32 v40, 0"); e("v_dot2_f32_bf16 v40, v38, v30, v40")
    e("v_lshlrev_b32 v42, 2, v41"); e("v_lshl_add_u32 v42, v19, 4, v42")
    e("v_lshlrev_b32 v43, 16, v38"); e("v_and_b32 v44, 0xffff0000, v38")
    e(f"ds_write_b32 v42, v43 offset:{L_XS}"); e(f"ds_write_b32 v42, v44 offset:{L_XS+8}")
    e("v_lshlrev_b32 v45, 2, v0")
    e(f"ds_write_b32 v45, v28 offset:{L_H}")
    for ror in (8, 4, 2, 1):
        e("s_nop 1"); e(f"v_add_f32_dpp v40, v40, v40 row_ror:{ror} row_mask:0xf bank_mask:0xf")
    e("v_lshrrev_b32 v45, 4, v0"); e("v_lshlrev_b32 v45, 2, v45")
    e("ds_write_b32 v45, v40 offset:512")
    e.lab("K4_NOXS")
    e("s_waitcnt lgkmcnt(0)"); e("s_barrier"); stamp(e, 3)
    for r in range(104, 112): e(f"v_mov_b32 v{r}, 0")
    e("v_lshlrev_b32 v41, 3, v4")
    for i in range(8):
        e(f"ds_read_b64 {vr(48+2*i,2)}, v41 offset:{L_XS + i*512}")
    for i in range(8):
        e(f"s_waitcnt vmcnt({22-2*i}) lgkmcnt({7-i})")
        for m in range(2):
            w = 80 + 8*m + i; t = 44 + 2*m
            e(f"v_lshlrev_b32 v{t}, 16, v{w}"); e(f"v_and_b32 v{t+1}, 0xffff0000, v{w}")
            for tk in range(2):
                a = 104 + m*4 + tk*2
                e(f"v_fmac_f32 v{a}, v{t}, v{48+2*i+tk}"); e(f"v_fmac_f32 v{a+1}, v{t+1}, v{48+2*i+tk}")
    e("v_lshlrev_b32 v41, 5, v0")
    e(f"ds_write_b128 v41, v[104:107] offset:{L_G}"); e(f"ds_write_b128 v41, v[108:111] offset:{L_G+16}")
    e("s_waitcnt lgkmcnt(0)"); e("s_barrier")
    e("v_and_b32 v41, 127, v0"); e("v_lshrrev_b32 v42, 7, v0")
    e("v_lshlrev_b32 v43, 12, v42"); e("v_lshl_add_u32 v43, v41, 2, v43")
    for g in range(8): e(f"ds_read_b32 v{48+g}, v43 offset:{L_G + 512*g}")
    e("s_waitcnt lgkmcnt(0)")
    for g in range(1, 8): e(f"v_add_f32 v48, v48, v{48+g}")
    e("v_lshlrev_b32 v43, 2, v0")
    e(f"ds_write_b32 v43, v48 offset:{L_S2}")
    e("s_waitcnt lgkmcnt(0)"); e("s_barrier")
    e("s_cmp_lg_u32 s20, 0"); e("s_cbranch_scc1 K4_NS3")
    e("v_lshrrev_b32 v41, 5, v2"); e("v_and_b32 v42, 31, v2"); e("v_lshrrev_b32 v43, 1, v42"); e("v_and_b32 v44, 1, v42")
    e("v_lshlrev_b32 v45, 5, v43"); e("v_lshl_add_u32 v45, v41, 3, v45"); e("v_lshl_add_u32 v45, v44, 2, v45")
    for g in range(8):
        e(f"ds_read_b32 v{48+g}, v45 offset:{L_S2 + 512*g}")
        e(f"ds_read_b32 v{56+g}, v45 offset:{L_S2 + 512*g + 16}")
    e("s_waitcnt lgkmcnt(0)")
    for g in range(1, 8):
        e(f"v_add_f32 v48, v48, v{48+g}"); e(f"v_add_f32 v56, v56, v{56+g}")
    rnd_bf16(e, 48, 48); rnd_bf16(e, 56, 56)
    e("v_mul_f32 v49, 0xbfb8aa3b, v48"); e("v_exp_f32 v49, v49"); e("s_nop 0")
    e("v_add_f32 v49, 1.0, v49"); e("v_rcp_f32 v49, v49"); e("s_nop 0")
    e("v_mul_f32 v49, v48, v49"); rnd_bf16(e, 49, 49)
    e("v_mul_f32 v49, v49, v56"); rnd_bf16(e, 49, 49)
    e("v_lshlrev_b32 v50, 3, v42"); e("v_lshl_add_u32 v50, v41, 2, v50")
    e(f"ds_write_b32 v50, v49 offset:{L_ACT}")
    e("s_waitcnt lgkmcnt(0)")
    e.lab("K4_NS3")
    e("s_barrier"); stamp(e, 4)
    e("v_lshlrev_b32 v41, 6, v6")
    for i in range(8): e(f"ds_read_b64 {vr(48+2*i,2)}, v41 offset:{L_ACT + 8*i}")
    for r in range(104, 108): e(f"v_mov_b32 v{r}, 0")
    for i in range(8):
        e(f"s_waitcnt vmcnt({7-i}) lgkmcnt({7-i})")
        w = 96 + i; t = 44 + 2*(i & 1)
        e(f"v_lshlrev_b32 v{t}, 16, v{w}"); e(f"v_and_b32 v{t+1}, 0xffff0000, v{w}")
        for tk in range(2):
            a = 104 + tk*2
            e(f"v_fmac_f32 v{a}, v{t}, v{48+2*i+tk}"); e(f"v_fmac_f32 v{a+1}, v{t+1}, v{48+2*i+tk}")
    e("v_lshlrev_b32 v41, 4, v0")
    e(f"ds_write_b128 v41, v[104:107] offset:{L_D}")
    e("s_waitcnt lgkmcnt(0)"); e("s_barrier")
    e("v_lshrrev_b32 v41, 9, v0"); e("v_and_b32 v42, 511, v0"); e("v_lshrrev_b32 v43, 1, v42"); e("v_and_b32 v44, 1, v42")
    e("v_lshlrev_b32 v45, 4, v43"); e("v_lshl_add_u32 v45, v41, 3, v45"); e("v_lshl_add_u32 v45, v44, 2, v45")
    for g in range(4): e(f"ds_read_b32 v{48+g}, v45 offset:{L_D + 4096*g}")
    e("s_waitcnt lgkmcnt(0)")
    e("v_add_f32 v48, v48, v49"); e("v_add_f32 v50, v50, v51"); e("v_add_f32 v48, v48, v50")
    e("v_lshlrev_b32 v46, 2, v0"); e(f"s_mov_b32 s58, {WS_Y:#x}")
    e("buffer_atomic_add_f32 v48, v46, s[12:15], s58 offen")
    e("s_waitcnt vmcnt(0)"); e("s_barrier"); stamp(e, 5)
    e("s_cmp_lg_u32 s20, 0"); e("s_cbranch_scc1 K4_NCNT")
    e("v_mov_b32 v48, 1"); e("v_mov_b32 v49, 0"); e(f"v_mov_b32 v50, {L_FLAG}")
    e("s_mov_b64 exec, 1")
    e("buffer_atomic_add v48, v49, s[40:43], 0 offen sc0")
    e("s_waitcnt vmcnt(0)")
    e("ds_write_b32 v50, v48")
    e("s_mov_b64 exec, -1")
    e("s_waitcnt lgkmcnt(0)")
    e.lab("K4_NCNT")
    e("s_barrier")
    e(f"v_mov_b32 v50, {L_FLAG}"); e("ds_read_b32 v48, v50"); e("s_waitcnt lgkmcnt(0)")
    e("v_readfirstlane_b32 s59, v48")
    if DIAG:
        stamp(e, 6); stamp_out(e, 7, 4, 12)
    e(f"s_cmp_lg_u32 s59, {NF-1}"); e("s_cbranch_scc1 K4_END")
    e("v_mov_b32 v48, 0")
    e("buffer_atomic_add_f32 v48, v46, s[12:15], s58 offen sc0")
    e("v_lshlrev_b32 v47, 6, v41")
    for q in range(4): e(f"ds_read_b128 {vr(52+4*q,4)}, v47 offset:{512 + 16*q}")
    e("v_lshlrev_b32 v47, 3, v42"); e("v_lshl_add_u32 v47, v41, 2, v47")
    e(f"ds_read_b32 v49, v47 offset:{L_XS}")
    e("v_lshlrev_b32 v47, 1, v0")
    e(f"ds_read_u16 v50, v47 offset:{L_H}")
    e("s_waitcnt lgkmcnt(0)")
    for q in range(1, 16): e(f"v_add_f32 v52, v52, v{52+q}")
    rnd_bf16(e, 52, 52)
    e("v_mul_f32 v52, 0xbfb8aa3b, v52"); e("v_exp_f32 v52, v52"); e("s_nop 0")
    e("v_add_f32 v52, 1.0, v52"); e("v_rcp_f32 v52, v52"); e("s_nop 0")
    rnd_bf16(e, 52, 52)
    e("v_lshlrev_b32 v50, 16, v50")
    e("s_cmp_lt_u32 s20, 8"); e("s_cselect_b32 s60, s56, s57"); e("s_lshl_b32 s60, s60, 10")
    e("v_lshlrev_b32 v51, 1, v42")
    e("s_waitcnt vmcnt(0)")
    rnd_bf16(e, 48, 48)
    e("v_mul_f32 v48, v48, v52"); rnd_bf16(e, 48, 48)
    e("v_add_f32 v48, v49, v48"); rnd_bf16(e, 48, 48)
    e("v_add_f32 v48, v50, v48"); e("v_cvt_pk_bf16_f32 v48, v48, v48")
    e("buffer_store_short v48, v51, s[16:19], s60 offen")
    e.lab("K4_END"); e("s_endpgm")
    return e.txt(), descr(name, 112, 96), f"; @launch kernel={name} grid=({NF+NE},1,1) block=(1024,1,1) lds=65536"

def main(out):
    ks = [k1(), k2(), k3(), k4()]
    s = "; generated 5-kernel pipeline: LN1+QKV | attention | out-proj+stats | LN2 out + top2 + gate/up | down + final rows\n"
    for k in ks: s += k[2] + "\n"
    s += '.amdgcn_target "amdgcn-amd-amdhsa--gfx950"\n.text\n'
    for k in ks: s += k[0]
    s += '.section .rodata,"a"\n'
    for k in ks: s += k[1]
    open(out, "w").write(s)

if __name__ == "__main__":
    if len(sys.argv) > 2 and sys.argv[2] == "diag": DIAG = True
    for q in range(1536): assert (q * 2731) >> 16 == q // 24
    main(sys.argv[1] if len(sys.argv) > 1 else "sequential_preLN__softmax_full_mha__moe_arch_mod__prompt.s")
```

```python
import sys, math

WS_Q = 0x000000; WS_K = 0x200000; WS_V = 0x400000; WS_O = 0x600000; WS_H = 0x800000
WS_ST = 0xA00000; WS_ACT = 0xA10000; WS_SEL = 0xA20000
C_SCALE = 0.25 * math.log2(math.e)
import struct
def f32bits(x): return struct.unpack("<I", struct.pack("<f", x))[0]

class E:
    def __init__(self): self.l = []
    def __call__(self, s): self.l.append("    " + s)
    def lab(self, s): self.l.append(s + ":")
    def c(self, s): self.l.append("    ; " + s)
    def nop(self, n):
        while n > 0:
            k = min(n, 16); self(f"s_nop {k-1}"); n -= k
    def txt(self): return "\n".join(self.l) + "\n"

def vr(a, n): return f"v[{a}:{a+n-1}]"
def sr(a, n): return f"s[{a}:{a+n-1}]"

def srd(e, d, lo, hi, size):
    e(f"s_mov_b32 s{d}, s{lo}"); e(f"s_mov_b32 s{d+1}, s{hi}"); e(f"s_mov_b32 s{d+2}, {size:#x}"); e(f"s_mov_b32 s{d+3}, 0x00020000")

def header(e, name):
    e.l.append(f".globl {name}"); e.l.append(".p2align 8"); e.l.append(f".type {name},@function"); e.lab(name)

def descr(name, vg, sg=64):
    if DIAG: vg = max(vg, 128); sg = 102
    vg4 = (vg + 3) // 4 * 4
    return f""".p2align 6
.amdhsa_kernel {name}
  .amdhsa_next_free_vgpr {vg}
  .amdhsa_next_free_sgpr {sg}
  .amdhsa_accum_offset {vg4}
  .amdhsa_group_segment_fixed_size 0
  .amdhsa_kernarg_size 88
  .amdhsa_user_sgpr_count 2
  .amdhsa_user_sgpr_kernarg_segment_ptr 1
  .amdhsa_system_sgpr_workgroup_id_x 1
.end_amdhsa_kernel
"""

DIAG = False
CODEPF = False
WS_DIAG = 0xB00000
def stamp(e, idx):
    if not DIAG: return
    b = 70 + 4*idx
    e(f"s_memtime s[{b}:{b+1}]"); e(f"s_memrealtime s[{b+2}:{b+3}]"); e("s_waitcnt lgkmcnt(0)")
def stamp_out(e, n, kid, srdbase, wavesreg="s20"):
    if not DIAG: return
    e("s_mov_b64 exec, 1")
    e(f"s_lshl_b32 s68, s2, 4"); e(f"s_add_u32 s68, s68, {wavesreg}"); e("s_lshl_b32 s68, s68, 7"); e(f"s_add_u32 s68, s68, {WS_DIAG + kid*0x80000:#x}")
    e("v_mov_b32 v122, 0")
    for i in range(n):
        b = 70 + 4*i
        e(f"v_mov_b32 v124, s{b}"); e(f"v_mov_b32 v125, s{b+1}"); e(f"v_mov_b32 v126, s{b+2}"); e(f"v_mov_b32 v127, s{b+3}")
        e(f"buffer_store_dwordx4 v[124:127], v122, s[{srdbase}:{srdbase+3}], s68 offen offset:{16*i}")
        e("s_nop 1")
    e("s_mov_b64 exec, -1")

def rnd_bf16(e, d, s):
    e(f"v_cvt_pk_bf16_f32 v{d}, v{s}, v{s}")
    e(f"v_lshlrev_b32 v{d}, 16, v{d}")

def ln_scalars(e, sm, sq, t, outs, inv_n):
    mb, sb = outs
    e(f"v_mul_f32 v{t}, {inv_n}, v{sm}")
    e(f"v_mul_f32 v{t+1}, {inv_n}, v{sq}")
    e(f"v_fma_f32 v{t+1}, -v{t}, v{t}, v{t+1}")
    e(f"v_max_f32 v{t+1}, 0, v{t+1}")
    rnd_bf16(e, mb, t)
    rnd_bf16(e, t+1, t+1)
    e(f"v_add_f32 v{t+1}, 0x3727c5ac, v{t+1}")
    rnd_bf16(e, t+1, t+1)
    e(f"v_sqrt_f32 v{t+1}, v{t+1}")
    e("s_nop 0")
    rnd_bf16(e, sb, t+1)

def k1():
    e = E(); name = "k1_kernel"; header(e, name)
    A_BASE = 73728; AP = 1040
    e("s_cmp_ge_u32 s2, 256"); e("s_cbranch_scc1 K1_END")
    e("s_load_dwordx4 s[4:7], s[0:1], 0"); e("s_load_dwordx2 s[8:9], s[0:1], 80")
    e("v_lshrrev_b32 v1, 6, v0"); e("v_and_b32 v2, 63, v0"); e("s_nop 0")
    e("v_readfirstlane_b32 s20, v1")
    e("s_bfe_u32 s21, s2, 0x20001"); e("s_lshl_b32 s21, s21, 3"); e("s_bfe_u32 s22, s2, 0x30003"); e("s_add_u32 s21, s21, s22")
    e("s_and_b32 s22, s2, 1"); e("s_lshl_b32 s22, s22, 2"); e("s_lshr_b32 s23, s2, 6"); e("s_add_u32 s22, s22, s23")
    e("s_waitcnt lgkmcnt(0)")
    srd(e, 12, 4, 5, 2097152); srd(e, 16, 6, 7, 1572864); srd(e, 24, 8, 9, 0x1000000); stamp(e, 0)
    e("v_lshrrev_b32 v4, 3, v2"); e("v_and_b32 v5, 7, v2")
    e("s_cmp_ge_u32 s20, 8"); e("s_cbranch_scc1 K1_NOX")
    e("s_lshl_b32 s23, s21, 6"); e("s_lshl_b32 s31, s20, 3"); e("s_add_u32 s23, s23, s31")
    e("v_add_u32 v3, s23, v4"); e("v_lshlrev_b32 v3, 10, v3"); e("v_lshl_add_u32 v3, v5, 4, v3")
    for i in range(8):
        e(f"buffer_load_dwordx4 {vr(64+4*i,4)}, v3, s[12:15], 0 offen offset:{i*128}")
    e.lab("K1_NOX")
    e("s_lshl_b32 s31, s20, 7")
    e("s_movk_i32 s33, 2731")
    e("s_mul_i32 s34, s22, 384")
    for i in range(2):
        e(f"v_add_u32 v6, s31, v2")
        if i: e(f"v_add_u32 v6, {i*64}, v6")
        e("v_mul_lo_u32 v7, v6, s33"); e("v_lshrrev_b32 v7, 16, v7")
        e("v_mul_u32_u24 v8, 24, v7"); e("v_sub_u32 v8, v6, v8")
        e("v_lshrrev_b32 v9, 2, v8")
        e("v_bfe_u32 v16, v7, 1, 1"); e("v_xor_b32 v9, v9, v16")
        e("v_and_b32 v8, 3, v8")
        e("v_mul_u32_u24 v7, 3072, v7")
        e("v_lshl_add_u32 v7, v9, 6, v7"); e("v_lshl_add_u32 v7, v8, 4, v7")
        e(f"v_add_u32 v{10+i}, s34, v7")
    e("s_lshl_b32 s35, s20, 11")
    def dma_chunk(c):
        buf = c % 3
        e(f"s_mov_b32 s36, {c*196608}")
        for i in range(2):
            e(f"s_add_u32 m0, s35, {buf*24576 + i*1024}")
            e("s_nop 0")
            e(f"buffer_load_dwordx4 v{10+i}, s[16:19], s36 offen lds")
    for c in range(3): dma_chunk(c)
    e("s_cmp_ge_u32 s20, 8"); e("s_cbranch_scc1 K1_NOLN")
    e("s_mov_b32 s38, 0x3f803f80")
    e("v_mov_b32 v17, s38")
    for p in range(4): e(f"v_mov_b32 v{32+p}, 0")
    e("s_lshl_b32 s31, s20, 3")
    e("v_add_u32 v18, s31, v4"); e(f"v_mul_u32_u24 v18, {AP}, v18"); e("v_lshl_add_u32 v18, v5, 4, v18")
    e(f"v_add_u32 v18, {A_BASE}, v18")
    e("s_waitcnt vmcnt(6)"); stamp(e, 1)
    for j in range(32):
        r = 64 + j
        e(f"v_dot2_f32_bf16 v{32+(j&1)}, v{r}, v17, v{32+(j&1)}")
        e(f"v_dot2_f32_bf16 v{34+(j&1)}, v{r}, v{r}, v{34+(j&1)}")
    e("s_nop 2")
    e("v_add_f32 v32, v32, v33"); e("v_add_f32 v34, v34, v35"); e("s_nop 1")
    for m in ("quad_perm:[1,0,3,2]", "quad_perm:[2,3,0,1]", "row_half_mirror"):
        e(f"v_add_f32_dpp v32, v32, v32 {m} row_mask:0xf bank_mask:0xf")
        e(f"v_add_f32_dpp v34, v34, v34 {m} row_mask:0xf bank_mask:0xf")
        e("s_nop 0")
    ln_scalars(e, 32, 34, 48, (50, 51), "0x3b000000")
    e(f"v_rcp_f32 v40, v51"); e("s_nop 0")
    e(f"v_mul_f32 v44, v50, v40"); e(f"v_sub_f32 v44, 0, v44")
    for j in range(32):
        r = 64 + j; t = 52 + 2*(j & 1)
        e(f"v_lshlrev_b32 v{t}, 16, v{r}"); e(f"v_and_b32 v{t+1}, 0xffff0000, v{r}")
        e(f"v_fma_f32 v{t}, v{t}, v40, v44"); e(f"v_fma_f32 v{t+1}, v{t+1}, v40, v44")
        e(f"v_cvt_pk_bf16_f32 v{r}, v{t}, v{t+1}")
        if j % 4 == 3:
            e(f"ds_write_b128 v18, {vr(r-3,4)} offset:{(j//4)*128}")
    e.lab("K1_NOLN")
    e("s_and_b32 s39, s20, 1"); e("s_lshr_b32 s40, s20, 1")
    e("v_and_b32 v19, 31, v2"); e("v_lshrrev_b32 v20, 5, v2")
    e("s_lshl_b32 s31, s39, 5")
    e("v_add_u32 v21, s31, v19"); e(f"v_mul_u32_u24 v21, {AP}, v21"); e("v_lshl_add_u32 v21, v20, 4, v21")
    e(f"v_add_u32 v21, {A_BASE}, v21")
    e("v_bfe_u32 v22, v2, 2, 2")
    e("v_and_b32 v23, 3, v2")
    e("v_bfe_u32 v24, v2, 4, 1")
    e("v_lshl_add_u32 v25, v20, 3, v22")
    e("v_mul_u32_u24 v25, 384, v25")
    e("v_lshl_add_u32 v25, v24, 5, v25"); e("v_lshl_add_u32 v25, v23, 3, v25")
    e("v_lshrrev_b32 v26, 1, v22")
    e("v_xor_b32 v27, s40, v26")
    e("v_lshl_add_u32 v54, v27, 6, v25")
    e("v_add_u32 v55, 49152, v54")
    for r in range(96, 112): e(f"v_mov_b32 v{r}, 0")
    e("s_waitcnt lgkmcnt(0)")
    stamp(e, 2)
    XF = [112, 116]; WF = [120, 124]
    def reads(c, ks, sel):
        buf = c % 3; s = c*4 + ks
        e(f"ds_read_b128 {vr(XF[sel],4)}, v21 offset:{32*s}")
        base = 55 if buf == 2 else 54
        bo = 0 if buf == 2 else buf*24576
        for u in range(2):
            e(f"ds_read_b64_tr_b16 {vr(WF[sel]+2*u,2)}, v{base} offset:{bo + (16*ks+4*u)*384}")
    for c in range(8):
        n = 4 if c == 0 else (0 if c == 7 else 2)
        e(f"s_waitcnt vmcnt({n})"); e("s_barrier")
        reads(c, 0, 0)
        if 1 <= c <= 5: dma_chunk(c+2)
        for ks in range(4):
            sel = ks & 1
            if ks < 3:
                reads(c, ks+1, sel ^ 1); e("s_waitcnt lgkmcnt(3)")
            else:
                e("s_waitcnt lgkmcnt(0)")
            e(f"v_mfma_f32_32x32x16_bf16 {vr(96,16)}, {vr(WF[sel],4)}, {vr(XF[sel],4)}, {vr(96,16)}")
    stamp(e, 3)
    e("s_lshl_b32 s31, s21, 6"); e("s_lshl_b32 s42, s39, 5"); e("s_add_u32 s31, s31, s42")
    e("v_add_u32 v22, s31, v19"); e("v_lshlrev_b32 v22, 5, v22"); e("v_lshl_add_u32 v22, v20, 4, v22")
    e("s_mul_i32 s44, s22, 6"); e("s_add_u32 s44, s44, s40")
    e("s_lshr_b32 s45, s44, 4")
    e("s_and_b32 s46, s44, 15")
    e("s_lshl_b32 s47, s45, 21"); e("s_lshl_b32 s46, s46, 17"); e("s_add_u32 s47, s47, s46")
    e("s_add_u32 s48, s47, 0x10000")
    e("s_cmp_eq_u32 s45, 0"); e(f"s_cselect_b32 s49, {f32bits(C_SCALE):#x}, 1.0")
    e.nop(8)
    a = 96
    for r in range(16): e(f"v_mul_f32 v{a+r}, s49, v{a+r}")
    for r in range(8): e(f"v_cvt_pk_bf16_f32 v{a+r}, v{a+2*r}, v{a+2*r+1}")
    e(f"buffer_store_dwordx4 {vr(a,4)}, v22, s[24:27], s47 offen")
    e(f"buffer_store_dwordx4 {vr(a+4,4)}, v22, s[24:27], s48 offen")
    e("s_cmp_ge_u32 s2, 9"); e("s_cbranch_scc1 K1_NOZ"); e("s_cmp_ge_u32 s20, 4"); e("s_cbranch_scc1 K1_NOZ")
    e("v_mov_b32 v20, 0"); e("v_mov_b32 v21, 0"); e("v_mov_b32 v22, 0"); e("v_mov_b32 v23, 0")
    e("s_lshl_b32 s37, s2, 12"); e("s_cmp_eq_u32 s2, 8"); e("s_cselect_b32 s37, 0x10000, s37"); e(f"s_add_u32 s37, s37, {WS_ST:#x}")
    e("v_lshlrev_b32 v24, 4, v0")
    e("buffer_store_dwordx4 v[20:23], v24, s[24:27], s37 offen")
    e.lab("K1_NOZ")
    e("s_cmp_lg_u32 s2, 9"); e("s_cbranch_scc1 K1_NOS"); e("s_cmp_lg_u32 s20, 0"); e("s_cbranch_scc1 K1_NOS")
    e("s_load_dwordx2 s[4:5], s[0:1], 32"); e("s_waitcnt lgkmcnt(0)")
    srd(e, 52, 4, 5, 1024)
    e("v_lshlrev_b32 v8, 4, v2")
    e("buffer_load_dwordx4 v[12:15], v8, s[52:55], 0 offen")
    e("s_mov_b32 s56, 0x3f803f80"); e("v_mov_b32 v18, s56"); e("v_mov_b32 v10, 0")
    e("s_waitcnt vmcnt(0)")
    for q in range(4): e(f"v_dot2_f32_bf16 v10, v{12+q}, v18, v10")
    e("s_nop 2")
    for ror in (8, 4, 2, 1):
        e(f"v_add_f32_dpp v10, v10, v10 row_ror:{ror} row_mask:0xf bank_mask:0xf"); e("s_nop 1")
    for q in range(4): e(f"v_readlane_b32 s{56+q}, v10, {16*q}")
    e("s_nop 1")
    e("v_mov_b32 v10, s56"); e("v_add_f32 v10, s57, v10"); e("v_add_f32 v10, s58, v10"); e("v_add_f32 v10, s59, v10")
    e("v_mov_b32 v8, 0"); e(f"s_mov_b32 s37, {WS_ST + 0x8000:#x}")
    e("buffer_store_dword v10, v8, s[24:27], s37 offen")
    e.lab("K1_NOS")
    if CODEPF:
        e("s_cmp_lt_u32 s2, 16"); e("s_cbranch_scc1 K1_NOPF"); e("s_cmp_ge_u32 s2, 29"); e("s_cbranch_scc1 K1_NOPF"); e("s_cmp_lg_u32 s20, 11"); e("s_cbranch_scc1 K1_NOPF")
        e("s_getpc_b64 s[56:57]")
        e("s_sub_u32 s58, s2, 16"); e("s_lshl_b32 s58, s58, 10")
        e("v_lshlrev_b32 v8, 4, v2"); e("v_add_u32 v8, s58, v8")
        e("global_load_dwordx4 v[12:15], v8, s[56:57]")
        e.lab("K1_NOPF")
    if DIAG:
        e("s_waitcnt vmcnt(0)"); stamp(e, 4)
        e("s_cmp_ge_u32 s20, 8"); e("s_cbranch_scc1 K1_END")
        stamp_out(e, 5, 1, 24)
    e.lab("K1_END"); e("s_endpgm")
    return e.txt(), descr(name, 128, 64), f"; @launch kernel={name} grid=(256,1,1) block=(768,1,1) lds=140288"

def k2():
    e = E(); name = "k2_kernel"; header(e, name)
    VB = 65536; CB = 131072; XB = 140288
    Q = 8; NM = 16; S = [32, 48]; O = 64; P2 = [80, 112]; KB = [88, 92]; VF = [96, 104]; T = 120
    e("s_cmp_ge_u32 s2, 256"); e("s_cbranch_scc1 K2_END")
    e("s_load_dwordx2 s[4:5], s[0:1], 80")
    e("v_lshrrev_b32 v1, 6, v0"); e("v_and_b32 v2, 63, v0"); e("s_nop 0")
    e("v_readfirstlane_b32 s20, v1")
    e("s_and_b32 s21, s2, 7"); e("s_lshl_b32 s21, s21, 2"); e("s_bfe_u32 s22, s2, 0x20003"); e("s_add_u32 s21, s21, s22")
    e("s_lshr_b32 s22, s2, 5")
    e("s_and_b32 s31, s20, 7"); e("s_lshr_b32 s32, s20, 3")
    e("s_waitcnt lgkmcnt(0)")
    srd(e, 8, 4, 5, 0x1000000); stamp(e, 0)
    e("v_and_b32 v7, 31, v2"); e("v_lshrrev_b32 v6, 5, v2")
    e("v_lshlrev_b32 v3, 5, v7"); e("v_lshl_add_u32 v3, v6, 4, v3")
    e("v_lshlrev_b32 v4, 4, v2")
    e("s_lshl_b32 s23, s21, 16"); e("s_lshl_b32 s24, s22, 13"); e("s_lshl_b32 s25, s31, 10")
    e("s_add_u32 s24, s24, s25"); e("s_add_u32 s24, s24, s23")
    e(f"buffer_load_dwordx4 {vr(Q,4)}, v3, s[8:11], s24 offen")
    e("s_lshl_b32 s33, s32, 15"); e("s_add_u32 s25, s25, s33")
    e(f"s_add_u32 s26, s23, s25"); e(f"s_add_u32 s26, s26, {WS_K:#x}")
    def dma(c):
        e(f"s_add_u32 s27, s26, {c*8192}"); e(f"s_add_u32 s28, s27, {WS_V-WS_K:#x}")
        e(f"s_add_u32 m0, s25, {c*8192}"); e("s_nop 0")
        e("buffer_load_dwordx4 v4, s[8:11], s27 offen lds")
        e(f"s_add_u32 m0, s25, {VB + c*8192}"); e("s_nop 0")
        e("buffer_load_dwordx4 v4, s[8:11], s28 offen lds")
    dma(0); dma(1)
    e(f"v_and_b32 v{T}, 1, v0")
    e(f"v_mov_b32 v{T+4}, 0x3f80"); e(f"v_mov_b32 v{T+5}, 0"); e(f"v_mov_b32 v{T+7}, 0")
    e(f"v_cmp_eq_u32 vcc, 0, v{T}"); e("s_nop 1")
    e(f"v_cndmask_b32 v{T+4}, 0, v{T+4}, vcc"); e(f"v_mov_b32 v{T+6}, v{T+4}")
    e(f"v_lshlrev_b32 v{T+1}, 4, v0"); e(f"v_add_u32 v{T+1}, {CB}, v{T+1}")
    e("s_cmp_ge_u32 s20, 9"); e("s_cbranch_scc1 K2_NOC")
    e(f"ds_write_b128 v{T+1}, {vr(T+4,4)}")
    e.lab("K2_NOC")
    e("v_add_u32 v3, s33, v3")
    e(f"v_bfe_u32 v{T}, v2, 2, 2"); e(f"v_and_b32 v{T+1}, 3, v2"); e(f"v_bfe_u32 v{T+2}, v2, 4, 1")
    e(f"v_lshl_add_u32 v{T+3}, v6, 2, v{T}")
    e(f"v_lshlrev_b32 v{T+3}, 5, v{T+3}"); e(f"v_lshl_add_u32 v{T+3}, v{T+1}, 3, v{T+3}")
    e(f"v_add_u32 v{T+3}, {VB}, v{T+3}"); e(f"v_add_u32 v{T+3}, s33, v{T+3}")
    e(f"v_lshlrev_b32 v{T+4}, 5, v{T}"); e(f"v_lshl_add_u32 v{T+4}, v{T+1}, 3, v{T+4}"); e(f"v_add_u32 v{T+4}, {CB}, v{T+4}")
    e(f"v_cmp_eq_u32 vcc, 0, v{T+2}"); e(f"v_mov_b32 v{T+5}, 0x2000"); e("s_nop 1")
    e(f"v_cndmask_b32 v5, v{T+4}, v{T+3}, vcc")
    e(f"v_cndmask_b32 v1, 0, v{T+5}, vcc")
    for r in range(16): e(f"v_mov_b32 v{O+r}, 0")
    for r in range(8): e(f"v_mov_b32 v{P2[1]+r}, 0"); e(f"v_mov_b32 v{VF[1]+r}, 0")
    e("s_waitcnt vmcnt(2) lgkmcnt(0)"); e("s_barrier"); stamp(e, 1)
    e(f"ds_read_b128 {vr(KB[0],4)}, v3")
    e("s_waitcnt lgkmcnt(0)")
    e(f"v_mfma_f32_32x32x16_bf16 {vr(S[0],16)}, {vr(KB[0],4)}, {vr(Q,4)}, 0")
    e(f"ds_read_b128 {vr(KB[1],4)}, v3 offset:1024")
    for j in range(2):
        for u in range(2):
            e(f"ds_read_b64_tr_b16 {vr(VF[0]+4*j+2*u,2)}, v5 offset:{j*512+u*256}")
    dma(2); dma(3)
    s0 = S[0]
    e(f"v_max3_f32 v{T}, v{s0}, v{s0+1}, v{s0+2}")
    for r in range(3, 15, 2): e(f"v_max3_f32 v{T}, v{T}, v{s0+r}, v{s0+r+1}")
    e(f"v_max_f32 v{T}, v{T}, v{s0+15}")
    e(f"v_mov_b32 v{T+1}, v{T}"); e("s_nop 1")
    e(f"v_permlane32_swap_b32 v{T}, v{T+1}"); e("s_nop 1")
    e(f"v_max_f32 v{T}, v{T}, v{T+1}")
    e(f"v_sub_f32 v{T}, 0, v{T}")
    for r in range(16): e(f"v_mov_b32 v{NM+r}, v{T}")
    e("s_nop 1")
    e(f"v_mfma_f32_32x32x16_bf16 {vr(S[0],16)}, {vr(KB[0],4)}, {vr(Q,4)}, {vr(NM,16)}")
    stamp(e, 2)
    e("s_mov_b32 s30, 0"); e.nop(10)
    e.lab("K2_LOOP")
    for i in range(8):
        cur = i & 1; nx = cur ^ 1; sc = S[cur]; Pc = P2[cur]; Pp = P2[nx]
        if i == 5:
            e("s_cmp_gt_u32 s30, 2"); e("s_cbranch_scc1 K2_NW")
            e("s_cmp_eq_u32 s30, 0"); e("s_cbranch_scc0 K2_W1")
            e("s_waitcnt vmcnt(4)"); e("s_branch K2_WB")
            e.lab("K2_W1"); e("s_cmp_eq_u32 s30, 1"); e("s_cbranch_scc0 K2_W2")
            e("s_waitcnt vmcnt(2)"); e("s_branch K2_WB")
            e.lab("K2_W2"); e("s_waitcnt vmcnt(0)")
            e("s_load_dwordx2 s[40:41], s[0:1], 16"); e("s_load_dwordx4 s[44:47], s[0:1], 40"); e("s_load_dwordx2 s[48:49], s[0:1], 56")
            e("s_lshl_b32 s42, s2, 4"); e("s_add_u32 s42, s42, s20")
            e("s_waitcnt lgkmcnt(0)")
            e("s_cmp_lt_u32 s42, 1792"); e("s_cselect_b32 s52, s44, s46"); e("s_cselect_b32 s53, s45, s47"); e("s_cselect_b32 s43, 0, 1792")
            e("s_cmp_lt_u32 s42, 3584"); e("s_cselect_b32 s52, s52, s48"); e("s_cselect_b32 s53, s53, s49"); e("s_cselect_b32 s43, s43, 3584")
            e("s_mov_b32 s54, 1835008"); e("s_mov_b32 s55, 0x00020000")
            e("s_sub_u32 s43, s42, s43"); e("s_lshl_b32 s43, s43, 10")
            e("buffer_load_dwordx4 v[12:15], v4, s[52:55], s43 offen")
            e("s_add_u32 s43, s42, 512"); e("s_sub_u32 s50, s42, 1280"); e("s_mov_b32 s51, 524288")
            e("s_cmp_lt_u32 s42, 1280"); e("s_cselect_b32 s56, s48, s40"); e("s_cselect_b32 s57, s49, s41"); e("s_cselect_b32 s58, s54, s51")
            e("s_cselect_b32 s43, s43, s50"); e("s_mov_b32 s59, 0x00020000"); e("s_lshl_b32 s43, s43, 10")
            e("buffer_load_dwordx4 v[12:15], v4, s[56:59], s43 offen")
            e.lab("K2_WB"); e("s_barrier")
            e.lab("K2_NW")
        ex = lambda r: e(f"v_exp_f32 v{sc+r}, v{sc+r}")
        cv = lambda p: e(f"v_cvt_pk_bf16_f32 v{Pc+p}, v{sc+2*p}, v{sc+2*p+1}")
        e("s_waitcnt lgkmcnt(4)")
        e(f"v_mfma_f32_32x32x16_bf16 {vr(S[nx],16)}, {vr(KB[nx],4)}, {vr(Q,4)}, {vr(NM,16)}")
        e(f"ds_read_b128 {vr(KB[cur],4)}, v3 offset:{(i+2)*1024}")
        ex(0); ex(1); ex(2); cv(0); ex(3); ex(4); cv(1)
        e(f"v_mfma_f32_32x32x16_bf16 {vr(O,16)}, {vr(VF[nx],4)}, {vr(Pp,4)}, {vr(O,16)}")
        ex(5); ex(6); cv(2); ex(7); ex(8); cv(3); ex(9); ex(10); cv(4)
        e(f"v_mfma_f32_32x32x16_bf16 {vr(O,16)}, {vr(VF[nx]+4,4)}, {vr(Pp+4,4)}, {vr(O,16)}")
        for j in range(2):
            for u in range(2):
                e(f"ds_read_b64_tr_b16 {vr(VF[nx]+4*j+2*u,2)}, v5 offset:{(i+1)*1024 + j*512+u*256}")
        ex(11); ex(12); cv(5); ex(13); ex(14); cv(6); ex(15); e("s_nop 0"); cv(7)
    e("v_add_u32 v3, 0x2000, v3"); e("v_add_u32 v5, v5, v1")
    e("s_add_u32 s30, s30, 1"); e("s_cmp_lt_u32 s30, 4"); e("s_cbranch_scc1 K2_LOOP")
    e("s_waitcnt lgkmcnt(0)")
    e(f"v_mfma_f32_32x32x16_bf16 {vr(O,16)}, {vr(VF[1],4)}, {vr(P2[1],4)}, {vr(O,16)}")
    e(f"v_mfma_f32_32x32x16_bf16 {vr(O,16)}, {vr(VF[1]+4,4)}, {vr(P2[1]+4,4)}, {vr(O,16)}")
    e.nop(16)
    stamp(e, 3)
    e(f"v_mov_b32 v{T}, 0x5d800000")
    e(f"v_cmp_nlt_f32 vcc, v{O+8}, v{T}"); e("s_nop 4")
    e("s_cbranch_vccnz K2_SLOW")
    e.lab("K2_OUT")
    e("s_mul_i32 s34, s31, 2560"); e(f"s_add_u32 s34, s34, {XB}")
    e(f"v_lshl_add_u32 v{T+1}, v2, 2, s34")
    e("s_cmp_eq_u32 s32, 0"); e("s_cbranch_scc1 K2_LOW")
    for r in range(9): e(f"ds_write_b32 v{T+1}, v{O+r} offset:{256*r}")
    e(f"ds_write_b32 v{T+1}, v{NM} offset:{256*9}")
    e("s_waitcnt lgkmcnt(0)"); e("s_barrier")
    if DIAG: stamp_out(e, 4, 2, 8, "s20")
    e("s_endpgm")
    e.lab("K2_LOW")
    e("s_barrier")
    for r in range(10): e(f"ds_read_b32 v{S[0]+r}, v{T+1} offset:{256*r}")
    e("s_waitcnt lgkmcnt(0)")
    e(f"v_min_f32 v{T}, v{NM}, v{S[0]+9}")
    e(f"v_sub_f32 v{T+2}, v{T}, v{NM}"); e(f"v_sub_f32 v{T+3}, v{T}, v{S[0]+9}")
    e(f"v_exp_f32 v{T+2}, v{T+2}"); e(f"v_exp_f32 v{T+3}, v{T+3}"); e("s_nop 0")
    for r in range(9):
        e(f"v_mul_f32 v{O+r}, v{O+r}, v{T+2}"); e(f"v_fmac_f32 v{O+r}, v{S[0]+r}, v{T+3}")
    e(f"v_rcp_f32 v{T}, v{O+8}"); e("s_nop 0")
    for r in range(8): e(f"v_mul_f32 v{O+r}, v{O+r}, v{T}")
    for r in range(4): e(f"v_cvt_pk_bf16_f32 v{P2[0]+r}, v{O+2*r}, v{O+2*r+1}")
    e("s_lshl_b32 s24, s22, 8"); e("s_lshl_b32 s25, s31, 5"); e("s_add_u32 s24, s24, s25")
    e(f"v_add_u32 v{T+1}, s24, v7"); e(f"v_lshlrev_b32 v{T+1}, 10, v{T+1}"); e(f"v_lshl_add_u32 v{T+1}, v6, 4, v{T+1}")
    e("s_lshl_b32 s25, s21, 5"); e(f"s_add_u32 s25, s25, {WS_O:#x}")
    e(f"buffer_store_dwordx4 {vr(P2[0],4)}, v{T+1}, s[8:11], s25 offen")
    if DIAG: stamp_out(e, 4, 2, 8, "s20")
    e("s_endpgm")
    e.lab("K2_SLOW")
    P = P2[0]
    e("v_subrev_u32 v3, 0x8000, v3")
    e(f"v_lshlrev_b32 v{T+5}, 2, v1"); e(f"v_sub_u32 v5, v5, v{T+5}")
    e(f"v_lshrrev_b32 v1, 3, v1")
    e(f"v_sub_f32 v{NM}, 0, v{NM}")
    for r in range(16): e(f"v_mov_b32 v{O+r}, 0")
    e("s_mov_b32 s30, 0")
    e.lab("K2_SL")
    e(f"ds_read_b128 {vr(KB[0],4)}, v3")
    for j in range(2):
        for u in range(2):
            e(f"ds_read_b64_tr_b16 {vr(VF[0]+4*j+2*u,2)}, v5 offset:{j*512+u*256}")
    e("s_waitcnt lgkmcnt(0)")
    e(f"v_mfma_f32_32x32x16_bf16 {vr(S[0],16)}, {vr(KB[0],4)}, {vr(Q,4)}, 0")
    e.nop(16)
    e(f"v_max3_f32 v{T}, v{s0}, v{s0+1}, v{s0+2}")
    for r in range(3, 15, 2): e(f"v_max3_f32 v{T}, v{T}, v{s0+r}, v{s0+r+1}")
    e(f"v_max3_f32 v{T}, v{T}, v{s0+15}, v{NM}")
    e(f"v_mov_b32 v{T+1}, v{T}"); e("s_nop 1")
    e(f"v_permlane32_swap_b32 v{T}, v{T+1}"); e("s_nop 1")
    e(f"v_max_f32 v{T}, v{T}, v{T+1}")
    e(f"v_sub_f32 v{T+1}, v{NM}, v{T}"); e(f"v_exp_f32 v{T+1}, v{T+1}"); e(f"v_mov_b32 v{NM}, v{T}")
    for r in range(16): e(f"v_mul_f32 v{O+r}, v{O+r}, v{T+1}")
    for r in range(16): e(f"v_sub_f32 v{s0+r}, v{s0+r}, v{T}")
    for r in range(16): e(f"v_exp_f32 v{s0+r}, v{s0+r}")
    e("s_nop 0")
    for p in range(8): e(f"v_cvt_pk_bf16_f32 v{P+p}, v{s0+2*p}, v{s0+2*p+1}")
    e("s_nop 1")
    e(f"v_mfma_f32_32x32x16_bf16 {vr(O,16)}, {vr(VF[0],4)}, {vr(P,4)}, {vr(O,16)}")
    e(f"v_mfma_f32_32x32x16_bf16 {vr(O,16)}, {vr(VF[0]+4,4)}, {vr(P+4,4)}, {vr(O,16)}")
    e("v_add_u32 v3, 0x400, v3"); e("v_add_u32 v5, v5, v1")
    e.nop(16)
    e("s_add_u32 s30, s30, 1"); e("s_cmp_lt_u32 s30, 32"); e("s_cbranch_scc1 K2_SL")
    e(f"v_sub_f32 v{NM}, 0, v{NM}")
    e("s_branch K2_OUT")
    e.lab("K2_END"); e("s_endpgm")
    return e.txt(), descr(name, 128, 64), f"; @launch kernel={name} grid=(256,1,1) block=(1024,1,1) lds=160768"

def k3():
    e = E(); name = "k3_kernel"; header(e, name)
    OB = 65536; AP = 1040
    e("s_cmp_ge_u32 s2, 256"); e("s_cbranch_scc1 K3_END")
    e("s_load_dwordx2 s[4:5], s[0:1], 0"); e("s_load_dwordx2 s[6:7], s[0:1], 16"); e("s_load_dwordx2 s[8:9], s[0:1], 80"); e("s_load_dwordx2 s[10:11], s[0:1], 32")
    e("v_lshrrev_b32 v1, 6, v0"); e("v_and_b32 v2, 63, v0"); e("s_nop 0")
    e("v_readfirstlane_b32 s20, v1")
    e("s_and_b32 s21, s2, 7"); e("s_lshl_b32 s21, s21, 2"); e("s_bfe_u32 s22, s2, 0x20003"); e("s_add_u32 s21, s21, s22"); e("s_lshr_b32 s22, s2, 5")
    e("s_and_b32 s39, s20, 1"); e("s_lshr_b32 s40, s20, 1")
    e("s_waitcnt lgkmcnt(0)")
    srd(e, 12, 4, 5, 2097152); srd(e, 16, 6, 7, 524288); srd(e, 24, 8, 9, 0x1000000); srd(e, 44, 10, 11, 1024); stamp(e, 0)
    e("v_lshrrev_b32 v4, 3, v2"); e("v_lshlrev_b32 v4, 10, v4")
    e("v_bfe_u32 v5, v2, 2, 1"); e("v_bfe_u32 v6, v2, 4, 1"); e("v_xor_b32 v5, v5, v6")
    e("v_lshl_add_u32 v4, v5, 6, v4"); e("v_and_b32 v5, 3, v2"); e("v_lshl_add_u32 v4, v5, 4, v4")
    e("s_lshl_b32 s31, s22, 7"); e("v_add_u32 v4, s31, v4")
    e("v_lshlrev_b32 v3, 4, v2")
    e("s_lshl_b32 s32, s20, 17")
    e("s_lshl_b32 s33, s20, 14")
    e("s_lshl_b32 s35, s21, 16"); e("s_lshl_b32 s36, s20, 14"); e("s_add_u32 s35, s35, s36"); e(f"s_add_u32 s35, s35, {WS_O:#x}")
    e(f"s_mul_i32 s36, s20, {16*AP}"); e(f"s_add_u32 s36, s36, {OB}")
    for i in range(16):
        e(f"s_add_u32 s34, s35, {i*1024}"); e(f"s_add_u32 m0, s36, {i*AP}"); e("s_nop 0")
        e("buffer_load_dwordx4 v3, s[24:27], s34 offen lds")
        e(f"s_add_u32 s34, s32, {i*8192}"); e(f"s_add_u32 m0, s33, {i*1024}"); e("s_nop 0")
        e("buffer_load_dwordx4 v4, s[16:19], s34 offen lds")
    e("v_and_b32 v19, 31, v2"); e("v_lshrrev_b32 v20, 5, v2")
    e("s_lshl_b32 s31, s21, 6"); e("s_lshl_b32 s35, s39, 5"); e("s_add_u32 s31, s31, s35")
    e("v_add_u32 v21, s31, v19")
    e("v_lshlrev_b32 v22, 10, v21")
    e("s_lshl_b32 s37, s22, 7"); e("s_lshl_b32 s38, s40, 6"); e("s_add_u32 s37, s37, s38")
    e("v_lshlrev_b32 v23, 3, v20"); e("v_add_u32 v23, s37, v23")
    e("v_add_u32 v24, v22, v23")
    for g in range(4):
        e(f"buffer_load_dwordx2 {vr(32+2*g,2)}, v24, s[12:15], 0 offen offset:{16*g}")
    for g in range(4):
        e(f"buffer_load_dwordx2 {vr(40+2*g,2)}, v23, s[44:47], 0 offen offset:{16*g}")
    e("v_add_u32 v26, s35, v19"); e(f"v_mul_u32_u24 v26, {AP}, v26"); e("v_lshl_add_u32 v26, v20, 4, v26"); e(f"v_add_u32 v26, {OB}, v26")
    e("v_bfe_u32 v5, v2, 2, 2"); e("v_and_b32 v6, 3, v2"); e("v_bfe_u32 v7, v2, 4, 1")
    e("v_lshl_add_u32 v25, v20, 3, v5"); e("v_lshlrev_b32 v25, 7, v25")
    e("v_lshl_add_u32 v25, v7, 5, v25"); e("v_lshl_add_u32 v25, v6, 3, v25")
    e("v_lshrrev_b32 v5, 1, v5"); e("v_xor_b32 v5, s40, v5"); e("v_lshl_add_u32 v25, v5, 6, v25")
    for r in range(16): e(f"v_mov_b32 v{48+r}, 0")
    e("s_waitcnt vmcnt(8)"); e("s_barrier"); stamp(e, 1)
    NB = 4
    WF = [64 + 8*i for i in range(NB)]; XF = [68 + 8*i for i in range(NB)]
    def rd(s):
        sel = s % NB
        e(f"ds_read_b128 {vr(XF[sel],4)}, v26 offset:{32*s}")
        for u in range(2):
            e(f"ds_read_b64_tr_b16 {vr(WF[sel]+2*u,2)}, v25 offset:{(16*s+4*u)*128}")
    for s in range(NB-1): rd(s)
    for s in range(32):
        sel = s % NB
        if s + NB - 1 < 32: rd(s + NB - 1)
        rem = min(31 - s, NB - 1)
        e(f"s_waitcnt lgkmcnt({3*rem})")
        e(f"v_mfma_f32_32x32x16_bf16 {vr(48,16)}, {vr(WF[sel],4)}, {vr(XF[sel],4)}, {vr(48,16)}")
    stamp(e, 2)
    e("s_mov_b32 s41, 0x3f803f80"); e("v_mov_b32 v8, s41")
    e("v_mov_b32 v9, 0"); e("v_mov_b32 v10, 0"); e("v_mov_b32 v11, 0")
    e("s_waitcnt vmcnt(0)")
    e.nop(12)
    for p in range(8):
        a = 48 + 2*p; x = 32 + p
        e(f"v_cvt_pk_bf16_f32 v12, v{a}, v{a+1}")
        e("v_lshlrev_b32 v13, 16, v12"); e("v_and_b32 v14, 0xffff0000, v12")
        e(f"v_lshlrev_b32 v15, 16, v{x}"); e(f"v_and_b32 v16, 0xffff0000, v{x}")
        e("v_add_f32 v13, v13, v15"); e("v_add_f32 v14, v14, v16")
        e(f"v_cvt_pk_bf16_f32 v{x}, v13, v14")
        e(f"v_dot2_f32_bf16 v9, v{x}, v8, v9")
        e(f"v_dot2_f32_bf16 v10, v{x}, v{x}, v10")
        e(f"v_dot2_f32_bf16 v11, v{x}, v{40+p}, v11")
    e(f"s_mov_b32 s36, {WS_H:#x}")
    for g in range(4):
        e(f"buffer_store_dwordx2 {vr(32+2*g,2)}, v24, s[24:27], s36 offen offset:{16*g}")
    e("s_nop 2")
    for q in range(3): e(f"v_mov_b32 v{12+q}, v{9+q}")
    e("s_nop 1")
    for q in range(3): e(f"v_permlane32_swap_b32 v{9+q}, v{12+q}")
    e("s_nop 1")
    for q in range(3): e(f"v_add_f32 v{9+q}, v{9+q}, v{12+q}")
    e("v_lshlrev_b32 v15, 4, v21")
    e(f"s_mov_b32 s36, {WS_ST:#x}")
    e("s_mov_b64 exec, 0xffffffff")
    for q in range(3):
        e(f"buffer_atomic_add_f32 v{9+q}, v15, s[24:27], s36 offen offset:{4*q}")
    if DIAG:
        e("s_waitcnt vmcnt(0)"); stamp(e, 3); stamp_out(e, 4, 3, 24)
    e.lab("K3_END"); e("s_endpgm")
    return e.txt(), descr(name, 96, 64), f"; @launch kernel={name} grid=(256,1,1) block=(256,1,1) lds=132096"

def ln2_elem(e, x, mb, rinv, t):
    e(f"v_lshlrev_b32 v{t}, 16, v{x}"); e(f"v_and_b32 v{t+1}, 0xffff0000, v{x}")
    e(f"v_sub_f32 v{t+2}, v{t}, v{mb}"); e(f"v_sub_f32 v{t+3}, v{t+1}, v{mb}")
    e(f"v_cvt_pk_bf16_f32 v{t+2}, v{t+2}, v{t+3}")
    e(f"v_and_b32 v{t+3}, 0xffff0000, v{t+2}"); e(f"v_lshlrev_b32 v{t+2}, 16, v{t+2}")
    e(f"v_mul_f32 v{t+2}, v{t+2}, v{rinv}"); e(f"v_mul_f32 v{t+3}, v{t+3}, v{rinv}")
    e(f"v_cvt_pk_bf16_f32 v{t+2}, v{t+2}, v{t+3}")

WS_Y = 0xA10000
def k4():
    e = E(); name = "k4_kernel"; header(e, name)
    NF = 56; NE = 32
    L_XS = 1024; L_H = 5120; L_G = 8192; L_S2 = 40960; L_ACT = 45056; L_D = 49152; L_FLAG = 8064
    e(f"s_cmp_ge_u32 s2, {NF+NE}"); e("s_cbranch_scc1 K4_END")
    e("s_load_dwordx2 s[4:5], s[0:1], 80"); e("s_load_dwordx4 s[8:11], s[0:1], 64")
    e("s_load_dwordx8 s[44:51], s[0:1], 32")
    e("v_lshrrev_b32 v1, 6, v0"); e("v_and_b32 v2, 63, v0"); e("s_nop 0")
    e("v_readfirstlane_b32 s20, v1")
    e("s_waitcnt lgkmcnt(0)")
    srd(e, 12, 4, 5, 0x1000000); srd(e, 16, 8, 9, 2097152); srd(e, 24, 44, 45, 1024)
    srd(e, 28, 46, 47, 1835008); srd(e, 32, 48, 49, 1835008); srd(e, 36, 50, 51, 1835008); srd(e, 40, 10, 11, 256)
    stamp(e, 0)
    e("v_lshlrev_b32 v7, 4, v0"); e("v_mov_b32 v3, 0"); e("v_mov_b32 v6, 0"); e("v_mov_b32 v11, 0")
    e(f"s_mov_b32 s52, {WS_ST:#x}"); e(f"s_mov_b32 s53, {WS_ST + 16384:#x}"); e(f"s_mov_b32 s54, {WS_H:#x}")
    e("buffer_load_dwordx4 v[64:67], v7, s[12:15], s52 offen")
    e("buffer_load_dwordx4 v[68:71], v7, s[12:15], s53 offen")
    e(f"s_mov_b32 s55, {WS_ST + 0x8000:#x}")
    e("s_load_dword s66, s[4:5], s55")
    e(f"s_cmp_lt_u32 s2, {NF}"); e("s_cbranch_scc1 K4_LF")
    e(f"s_sub_u32 s21, s2, {NF}"); e("s_lshl_b32 s21, s21, 6"); e("s_lshl_b32 s22, s20, 2"); e("s_add_u32 s21, s21, s22")
    e("v_lshrrev_b32 v4, 4, v2"); e("v_and_b32 v5, 15, v2")
    e("v_add_u32 v6, s21, v4")
    e("v_lshlrev_b32 v3, 10, v6"); e("v_lshl_add_u32 v3, v5, 4, v3")
    e("v_lshlrev_b32 v9, 4, v6")
    e("buffer_load_dwordx4 v[72:75], v9, s[12:15], s52 offen")
    for i in range(4):
        e(f"buffer_load_dwordx4 {vr(80+4*i,4)}, v3, s[12:15], s54 offen offset:{256*i}")
    e("s_waitcnt vmcnt(5) lgkmcnt(0)"); e("s_branch K4_TOP")
    e.lab("K4_LF")
    e("s_waitcnt vmcnt(0) lgkmcnt(0)")
    e.lab("K4_TOP"); stamp(e, 1)
    e("s_mov_b32 s56, 0xfffff800")
    for i in range(2):
        b = 64 + 4*i; t = 18 + 8*i
        e(f"v_mul_f32 v{t}, 0x3b000000, v{b}")
        e(f"v_mul_f32 v{t+1}, 0x3b000000, v{b+1}")
        e(f"v_fma_f32 v{t+1}, -v{t}, v{t}, v{t+1}")
        e(f"v_max_f32 v{t+1}, 0, v{t+1}")
        e(f"v_add_f32 v{t+1}, 0x3727c5ac, v{t+1}")
        e(f"v_rsq_f32 v{t+1}, v{t+1}")
        e(f"v_fma_f32 v{t+4}, -v{t}, s66, v{b+2}")
        e(f"v_sub_u32 v{t+5}, {2047 - 1024*i}, v0")
        e(f"v_mul_f32 v{t+4}, v{t+4}, v{t+1}")
        e(f"v_ashrrev_i32 v{t+2}, 31, v{t+4}")
        e(f"v_or_b32 v{t+2}, 0x80000000, v{t+2}")
        e(f"v_xor_b32 v{t+4}, v{t+4}, v{t+2}")
        e(f"v_and_or_b32 v{t+4}, v{t+4}, s56, v{t+5}")
    e("v_max_u32 v16, v22, v30"); e("v_min_u32 v17, v22, v30")
    def red16():
        for ror in (8, 4, 2, 1):
            e("s_nop 1")
            e(f"v_mov_b32_dpp v18, v16 row_ror:{ror} row_mask:0xf bank_mask:0xf")
            e(f"v_mov_b32_dpp v19, v17 row_ror:{ror} row_mask:0xf bank_mask:0xf")
            e("v_min_u32 v20, v16, v18"); e("v_max_u32 v16, v16, v18"); e("v_max3_u32 v17, v17, v19, v20")
    red16()
    e("v_lshrrev_b32 v18, 4, v0"); e("v_lshlrev_b32 v18, 3, v18")
    e("ds_write_b64 v18, v[16:17]")
    e("s_waitcnt lgkmcnt(0)"); e("s_barrier")
    e("v_lshlrev_b32 v18, 3, v2")
    e("ds_read_b64 v[16:17], v18")
    e("s_waitcnt lgkmcnt(0)")
    red16()
    e("s_nop 0")
    for q in range(4):
        e(f"v_readlane_b32 s{56+2*q}, v16, {16*q}"); e(f"v_readlane_b32 s{57+2*q}, v17, {16*q}")
    def smerge(d, a, b):
        e(f"s_min_u32 s64, s{a}, s{b}"); e(f"s_max_u32 s65, s{a+1}, s{b+1}"); e(f"s_max_u32 s{d}, s{a}, s{b}"); e(f"s_max_u32 s{d+1}, s64, s65")
    smerge(56, 56, 58); smerge(60, 60, 62); smerge(56, 56, 60)
    e("s_and_b32 s56, s56, 0x7ff"); e("s_and_b32 s57, s57, 0x7ff")
    e("s_sub_u32 s56, 2047, s56"); e("s_sub_u32 s57, 2047, s57")
    stamp(e, 2)
    e(f"s_cmp_lt_u32 s2, {NF}"); e("s_cbranch_scc1 K4_FFN")
    e("s_waitcnt vmcnt(0)")
    ln_scalars(e, 72, 73, 12, (14, 15), "0x3b000000")
    e("v_rcp_f32 v15, v15"); e("s_nop 0")
    for j in range(16):
        x = 80 + j
        ln2_elem(e, x, 14, 15, 32)
        e("v_and_b32 v35, 0xffff0000, v34"); e("v_lshlrev_b32 v34, 16, v34")
        e("v_add_f32 v34, v32, v34"); e("v_add_f32 v35, v33, v35")
        e(f"v_cvt_pk_bf16_f32 v{x}, v34, v35")
    e("v_cmp_ne_u32 vcc, s56, v6"); e("v_cmp_ne_u32 s[60:61], s57, v6"); e("s_nop 1")
    e("s_and_b64 s[60:61], s[60:61], vcc"); e("s_and_b64 exec, exec, s[60:61]")
    e("s_cbranch_execz K4_END")
    for i in range(4):
        e(f"buffer_store_dwordx4 {vr(80+4*i,4)}, v3, s[16:19], 0 offen offset:{256*i}")
    e("s_endpgm")
    e.lab("K4_FFN")
    e("s_cmp_ge_u32 s20, 8"); e("s_cbranch_scc1 K4_NOXL")
    e("s_cmp_lt_u32 s20, 4"); e("s_cselect_b32 s58, s56, s57")
    e("s_lshl_b32 s59, s58, 4"); e("s_add_u32 s59, s59, s52")
    e("s_lshl_b32 s60, s58, 10"); e("s_add_u32 s60, s60, s54")
    e("v_and_b32 v19, 255, v0"); e("v_lshlrev_b32 v20, 2, v19"); e("v_mov_b32 v21, 0")
    e("buffer_load_dwordx4 v[24:27], v21, s[12:15], s59 offen")
    e("buffer_load_dword v28, v20, s[12:15], s60 offen")
    e("buffer_load_dword v30, v20, s[24:27], 0 offen")
    e("v_lshrrev_b32 v41, 8, v0")
    e.lab("K4_NOXL")
    e("s_barrier")
    e("v_lshrrev_b32 v4, 4, v0"); e("v_and_b32 v5, 15, v0")
    e("v_mul_u32_u24 v3, 3584, v4"); e("v_lshl_add_u32 v3, v5, 2, v3")
    e("s_lshl_b32 s21, s2, 6"); e("v_add_u32 v3, s21, v3")
    for i in range(8):
        e(f"s_mov_b32 s55, {i*64*3584}")
        e(f"buffer_load_dword v{80+i}, v3, s[28:31], s55 offen")
        e(f"buffer_load_dword v{88+i}, v3, s[32:35], s55 offen")
    e("v_lshrrev_b32 v6, 8, v0"); e("v_and_b32 v9, 255, v0")
    e("v_lshlrev_b32 v11, 13, v6"); e("v_lshl_add_u32 v11, v9, 2, v11")
    e("s_lshl_b32 s21, s2, 15"); e("s_add_u32 s22, s21, 4096")
    for i in range(8):
        e(f"buffer_load_dword v{96+i}, v11, s[36:39], {'s21' if i < 4 else 's22'} offen offset:{(i&3)*1024}")
    e("s_cmp_ge_u32 s20, 8"); e("s_cbranch_scc1 K4_NOXS")
    e("s_waitcnt vmcnt(24)")
    ln_scalars(e, 24, 25, 32, (34, 35), "0x3b000000")
    e("v_rcp_f32 v35, v35"); e("s_nop 0")
    ln2_elem(e, 28, 34, 35, 36)
    e("v_mov_b32 v40, 0"); e("v_dot2_f32_bf16 v40, v38, v30, v40")
    e("v_lshlrev_b32 v42, 2, v41"); e("v_lshl_add_u32 v42, v19, 4, v42")
    e("v_lshlrev_b32 v43, 16, v38"); e("v_and_b32 v44, 0xffff0000, v38")
    e(f"ds_write_b32 v42, v43 offset:{L_XS}"); e(f"ds_write_b32 v42, v44 offset:{L_XS+8}")
    e("v_lshlrev_b32 v45, 2, v0")
    e(f"ds_write_b32 v45, v28 offset:{L_H}")
    for ror in (8, 4, 2, 1):
        e("s_nop 1"); e(f"v_add_f32_dpp v40, v40, v40 row_ror:{ror} row_mask:0xf bank_mask:0xf")
    e("v_lshrrev_b32 v45, 4, v0"); e("v_lshlrev_b32 v45, 2, v45")
    e("ds_write_b32 v45, v40 offset:512")
    e.lab("K4_NOXS")
    e("s_waitcnt lgkmcnt(0)"); e("s_barrier"); stamp(e, 3)
    for r in range(104, 112): e(f"v_mov_b32 v{r}, 0")
    e("v_lshlrev_b32 v41, 3, v4")
    for i in range(8):
        e(f"ds_read_b64 {vr(48+2*i,2)}, v41 offset:{L_XS + i*512}")
    for i in range(8):
        e(f"s_waitcnt vmcnt({22-2*i}) lgkmcnt({7-i})")
        for m in range(2):
            w = 80 + 8*m + i; t = 44 + 2*m
            e(f"v_lshlrev_b32 v{t}, 16, v{w}"); e(f"v_and_b32 v{t+1}, 0xffff0000, v{w}")
            for tk in range(2):
                a = 104 + m*4 + tk*2
                e(f"v_fmac_f32 v{a}, v{t}, v{48+2*i+tk}"); e(f"v_fmac_f32 v{a+1}, v{t+1}, v{48+2*i+tk}")
    e("v_lshlrev_b32 v41, 5, v0")
    e(f"ds_write_b128 v41, v[104:107] offset:{L_G}"); e(f"ds_write_b128 v41, v[108:111] offset:{L_G+16}")
    e("s_waitcnt lgkmcnt(0)"); e("s_barrier")
    e("v_and_b32 v41, 127, v0"); e("v_lshrrev_b32 v42, 7, v0")
    e("v_lshlrev_b32 v43, 12, v42"); e("v_lshl_add_u32 v43, v41, 2, v43")
    for g in range(8): e(f"ds_read_b32 v{48+g}, v43 offset:{L_G + 512*g}")
    e("s_waitcnt lgkmcnt(0)")
    for g in range(1, 8): e(f"v_add_f32 v48, v48, v{48+g}")
    e("v_lshlrev_b32 v43, 2, v0")
    e(f"ds_write_b32 v43, v48 offset:{L_S2}")
    e("s_waitcnt lgkmcnt(0)"); e("s_barrier")
    e("s_cmp_lg_u32 s20, 0"); e("s_cbranch_scc1 K4_NS3")
    e("v_lshrrev_b32 v41, 5, v2"); e("v_and_b32 v42, 31, v2"); e("v_lshrrev_b32 v43, 1, v42"); e("v_and_b32 v44, 1, v42")
    e("v_lshlrev_b32 v45, 5, v43"); e("v_lshl_add_u32 v45, v41, 3, v45"); e("v_lshl_add_u32 v45, v44, 2, v45")
    for g in range(8):
        e(f"ds_read_b32 v{48+g}, v45 offset:{L_S2 + 512*g}")
        e(f"ds_read_b32 v{56+g}, v45 offset:{L_S2 + 512*g + 16}")
    e("s_waitcnt lgkmcnt(0)")
    for g in range(1, 8):
        e(f"v_add_f32 v48, v48, v{48+g}"); e(f"v_add_f32 v56, v56, v{56+g}")
    rnd_bf16(e, 48, 48); rnd_bf16(e, 56, 56)
    e("v_mul_f32 v49, 0xbfb8aa3b, v48"); e("v_exp_f32 v49, v49"); e("s_nop 0")
    e("v_add_f32 v49, 1.0, v49"); e("v_rcp_f32 v49, v49"); e("s_nop 0")
    e("v_mul_f32 v49, v48, v49"); rnd_bf16(e, 49, 49)
    e("v_mul_f32 v49, v49, v56"); rnd_bf16(e, 49, 49)
    e("v_lshlrev_b32 v50, 3, v42"); e("v_lshl_add_u32 v50, v41, 2, v50")
    e(f"ds_write_b32 v50, v49 offset:{L_ACT}")
    e("s_waitcnt lgkmcnt(0)")
    e.lab("K4_NS3")
    e("s_barrier"); stamp(e, 4)
    e("v_lshlrev_b32 v41, 6, v6")
    for i in range(8): e(f"ds_read_b64 {vr(48+2*i,2)}, v41 offset:{L_ACT + 8*i}")
    for r in range(104, 108): e(f"v_mov_b32 v{r}, 0")
    for i in range(8):
        e(f"s_waitcnt vmcnt({7-i}) lgkmcnt({7-i})")
        w = 96 + i; t = 44 + 2*(i & 1)
        e(f"v_lshlrev_b32 v{t}, 16, v{w}"); e(f"v_and_b32 v{t+1}, 0xffff0000, v{w}")
        for tk in range(2):
            a = 104 + tk*2
            e(f"v_fmac_f32 v{a}, v{t}, v{48+2*i+tk}"); e(f"v_fmac_f32 v{a+1}, v{t+1}, v{48+2*i+tk}")
    e("v_lshlrev_b32 v41, 4, v0")
    e(f"ds_write_b128 v41, v[104:107] offset:{L_D}")
    e("s_waitcnt lgkmcnt(0)"); e("s_barrier")
    e("v_lshrrev_b32 v41, 9, v0"); e("v_and_b32 v42, 511, v0"); e("v_lshrrev_b32 v43, 1, v42"); e("v_and_b32 v44, 1, v42")
    e("v_lshlrev_b32 v45, 4, v43"); e("v_lshl_add_u32 v45, v41, 3, v45"); e("v_lshl_add_u32 v45, v44, 2, v45")
    for g in range(4): e(f"ds_read_b32 v{48+g}, v45 offset:{L_D + 4096*g}")
    e("s_waitcnt lgkmcnt(0)")
    e("v_add_f32 v48, v48, v49"); e("v_add_f32 v50, v50, v51"); e("v_add_f32 v48, v48, v50")
    e("v_lshlrev_b32 v46, 2, v0"); e(f"s_mov_b32 s58, {WS_Y:#x}")
    e("buffer_atomic_add_f32 v48, v46, s[12:15], s58 offen")
    e("s_waitcnt vmcnt(0)"); e("s_barrier"); stamp(e, 5)
    e("s_cmp_lg_u32 s20, 0"); e("s_cbranch_scc1 K4_NCNT")
    e("v_mov_b32 v48, 1"); e("v_mov_b32 v49, 0"); e(f"v_mov_b32 v50, {L_FLAG}")
    e("s_mov_b64 exec, 1")
    e("buffer_atomic_add v48, v49, s[40:43], 0 offen sc0")
    e("s_waitcnt vmcnt(0)")
    e("ds_write_b32 v50, v48")
    e("s_mov_b64 exec, -1")
    e("s_waitcnt lgkmcnt(0)")
    e.lab("K4_NCNT")
    e("s_barrier")
    e(f"v_mov_b32 v50, {L_FLAG}"); e("ds_read_b32 v48, v50"); e("s_waitcnt lgkmcnt(0)")
    e("v_readfirstlane_b32 s59, v48")
    if DIAG:
        stamp(e, 6); stamp_out(e, 7, 4, 12)
    e(f"s_cmp_lg_u32 s59, {NF-1}"); e("s_cbranch_scc1 K4_END")
    e("v_mov_b32 v48, 0")
    e("buffer_atomic_add_f32 v48, v46, s[12:15], s58 offen sc0")
    e("v_lshlrev_b32 v47, 6, v41")
    for q in range(4): e(f"ds_read_b128 {vr(52+4*q,4)}, v47 offset:{512 + 16*q}")
    e("v_lshlrev_b32 v47, 3, v42"); e("v_lshl_add_u32 v47, v41, 2, v47")
    e(f"ds_read_b32 v49, v47 offset:{L_XS}")
    e("v_lshlrev_b32 v47, 1, v0")
    e(f"ds_read_u16 v50, v47 offset:{L_H}")
    e("s_waitcnt lgkmcnt(0)")
    for q in range(1, 16): e(f"v_add_f32 v52, v52, v{52+q}")
    rnd_bf16(e, 52, 52)
    e("v_mul_f32 v52, 0xbfb8aa3b, v52"); e("v_exp_f32 v52, v52"); e("s_nop 0")
    e("v_add_f32 v52, 1.0, v52"); e("v_rcp_f32 v52, v52"); e("s_nop 0")
    rnd_bf16(e, 52, 52)
    e("v_lshlrev_b32 v50, 16, v50")
    e("s_cmp_lt_u32 s20, 8"); e("s_cselect_b32 s60, s56, s57"); e("s_lshl_b32 s60, s60, 10")
    e("v_lshlrev_b32 v51, 1, v42")
    e("s_waitcnt vmcnt(0)")
    rnd_bf16(e, 48, 48)
    e("v_mul_f32 v48, v48, v52"); rnd_bf16(e, 48, 48)
    e("v_add_f32 v48, v49, v48"); rnd_bf16(e, 48, 48)
    e("v_add_f32 v48, v50, v48"); e("v_cvt_pk_bf16_f32 v48, v48, v48")
    e("buffer_store_short v48, v51, s[16:19], s60 offen")
    e.lab("K4_END"); e("s_endpgm")
    return e.txt(), descr(name, 112, 96), f"; @launch kernel={name} grid=({NF+NE},1,1) block=(1024,1,1) lds=65536"

def main(out):
    ks = [k1(), k2(), k3(), k4()]
    s = "; generated 5-kernel pipeline: LN1+QKV | attention | out-proj+stats | LN2 out + top2 + gate/up | down + final rows\n"
    for k in ks: s += k[2] + "\n"
    s += '.amdgcn_target "amdgcn-amd-amdhsa--gfx950"\n.text\n'
    for k in ks: s += k[0]
    s += '.section .rodata,"a"\n'
    for k in ks: s += k[1]
    open(out, "w").write(s)

if __name__ == "__main__":
    if len(sys.argv) > 2 and sys.argv[2] == "diag": DIAG = True
    if len(sys.argv) > 2 and sys.argv[2] == "codepf": CODEPF = True
    for q in range(1536): assert (q * 2731) >> 16 == q // 24
    main(sys.argv[1] if len(sys.argv) > 1 else "sequential_preLN__softmax_full_mha__moe_arch_mod__prompt.s")
```

```python
import sys, math

WS_Q = 0x000000; WS_K = 0x200000; WS_V = 0x400000; WS_O = 0x600000; WS_H = 0x800000
WS_ST = 0xA00000; WS_ACT = 0xA10000; WS_SEL = 0xA20000
C_SCALE = 0.25 * math.log2(math.e)
import struct
def f32bits(x): return struct.unpack("<I", struct.pack("<f", x))[0]

class E:
    def __init__(self): self.l = []
    def __call__(self, s): self.l.append("    " + s)
    def lab(self, s): self.l.append(s + ":")
    def c(self, s): self.l.append("    ; " + s)
    def nop(self, n):
        while n > 0:
            k = min(n, 16); self(f"s_nop {k-1}"); n -= k
    def txt(self): return "\n".join(self.l) + "\n"

def vr(a, n): return f"v[{a}:{a+n-1}]"
def sr(a, n): return f"s[{a}:{a+n-1}]"

def srd(e, d, lo, hi, size):
    e(f"s_mov_b32 s{d}, s{lo}"); e(f"s_mov_b32 s{d+1}, s{hi}"); e(f"s_mov_b32 s{d+2}, {size:#x}"); e(f"s_mov_b32 s{d+3}, 0x00020000")

def header(e, name):
    e.l.append(f".globl {name}"); e.l.append(".p2align 8"); e.l.append(f".type {name},@function"); e.lab(name)

def descr(name, vg, sg=64):
    if DIAG: vg = max(vg, 128); sg = 102
    vg4 = (vg + 3) // 4 * 4
    return f""".p2align 6
.amdhsa_kernel {name}
  .amdhsa_next_free_vgpr {vg}
  .amdhsa_next_free_sgpr {sg}
  .amdhsa_accum_offset {vg4}
  .amdhsa_group_segment_fixed_size 0
  .amdhsa_kernarg_size 88
  .amdhsa_user_sgpr_count 2
  .amdhsa_user_sgpr_kernarg_segment_ptr 1
  .amdhsa_system_sgpr_workgroup_id_x 1
.end_amdhsa_kernel
"""

DIAG = False
CODEPF = False
TL = False
def tl_start(e, k, srdb, vt):
    if not TL: return
    e("s_cmp_lg_u32 s2, 0"); e(f"s_cbranch_scc1 TL{k}"); e("s_cmp_lg_u32 s20, 0"); e(f"s_cbranch_scc1 TL{k}")
    e("s_memrealtime s[60:61]"); e("s_waitcnt lgkmcnt(0)")
    e(f"v_mov_b32 v{vt}, s60"); e(f"v_mov_b32 v{vt+1}, 0"); e(f"s_mov_b32 s62, {0xB00000 + 4*k:#x}")
    e(f"buffer_store_dword v{vt}, v{vt+1}, s[{srdb}:{srdb+3}], s62 offen")
    e("s_waitcnt vmcnt(0)")
    e.lab(f"TL{k}")
WS_DIAG = 0xB00000
def stamp(e, idx):
    if not DIAG: return
    b = 70 + 4*idx
    e(f"s_memtime s[{b}:{b+1}]"); e(f"s_memrealtime s[{b+2}:{b+3}]"); e("s_waitcnt lgkmcnt(0)")
def stamp_out(e, n, kid, srdbase, wavesreg="s20"):
    if not DIAG: return
    e("s_mov_b64 exec, 1")
    e(f"s_lshl_b32 s68, s2, 4"); e(f"s_add_u32 s68, s68, {wavesreg}"); e("s_lshl_b32 s68, s68, 7"); e(f"s_add_u32 s68, s68, {WS_DIAG + kid*0x80000:#x}")
    e("v_mov_b32 v122, 0")
    for i in range(n):
        b = 70 + 4*i
        e(f"v_mov_b32 v124, s{b}"); e(f"v_mov_b32 v125, s{b+1}"); e(f"v_mov_b32 v126, s{b+2}"); e(f"v_mov_b32 v127, s{b+3}")
        e(f"buffer_store_dwordx4 v[124:127], v122, s[{srdbase}:{srdbase+3}], s68 offen offset:{16*i}")
        e("s_nop 1")
    e("s_mov_b64 exec, -1")

def rnd_bf16(e, d, s):
    e(f"v_cvt_pk_bf16_f32 v{d}, v{s}, v{s}")
    e(f"v_lshlrev_b32 v{d}, 16, v{d}")

def ln_scalars(e, sm, sq, t, outs, inv_n):
    mb, sb = outs
    e(f"v_mul_f32 v{t}, {inv_n}, v{sm}")
    e(f"v_mul_f32 v{t+1}, {inv_n}, v{sq}")
    e(f"v_fma_f32 v{t+1}, -v{t}, v{t}, v{t+1}")
    e(f"v_max_f32 v{t+1}, 0, v{t+1}")
    rnd_bf16(e, mb, t)
    rnd_bf16(e, t+1, t+1)
    e(f"v_add_f32 v{t+1}, 0x3727c5ac, v{t+1}")
    rnd_bf16(e, t+1, t+1)
    e(f"v_sqrt_f32 v{t+1}, v{t+1}")
    e("s_nop 0")
    rnd_bf16(e, sb, t+1)

def k1():
    e = E(); name = "k1_kernel"; header(e, name)
    A_BASE = 73728; AP = 1040
    e("s_cmp_ge_u32 s2, 256"); e("s_cbranch_scc1 K1_END")
    e("s_load_dwordx4 s[4:7], s[0:1], 0"); e("s_load_dwordx2 s[8:9], s[0:1], 80")
    e("v_lshrrev_b32 v1, 6, v0"); e("v_and_b32 v2, 63, v0"); e("s_nop 0")
    e("v_readfirstlane_b32 s20, v1")
    e("s_bfe_u32 s21, s2, 0x20001"); e("s_lshl_b32 s21, s21, 3"); e("s_bfe_u32 s22, s2, 0x30003"); e("s_add_u32 s21, s21, s22")
    e("s_and_b32 s22, s2, 1"); e("s_lshl_b32 s22, s22, 2"); e("s_lshr_b32 s23, s2, 6"); e("s_add_u32 s22, s22, s23")
    e("s_waitcnt lgkmcnt(0)")
    srd(e, 12, 4, 5, 2097152); srd(e, 16, 6, 7, 1572864); srd(e, 24, 8, 9, 0x1000000); stamp(e, 0); tl_start(e, 1, 24, 120)
    e("v_lshrrev_b32 v4, 3, v2"); e("v_and_b32 v5, 7, v2")
    e("s_cmp_ge_u32 s20, 8"); e("s_cbranch_scc1 K1_NOX")
    e("s_lshl_b32 s23, s21, 6"); e("s_lshl_b32 s31, s20, 3"); e("s_add_u32 s23, s23, s31")
    e("v_add_u32 v3, s23, v4"); e("v_lshlrev_b32 v3, 10, v3"); e("v_lshl_add_u32 v3, v5, 4, v3")
    for i in range(8):
        e(f"buffer_load_dwordx4 {vr(64+4*i,4)}, v3, s[12:15], 0 offen offset:{i*128}")
    e.lab("K1_NOX")
    e("s_lshl_b32 s31, s20, 7")
    e("s_movk_i32 s33, 2731")
    e("s_mul_i32 s34, s22, 384")
    for i in range(2):
        e(f"v_add_u32 v6, s31, v2")
        if i: e(f"v_add_u32 v6, {i*64}, v6")
        e("v_mul_lo_u32 v7, v6, s33"); e("v_lshrrev_b32 v7, 16, v7")
        e("v_mul_u32_u24 v8, 24, v7"); e("v_sub_u32 v8, v6, v8")
        e("v_lshrrev_b32 v9, 2, v8")
        e("v_bfe_u32 v16, v7, 1, 1"); e("v_xor_b32 v9, v9, v16")
        e("v_and_b32 v8, 3, v8")
        e("v_mul_u32_u24 v7, 3072, v7")
        e("v_lshl_add_u32 v7, v9, 6, v7"); e("v_lshl_add_u32 v7, v8, 4, v7")
        e(f"v_add_u32 v{10+i}, s34, v7")
    e("s_lshl_b32 s35, s20, 11")
    def dma_chunk(c):
        buf = c % 3
        e(f"s_mov_b32 s36, {c*196608}")
        for i in range(2):
            e(f"s_add_u32 m0, s35, {buf*24576 + i*1024}")
            e("s_nop 0")
            e(f"buffer_load_dwordx4 v{10+i}, s[16:19], s36 offen lds")
    for c in range(3): dma_chunk(c)
    e("s_cmp_ge_u32 s20, 8"); e("s_cbranch_scc1 K1_NOLN")
    e("s_mov_b32 s38, 0x3f803f80")
    e("v_mov_b32 v17, s38")
    for p in range(4): e(f"v_mov_b32 v{32+p}, 0")
    e("s_lshl_b32 s31, s20, 3")
    e("v_add_u32 v18, s31, v4"); e(f"v_mul_u32_u24 v18, {AP}, v18"); e("v_lshl_add_u32 v18, v5, 4, v18")
    e(f"v_add_u32 v18, {A_BASE}, v18")
    e("s_waitcnt vmcnt(6)"); stamp(e, 1)
    for j in range(32):
        r = 64 + j
        e(f"v_dot2_f32_bf16 v{32+(j&1)}, v{r}, v17, v{32+(j&1)}")
        e(f"v_dot2_f32_bf16 v{34+(j&1)}, v{r}, v{r}, v{34+(j&1)}")
    e("s_nop 2")
    e("v_add_f32 v32, v32, v33"); e("v_add_f32 v34, v34, v35"); e("s_nop 1")
    for m in ("quad_perm:[1,0,3,2]", "quad_perm:[2,3,0,1]", "row_half_mirror"):
        e(f"v_add_f32_dpp v32, v32, v32 {m} row_mask:0xf bank_mask:0xf")
        e(f"v_add_f32_dpp v34, v34, v34 {m} row_mask:0xf bank_mask:0xf")
        e("s_nop 0")
    ln_scalars(e, 32, 34, 48, (50, 51), "0x3b000000")
    e(f"v_rcp_f32 v40, v51"); e("s_nop 0")
    e(f"v_mul_f32 v44, v50, v40"); e(f"v_sub_f32 v44, 0, v44")
    for j in range(32):
        r = 64 + j; t = 52 + 2*(j & 1)
        e(f"v_lshlrev_b32 v{t}, 16, v{r}"); e(f"v_and_b32 v{t+1}, 0xffff0000, v{r}")
        e(f"v_fma_f32 v{t}, v{t}, v40, v44"); e(f"v_fma_f32 v{t+1}, v{t+1}, v40, v44")
        e(f"v_cvt_pk_bf16_f32 v{r}, v{t}, v{t+1}")
        if j % 4 == 3:
            e(f"ds_write_b128 v18, {vr(r-3,4)} offset:{(j//4)*128}")
    e.lab("K1_NOLN")
    e("s_and_b32 s39, s20, 1"); e("s_lshr_b32 s40, s20, 1")
    e("v_and_b32 v19, 31, v2"); e("v_lshrrev_b32 v20, 5, v2")
    e("s_lshl_b32 s31, s39, 5")
    e("v_add_u32 v21, s31, v19"); e(f"v_mul_u32_u24 v21, {AP}, v21"); e("v_lshl_add_u32 v21, v20, 4, v21")
    e(f"v_add_u32 v21, {A_BASE}, v21")
    e("v_bfe_u32 v22, v2, 2, 2")
    e("v_and_b32 v23, 3, v2")
    e("v_bfe_u32 v24, v2, 4, 1")
    e("v_lshl_add_u32 v25, v20, 3, v22")
    e("v_mul_u32_u24 v25, 384, v25")
    e("v_lshl_add_u32 v25, v24, 5, v25"); e("v_lshl_add_u32 v25, v23, 3, v25")
    e("v_lshrrev_b32 v26, 1, v22")
    e("v_xor_b32 v27, s40, v26")
    e("v_lshl_add_u32 v54, v27, 6, v25")
    e("v_add_u32 v55, 49152, v54")
    for r in range(96, 112): e(f"v_mov_b32 v{r}, 0")
    e("s_waitcnt lgkmcnt(0)")
    stamp(e, 2)
    XF = [112, 116]; WF = [120, 124]
    def reads(c, ks, sel):
        buf = c % 3; s = c*4 + ks
        e(f"ds_read_b128 {vr(XF[sel],4)}, v21 offset:{32*s}")
        base = 55 if buf == 2 else 54
        bo = 0 if buf == 2 else buf*24576
        for u in range(2):
            e(f"ds_read_b64_tr_b16 {vr(WF[sel]+2*u,2)}, v{base} offset:{bo + (16*ks+4*u)*384}")
    for c in range(8):
        n = 4 if c == 0 else (0 if c == 7 else 2)
        e(f"s_waitcnt vmcnt({n})"); e("s_barrier")
        reads(c, 0, 0)
        if 1 <= c <= 5: dma_chunk(c+2)
        for ks in range(4):
            sel = ks & 1
            if ks < 3:
                reads(c, ks+1, sel ^ 1); e("s_waitcnt lgkmcnt(3)")
            else:
                e("s_waitcnt lgkmcnt(0)")
            e(f"v_mfma_f32_32x32x16_bf16 {vr(96,16)}, {vr(WF[sel],4)}, {vr(XF[sel],4)}, {vr(96,16)}")
    stamp(e, 3)
    e("s_lshl_b32 s31, s21, 6"); e("s_lshl_b32 s42, s39, 5"); e("s_add_u32 s31, s31, s42")
    e("v_add_u32 v22, s31, v19"); e("v_lshlrev_b32 v22, 5, v22"); e("v_lshl_add_u32 v22, v20, 4, v22")
    e("s_mul_i32 s44, s22, 6"); e("s_add_u32 s44, s44, s40")
    e("s_lshr_b32 s45, s44, 4")
    e("s_and_b32 s46, s44, 15")
    e("s_lshl_b32 s47, s45, 21"); e("s_lshl_b32 s46, s46, 17"); e("s_add_u32 s47, s47, s46")
    e("s_add_u32 s48, s47, 0x10000")
    e("s_cmp_eq_u32 s45, 0"); e(f"s_cselect_b32 s49, {f32bits(C_SCALE):#x}, 1.0")
    e.nop(8)
    a = 96
    for r in range(16): e(f"v_mul_f32 v{a+r}, s49, v{a+r}")
    for r in range(8): e(f"v_cvt_pk_bf16_f32 v{a+r}, v{a+2*r}, v{a+2*r+1}")
    e(f"buffer_store_dwordx4 {vr(a,4)}, v22, s[24:27], s47 offen")
    e(f"buffer_store_dwordx4 {vr(a+4,4)}, v22, s[24:27], s48 offen")
    e("s_cmp_ge_u32 s2, 9"); e("s_cbranch_scc1 K1_NOZ"); e("s_cmp_ge_u32 s20, 4"); e("s_cbranch_scc1 K1_NOZ")
    e("v_mov_b32 v20, 0"); e("v_mov_b32 v21, 0"); e("v_mov_b32 v22, 0"); e("v_mov_b32 v23, 0")
    e("s_lshl_b32 s37, s2, 12"); e("s_cmp_eq_u32 s2, 8"); e("s_cselect_b32 s37, 0x10000, s37"); e(f"s_add_u32 s37, s37, {WS_ST:#x}")
    e("v_lshlrev_b32 v24, 4, v0")
    e("buffer_store_dwordx4 v[20:23], v24, s[24:27], s37 offen")
    e.lab("K1_NOZ")
    e("s_cmp_lg_u32 s2, 9"); e("s_cbranch_scc1 K1_NOS"); e("s_cmp_lg_u32 s20, 0"); e("s_cbranch_scc1 K1_NOS")
    e("s_load_dwordx2 s[4:5], s[0:1], 32"); e("s_waitcnt lgkmcnt(0)")
    srd(e, 52, 4, 5, 1024)
    e("v_lshlrev_b32 v8, 4, v2")
    e("buffer_load_dwordx4 v[12:15], v8, s[52:55], 0 offen")
    e("s_mov_b32 s56, 0x3f803f80"); e("v_mov_b32 v18, s56"); e("v_mov_b32 v10, 0")
    e("s_waitcnt vmcnt(0)")
    for q in range(4): e(f"v_dot2_f32_bf16 v10, v{12+q}, v18, v10")
    e("s_nop 2")
    for ror in (8, 4, 2, 1):
        e(f"v_add_f32_dpp v10, v10, v10 row_ror:{ror} row_mask:0xf bank_mask:0xf"); e("s_nop 1")
    for q in range(4): e(f"v_readlane_b32 s{56+q}, v10, {16*q}")
    e("s_nop 1")
    e("v_mov_b32 v10, s56"); e("v_add_f32 v10, s57, v10"); e("v_add_f32 v10, s58, v10"); e("v_add_f32 v10, s59, v10")
    e("v_mov_b32 v8, 0"); e(f"s_mov_b32 s37, {WS_ST + 0x8000:#x}")
    e("buffer_store_dword v10, v8, s[24:27], s37 offen")
    e.lab("K1_NOS")
    if CODEPF:
        e("s_cmp_lt_u32 s2, 16"); e("s_cbranch_scc1 K1_NOPF"); e("s_cmp_ge_u32 s2, 29"); e("s_cbranch_scc1 K1_NOPF"); e("s_cmp_lg_u32 s20, 11"); e("s_cbranch_scc1 K1_NOPF")
        e("s_getpc_b64 s[56:57]")
        e("s_sub_u32 s58, s2, 16"); e("s_lshl_b32 s58, s58, 10")
        e("v_lshlrev_b32 v8, 4, v2"); e("v_add_u32 v8, s58, v8")
        e("global_load_dwordx4 v[12:15], v8, s[56:57]")
        e.lab("K1_NOPF")
    if DIAG:
        e("s_waitcnt vmcnt(0)"); stamp(e, 4)
        e("s_cmp_ge_u32 s20, 8"); e("s_cbranch_scc1 K1_END")
        stamp_out(e, 5, 1, 24)
    e.lab("K1_END"); e("s_endpgm")
    return e.txt(), descr(name, 128, 64), f"; @launch kernel={name} grid=(256,1,1) block=(768,1,1) lds=140288"

def k2():
    e = E(); name = "k2_kernel"; header(e, name)
    VB = 65536; CB = 131072; XB = 140288
    Q = 8; NM = 16; S = [32, 48]; O = 64; P2 = [80, 112]; KB = [88, 92]; VF = [96, 104]; T = 120
    e("s_cmp_ge_u32 s2, 256"); e("s_cbranch_scc1 K2_END")
    e("s_load_dwordx2 s[4:5], s[0:1], 80")
    e("v_lshrrev_b32 v1, 6, v0"); e("v_and_b32 v2, 63, v0"); e("s_nop 0")
    e("v_readfirstlane_b32 s20, v1")
    e("s_and_b32 s21, s2, 7"); e("s_lshl_b32 s21, s21, 2"); e("s_bfe_u32 s22, s2, 0x20003"); e("s_add_u32 s21, s21, s22")
    e("s_lshr_b32 s22, s2, 5")
    e("s_and_b32 s31, s20, 7"); e("s_lshr_b32 s32, s20, 3")
    e("s_waitcnt lgkmcnt(0)")
    srd(e, 8, 4, 5, 0x1000000); stamp(e, 0); tl_start(e, 2, 8, 120)
    e("v_and_b32 v7, 31, v2"); e("v_lshrrev_b32 v6, 5, v2")
    e("v_lshlrev_b32 v3, 5, v7"); e("v_lshl_add_u32 v3, v6, 4, v3")
    e("v_lshlrev_b32 v4, 4, v2")
    e("s_lshl_b32 s23, s21, 16"); e("s_lshl_b32 s24, s22, 13"); e("s_lshl_b32 s25, s31, 10")
    e("s_add_u32 s24, s24, s25"); e("s_add_u32 s24, s24, s23")
    e(f"buffer_load_dwordx4 {vr(Q,4)}, v3, s[8:11], s24 offen")
    e("s_lshl_b32 s33, s32, 15"); e("s_add_u32 s25, s25, s33")
    e(f"s_add_u32 s26, s23, s25"); e(f"s_add_u32 s26, s26, {WS_K:#x}")
    def dma(c):
        e(f"s_add_u32 s27, s26, {c*8192}"); e(f"s_add_u32 s28, s27, {WS_V-WS_K:#x}")
        e(f"s_add_u32 m0, s25, {c*8192}"); e("s_nop 0")
        e("buffer_load_dwordx4 v4, s[8:11], s27 offen lds")
        e(f"s_add_u32 m0, s25, {VB + c*8192}"); e("s_nop 0")
        e("buffer_load_dwordx4 v4, s[8:11], s28 offen lds")
    dma(0); dma(1)
    e(f"v_and_b32 v{T}, 1, v0")
    e(f"v_mov_b32 v{T+4}, 0x3f80"); e(f"v_mov_b32 v{T+5}, 0"); e(f"v_mov_b32 v{T+7}, 0")
    e(f"v_cmp_eq_u32 vcc, 0, v{T}"); e("s_nop 1")
    e(f"v_cndmask_b32 v{T+4}, 0, v{T+4}, vcc"); e(f"v_mov_b32 v{T+6}, v{T+4}")
    e(f"v_lshlrev_b32 v{T+1}, 4, v0"); e(f"v_add_u32 v{T+1}, {CB}, v{T+1}")
    e("s_cmp_ge_u32 s20, 9"); e("s_cbranch_scc1 K2_NOC")
    e(f"ds_write_b128 v{T+1}, {vr(T+4,4)}")
    e.lab("K2_NOC")
    e("v_add_u32 v3, s33, v3")
    e(f"v_bfe_u32 v{T}, v2, 2, 2"); e(f"v_and_b32 v{T+1}, 3, v2"); e(f"v_bfe_u32 v{T+2}, v2, 4, 1")
    e(f"v_lshl_add_u32 v{T+3}, v6, 2, v{T}")
    e(f"v_lshlrev_b32 v{T+3}, 5, v{T+3}"); e(f"v_lshl_add_u32 v{T+3}, v{T+1}, 3, v{T+3}")
    e(f"v_add_u32 v{T+3}, {VB}, v{T+3}"); e(f"v_add_u32 v{T+3}, s33, v{T+3}")
    e(f"v_lshlrev_b32 v{T+4}, 5, v{T}"); e(f"v_lshl_add_u32 v{T+4}, v{T+1}, 3, v{T+4}"); e(f"v_add_u32 v{T+4}, {CB}, v{T+4}")
    e(f"v_cmp_eq_u32 vcc, 0, v{T+2}"); e(f"v_mov_b32 v{T+5}, 0x2000"); e("s_nop 1")
    e(f"v_cndmask_b32 v5, v{T+4}, v{T+3}, vcc")
    e(f"v_cndmask_b32 v1, 0, v{T+5}, vcc")
    for r in range(16): e(f"v_mov_b32 v{O+r}, 0")
    for r in range(8): e(f"v_mov_b32 v{P2[1]+r}, 0"); e(f"v_mov_b32 v{VF[1]+r}, 0")
    e("s_waitcnt vmcnt(2) lgkmcnt(0)"); e("s_barrier"); stamp(e, 1)
    e(f"ds_read_b128 {vr(KB[0],4)}, v3")
    e("s_waitcnt lgkmcnt(0)")
    e(f"v_mfma_f32_32x32x16_bf16 {vr(S[0],16)}, {vr(KB[0],4)}, {vr(Q,4)}, 0")
    e(f"ds_read_b128 {vr(KB[1],4)}, v3 offset:1024")
    for j in range(2):
        for u in range(2):
            e(f"ds_read_b64_tr_b16 {vr(VF[0]+4*j+2*u,2)}, v5 offset:{j*512+u*256}")
    dma(2); dma(3)
    s0 = S[0]
    e(f"v_max3_f32 v{T}, v{s0}, v{s0+1}, v{s0+2}")
    for r in range(3, 15, 2): e(f"v_max3_f32 v{T}, v{T}, v{s0+r}, v{s0+r+1}")
    e(f"v_max_f32 v{T}, v{T}, v{s0+15}")
    e(f"v_mov_b32 v{T+1}, v{T}"); e("s_nop 1")
    e(f"v_permlane32_swap_b32 v{T}, v{T+1}"); e("s_nop 1")
    e(f"v_max_f32 v{T}, v{T}, v{T+1}")
    e(f"v_sub_f32 v{T}, 0, v{T}")
    for r in range(16): e(f"v_mov_b32 v{NM+r}, v{T}")
    e("s_nop 1")
    e(f"v_mfma_f32_32x32x16_bf16 {vr(S[0],16)}, {vr(KB[0],4)}, {vr(Q,4)}, {vr(NM,16)}")
    stamp(e, 2)
    e("s_mov_b32 s30, 0"); e.nop(10)
    e.lab("K2_LOOP")
    for i in range(8):
        cur = i & 1; nx = cur ^ 1; sc = S[cur]; Pc = P2[cur]; Pp = P2[nx]
        if i == 5:
            e("s_cmp_gt_u32 s30, 2"); e("s_cbranch_scc1 K2_NW")
            e("s_cmp_eq_u32 s30, 0"); e("s_cbranch_scc0 K2_W1")
            e("s_waitcnt vmcnt(4)"); e("s_branch K2_WB")
            e.lab("K2_W1"); e("s_cmp_eq_u32 s30, 1"); e("s_cbranch_scc0 K2_W2")
            e("s_waitcnt vmcnt(2)"); e("s_branch K2_WB")
            e.lab("K2_W2"); e("s_waitcnt vmcnt(0)")
            e("s_load_dwordx2 s[40:41], s[0:1], 16"); e("s_load_dwordx4 s[44:47], s[0:1], 40"); e("s_load_dwordx2 s[48:49], s[0:1], 56")
            e("s_lshl_b32 s42, s2, 4"); e("s_add_u32 s42, s42, s20")
            e("s_waitcnt lgkmcnt(0)")
            e("s_cmp_lt_u32 s42, 1792"); e("s_cselect_b32 s52, s44, s46"); e("s_cselect_b32 s53, s45, s47"); e("s_cselect_b32 s43, 0, 1792")
            e("s_cmp_lt_u32 s42, 3584"); e("s_cselect_b32 s52, s52, s48"); e("s_cselect_b32 s53, s53, s49"); e("s_cselect_b32 s43, s43, 3584")
            e("s_mov_b32 s54, 1835008"); e("s_mov_b32 s55, 0x00020000")
            e("s_sub_u32 s43, s42, s43"); e("s_lshl_b32 s43, s43, 10")
            e("buffer_load_dwordx4 v[12:15], v4, s[52:55], s43 offen")
            e("s_add_u32 s43, s42, 512"); e("s_sub_u32 s50, s42, 1280"); e("s_mov_b32 s51, 524288")
            e("s_cmp_lt_u32 s42, 1280"); e("s_cselect_b32 s56, s48, s40"); e("s_cselect_b32 s57, s49, s41"); e("s_cselect_b32 s58, s54, s51")
            e("s_cselect_b32 s43, s43, s50"); e("s_mov_b32 s59, 0x00020000"); e("s_lshl_b32 s43, s43, 10")
            e("buffer_load_dwordx4 v[12:15], v4, s[56:59], s43 offen")
            e.lab("K2_WB"); e("s_barrier")
            e.lab("K2_NW")
        ex = lambda r: e(f"v_exp_f32 v{sc+r}, v{sc+r}")
        cv = lambda p: e(f"v_cvt_pk_bf16_f32 v{Pc+p}, v{sc+2*p}, v{sc+2*p+1}")
        e("s_waitcnt lgkmcnt(4)")
        e(f"v_mfma_f32_32x32x16_bf16 {vr(S[nx],16)}, {vr(KB[nx],4)}, {vr(Q,4)}, {vr(NM,16)}")
        e(f"ds_read_b128 {vr(KB[cur],4)}, v3 offset:{(i+2)*1024}")
        ex(0); ex(1); ex(2); cv(0); ex(3); ex(4); cv(1)
        e(f"v_mfma_f32_32x32x16_bf16 {vr(O,16)}, {vr(VF[nx],4)}, {vr(Pp,4)}, {vr(O,16)}")
        ex(5); ex(6); cv(2); ex(7); ex(8); cv(3); ex(9); ex(10); cv(4)
        e(f"v_mfma_f32_32x32x16_bf16 {vr(O,16)}, {vr(VF[nx]+4,4)}, {vr(Pp+4,4)}, {vr(O,16)}")
        for j in range(2):
            for u in range(2):
                e(f"ds_read_b64_tr_b16 {vr(VF[nx]+4*j+2*u,2)}, v5 offset:{(i+1)*1024 + j*512+u*256}")
        ex(11); ex(12); cv(5); ex(13); ex(14); cv(6); ex(15); e("s_nop 0"); cv(7)
    e("v_add_u32 v3, 0x2000, v3"); e("v_add_u32 v5, v5, v1")
    e("s_add_u32 s30, s30, 1"); e("s_cmp_lt_u32 s30, 4"); e("s_cbranch_scc1 K2_LOOP")
    e("s_waitcnt lgkmcnt(0)")
    e(f"v_mfma_f32_32x32x16_bf16 {vr(O,16)}, {vr(VF[1],4)}, {vr(P2[1],4)}, {vr(O,16)}")
    e(f"v_mfma_f32_32x32x16_bf16 {vr(O,16)}, {vr(VF[1]+4,4)}, {vr(P2[1]+4,4)}, {vr(O,16)}")
    e.nop(16)
    stamp(e, 3)
    e(f"v_mov_b32 v{T}, 0x5d800000")
    e(f"v_cmp_nlt_f32 vcc, v{O+8}, v{T}"); e("s_nop 4")
    e("s_cbranch_vccnz K2_SLOW")
    e.lab("K2_OUT")
    e("s_mul_i32 s34, s31, 2560"); e(f"s_add_u32 s34, s34, {XB}")
    e(f"v_lshl_add_u32 v{T+1}, v2, 2, s34")
    e("s_cmp_eq_u32 s32, 0"); e("s_cbranch_scc1 K2_LOW")
    for r in range(9): e(f"ds_write_b32 v{T+1}, v{O+r} offset:{256*r}")
    e(f"ds_write_b32 v{T+1}, v{NM} offset:{256*9}")
    e("s_waitcnt lgkmcnt(0)"); e("s_barrier")
    if DIAG: stamp_out(e, 4, 2, 8, "s20")
    e("s_endpgm")
    e.lab("K2_LOW")
    e("s_barrier")
    for r in range(10): e(f"ds_read_b32 v{S[0]+r}, v{T+1} offset:{256*r}")
    e("s_waitcnt lgkmcnt(0)")
    e(f"v_min_f32 v{T}, v{NM}, v{S[0]+9}")
    e(f"v_sub_f32 v{T+2}, v{T}, v{NM}"); e(f"v_sub_f32 v{T+3}, v{T}, v{S[0]+9}")
    e(f"v_exp_f32 v{T+2}, v{T+2}"); e(f"v_exp_f32 v{T+3}, v{T+3}"); e("s_nop 0")
    for r in range(9):
        e(f"v_mul_f32 v{O+r}, v{O+r}, v{T+2}"); e(f"v_fmac_f32 v{O+r}, v{S[0]+r}, v{T+3}")
    e(f"v_rcp_f32 v{T}, v{O+8}"); e("s_nop 0")
    for r in range(8): e(f"v_mul_f32 v{O+r}, v{O+r}, v{T}")
    for r in range(4): e(f"v_cvt_pk_bf16_f32 v{P2[0]+r}, v{O+2*r}, v{O+2*r+1}")
    e("s_lshl_b32 s24, s22, 8"); e("s_lshl_b32 s25, s31, 5"); e("s_add_u32 s24, s24, s25")
    e(f"v_add_u32 v{T+1}, s24, v7"); e(f"v_lshlrev_b32 v{T+1}, 10, v{T+1}"); e(f"v_lshl_add_u32 v{T+1}, v6, 4, v{T+1}")
    e("s_lshl_b32 s25, s21, 5"); e(f"s_add_u32 s25, s25, {WS_O:#x}")
    e(f"buffer_store_dwordx4 {vr(P2[0],4)}, v{T+1}, s[8:11], s25 offen")
    if DIAG: stamp_out(e, 4, 2, 8, "s20")
    e("s_endpgm")
    e.lab("K2_SLOW")
    P = P2[0]
    e("v_subrev_u32 v3, 0x8000, v3")
    e(f"v_lshlrev_b32 v{T+5}, 2, v1"); e(f"v_sub_u32 v5, v5, v{T+5}")
    e(f"v_lshrrev_b32 v1, 3, v1")
    e(f"v_sub_f32 v{NM}, 0, v{NM}")
    for r in range(16): e(f"v_mov_b32 v{O+r}, 0")
    e("s_mov_b32 s30, 0")
    e.lab("K2_SL")
    e(f"ds_read_b128 {vr(KB[0],4)}, v3")
    for j in range(2):
        for u in range(2):
            e(f"ds_read_b64_tr_b16 {vr(VF[0]+4*j+2*u,2)}, v5 offset:{j*512+u*256}")
    e("s_waitcnt lgkmcnt(0)")
    e(f"v_mfma_f32_32x32x16_bf16 {vr(S[0],16)}, {vr(KB[0],4)}, {vr(Q,4)}, 0")
    e.nop(16)
    e(f"v_max3_f32 v{T}, v{s0}, v{s0+1}, v{s0+2}")
    for r in range(3, 15, 2): e(f"v_max3_f32 v{T}, v{T}, v{s0+r}, v{s0+r+1}")
    e(f"v_max3_f32 v{T}, v{T}, v{s0+15}, v{NM}")
    e(f"v_mov_b32 v{T+1}, v{T}"); e("s_nop 1")
    e(f"v_permlane32_swap_b32 v{T}, v{T+1}"); e("s_nop 1")
    e(f"v_max_f32 v{T}, v{T}, v{T+1}")
    e(f"v_sub_f32 v{T+1}, v{NM}, v{T}"); e(f"v_exp_f32 v{T+1}, v{T+1}"); e(f"v_mov_b32 v{NM}, v{T}")
    for r in range(16): e(f"v_mul_f32 v{O+r}, v{O+r}, v{T+1}")
    for r in range(16): e(f"v_sub_f32 v{s0+r}, v{s0+r}, v{T}")
    for r in range(16): e(f"v_exp_f32 v{s0+r}, v{s0+r}")
    e("s_nop 0")
    for p in range(8): e(f"v_cvt_pk_bf16_f32 v{P+p}, v{s0+2*p}, v{s0+2*p+1}")
    e("s_nop 1")
    e(f"v_mfma_f32_32x32x16_bf16 {vr(O,16)}, {vr(VF[0],4)}, {vr(P,4)}, {vr(O,16)}")
    e(f"v_mfma_f32_32x32x16_bf16 {vr(O,16)}, {vr(VF[0]+4,4)}, {vr(P+4,4)}, {vr(O,16)}")
    e("v_add_u32 v3, 0x400, v3"); e("v_add_u32 v5, v5, v1")
    e.nop(16)
    e("s_add_u32 s30, s30, 1"); e("s_cmp_lt_u32 s30, 32"); e("s_cbranch_scc1 K2_SL")
    e(f"v_sub_f32 v{NM}, 0, v{NM}")
    e("s_branch K2_OUT")
    e.lab("K2_END"); e("s_endpgm")
    return e.txt(), descr(name, 128, 64), f"; @launch kernel={name} grid=(256,1,1) block=(1024,1,1) lds=160768"

def k3():
    e = E(); name = "k3_kernel"; header(e, name)
    OB = 65536; AP = 1040
    e("s_cmp_ge_u32 s2, 256"); e("s_cbranch_scc1 K3_END")
    e("s_load_dwordx2 s[4:5], s[0:1], 0"); e("s_load_dwordx2 s[6:7], s[0:1], 16"); e("s_load_dwordx2 s[8:9], s[0:1], 80"); e("s_load_dwordx2 s[10:11], s[0:1], 32")
    e("v_lshrrev_b32 v1, 6, v0"); e("v_and_b32 v2, 63, v0"); e("s_nop 0")
    e("v_readfirstlane_b32 s20, v1")
    e("s_and_b32 s21, s2, 7"); e("s_lshl_b32 s21, s21, 2"); e("s_bfe_u32 s22, s2, 0x20003"); e("s_add_u32 s21, s21, s22"); e("s_lshr_b32 s22, s2, 5")
    e("s_and_b32 s39, s20, 1"); e("s_lshr_b32 s40, s20, 1")
    e("s_waitcnt lgkmcnt(0)")
    srd(e, 12, 4, 5, 2097152); srd(e, 16, 6, 7, 524288); srd(e, 24, 8, 9, 0x1000000); srd(e, 44, 10, 11, 1024); stamp(e, 0); tl_start(e, 3, 24, 90)
    e("v_lshrrev_b32 v4, 3, v2"); e("v_lshlrev_b32 v4, 10, v4")
    e("v_bfe_u32 v5, v2, 2, 1"); e("v_bfe_u32 v6, v2, 4, 1"); e("v_xor_b32 v5, v5, v6")
    e("v_lshl_add_u32 v4, v5, 6, v4"); e("v_and_b32 v5, 3, v2"); e("v_lshl_add_u32 v4, v5, 4, v4")
    e("s_lshl_b32 s31, s22, 7"); e("v_add_u32 v4, s31, v4")
    e("v_lshlrev_b32 v3, 4, v2")
    e("s_lshl_b32 s32, s20, 17")
    e("s_lshl_b32 s33, s20, 14")
    e("s_lshl_b32 s35, s21, 16"); e("s_lshl_b32 s36, s20, 14"); e("s_add_u32 s35, s35, s36"); e(f"s_add_u32 s35, s35, {WS_O:#x}")
    e(f"s_mul_i32 s36, s20, {16*AP}"); e(f"s_add_u32 s36, s36, {OB}")
    for i in range(16):
        e(f"s_add_u32 s34, s35, {i*1024}"); e(f"s_add_u32 m0, s36, {i*AP}"); e("s_nop 0")
        e("buffer_load_dwordx4 v3, s[24:27], s34 offen lds")
        e(f"s_add_u32 s34, s32, {i*8192}"); e(f"s_add_u32 m0, s33, {i*1024}"); e("s_nop 0")
        e("buffer_load_dwordx4 v4, s[16:19], s34 offen lds")
    e("v_and_b32 v19, 31, v2"); e("v_lshrrev_b32 v20, 5, v2")
    e("s_lshl_b32 s31, s21, 6"); e("s_lshl_b32 s35, s39, 5"); e("s_add_u32 s31, s31, s35")
    e("v_add_u32 v21, s31, v19")
    e("v_lshlrev_b32 v22, 10, v21")
    e("s_lshl_b32 s37, s22, 7"); e("s_lshl_b32 s38, s40, 6"); e("s_add_u32 s37, s37, s38")
    e("v_lshlrev_b32 v23, 3, v20"); e("v_add_u32 v23, s37, v23")
    e("v_add_u32 v24, v22, v23")
    for g in range(4):
        e(f"buffer_load_dwordx2 {vr(32+2*g,2)}, v24, s[12:15], 0 offen offset:{16*g}")
    for g in range(4):
        e(f"buffer_load_dwordx2 {vr(40+2*g,2)}, v23, s[44:47], 0 offen offset:{16*g}")
    e("v_add_u32 v26, s35, v19"); e(f"v_mul_u32_u24 v26, {AP}, v26"); e("v_lshl_add_u32 v26, v20, 4, v26"); e(f"v_add_u32 v26, {OB}, v26")
    e("v_bfe_u32 v5, v2, 2, 2"); e("v_and_b32 v6, 3, v2"); e("v_bfe_u32 v7, v2, 4, 1")
    e("v_lshl_add_u32 v25, v20, 3, v5"); e("v_lshlrev_b32 v25, 7, v25")
    e("v_lshl_add_u32 v25, v7, 5, v25"); e("v_lshl_add_u32 v25, v6, 3, v25")
    e("v_lshrrev_b32 v5, 1, v5"); e("v_xor_b32 v5, s40, v5"); e("v_lshl_add_u32 v25, v5, 6, v25")
    for r in range(16): e(f"v_mov_b32 v{48+r}, 0")
    e("s_waitcnt vmcnt(8)"); e("s_barrier"); stamp(e, 1)
    NB = 4
    WF = [64 + 8*i for i in range(NB)]; XF = [68 + 8*i for i in range(NB)]
    def rd(s):
        sel = s % NB
        e(f"ds_read_b128 {vr(XF[sel],4)}, v26 offset:{32*s}")
        for u in range(2):
            e(f"ds_read_b64_tr_b16 {vr(WF[sel]+2*u,2)}, v25 offset:{(16*s+4*u)*128}")
    for s in range(NB-1): rd(s)
    for s in range(32):
        sel = s % NB
        if s + NB - 1 < 32: rd(s + NB - 1)
        rem = min(31 - s, NB - 1)
        e(f"s_waitcnt lgkmcnt({3*rem})")
        e(f"v_mfma_f32_32x32x16_bf16 {vr(48,16)}, {vr(WF[sel],4)}, {vr(XF[sel],4)}, {vr(48,16)}")
    stamp(e, 2)
    e("s_mov_b32 s41, 0x3f803f80"); e("v_mov_b32 v8, s41")
    e("v_mov_b32 v9, 0"); e("v_mov_b32 v10, 0"); e("v_mov_b32 v11, 0")
    e("s_waitcnt vmcnt(0)")
    e.nop(12)
    for p in range(8):
        a = 48 + 2*p; x = 32 + p
        e(f"v_cvt_pk_bf16_f32 v12, v{a}, v{a+1}")
        e("v_lshlrev_b32 v13, 16, v12"); e("v_and_b32 v14, 0xffff0000, v12")
        e(f"v_lshlrev_b32 v15, 16, v{x}"); e(f"v_and_b32 v16, 0xffff0000, v{x}")
        e("v_add_f32 v13, v13, v15"); e("v_add_f32 v14, v14, v16")
        e(f"v_cvt_pk_bf16_f32 v{x}, v13, v14")
        e(f"v_dot2_f32_bf16 v9, v{x}, v8, v9")
        e(f"v_dot2_f32_bf16 v10, v{x}, v{x}, v10")
        e(f"v_dot2_f32_bf16 v11, v{x}, v{40+p}, v11")
    e(f"s_mov_b32 s36, {WS_H:#x}")
    for g in range(4):
        e(f"buffer_store_dwordx2 {vr(32+2*g,2)}, v24, s[24:27], s36 offen offset:{16*g}")
    e("s_nop 2")
    for q in range(3): e(f"v_mov_b32 v{12+q}, v{9+q}")
    e("s_nop 1")
    for q in range(3): e(f"v_permlane32_swap_b32 v{9+q}, v{12+q}")
    e("s_nop 1")
    for q in range(3): e(f"v_add_f32 v{9+q}, v{9+q}, v{12+q}")
    e("v_lshlrev_b32 v15, 4, v21")
    e(f"s_mov_b32 s36, {WS_ST:#x}")
    e("s_mov_b64 exec, 0xffffffff")
    for q in range(3):
        e(f"buffer_atomic_add_f32 v{9+q}, v15, s[24:27], s36 offen offset:{4*q}")
    if DIAG:
        e("s_waitcnt vmcnt(0)"); stamp(e, 3); stamp_out(e, 4, 3, 24)
    e.lab("K3_END"); e("s_endpgm")
    return e.txt(), descr(name, 96, 64), f"; @launch kernel={name} grid=(256,1,1) block=(256,1,1) lds=132096"

def ln2_elem(e, x, mb, rinv, t):
    e(f"v_lshlrev_b32 v{t}, 16, v{x}"); e(f"v_and_b32 v{t+1}, 0xffff0000, v{x}")
    e(f"v_sub_f32 v{t+2}, v{t}, v{mb}"); e(f"v_sub_f32 v{t+3}, v{t+1}, v{mb}")
    e(f"v_cvt_pk_bf16_f32 v{t+2}, v{t+2}, v{t+3}")
    e(f"v_and_b32 v{t+3}, 0xffff0000, v{t+2}"); e(f"v_lshlrev_b32 v{t+2}, 16, v{t+2}")
    e(f"v_mul_f32 v{t+2}, v{t+2}, v{rinv}"); e(f"v_mul_f32 v{t+3}, v{t+3}, v{rinv}")
    e(f"v_cvt_pk_bf16_f32 v{t+2}, v{t+2}, v{t+3}")

WS_Y = 0xA10000
def k4():
    e = E(); name = "k4_kernel"; header(e, name)
    NF = 56; NE = 32
    L_XS = 1024; L_H = 5120; L_G = 8192; L_S2 = 40960; L_ACT = 45056; L_D = 49152; L_FLAG = 8064
    e(f"s_cmp_ge_u32 s2, {NF+NE}"); e("s_cbranch_scc1 K4_END")
    e("s_load_dwordx2 s[4:5], s[0:1], 80"); e("s_load_dwordx4 s[8:11], s[0:1], 64")
    e("s_load_dwordx8 s[44:51], s[0:1], 32")
    e("v_lshrrev_b32 v1, 6, v0"); e("v_and_b32 v2, 63, v0"); e("s_nop 0")
    e("v_readfirstlane_b32 s20, v1")
    e("s_waitcnt lgkmcnt(0)")
    srd(e, 12, 4, 5, 0x1000000); srd(e, 16, 8, 9, 2097152); srd(e, 24, 44, 45, 1024)
    srd(e, 28, 46, 47, 1835008); srd(e, 32, 48, 49, 1835008); srd(e, 36, 50, 51, 1835008); srd(e, 40, 10, 11, 256)
    stamp(e, 0); tl_start(e, 4, 12, 108)
    e("v_lshlrev_b32 v7, 4, v0"); e("v_mov_b32 v3, 0"); e("v_mov_b32 v6, 0"); e("v_mov_b32 v11, 0")
    e(f"s_mov_b32 s52, {WS_ST:#x}"); e(f"s_mov_b32 s53, {WS_ST + 16384:#x}"); e(f"s_mov_b32 s54, {WS_H:#x}")
    e("buffer_load_dwordx4 v[64:67], v7, s[12:15], s52 offen")
    e("buffer_load_dwordx4 v[68:71], v7, s[12:15], s53 offen")
    e(f"s_mov_b32 s55, {WS_ST + 0x8000:#x}")
    e("s_load_dword s66, s[4:5], s55")
    e(f"s_cmp_lt_u32 s2, {NF}"); e("s_cbranch_scc1 K4_LF")
    e(f"s_sub_u32 s21, s2, {NF}"); e("s_lshl_b32 s21, s21, 6"); e("s_lshl_b32 s22, s20, 2"); e("s_add_u32 s21, s21, s22")
    e("v_lshrrev_b32 v4, 4, v2"); e("v_and_b32 v5, 15, v2")
    e("v_add_u32 v6, s21, v4")
    e("v_lshlrev_b32 v3, 10, v6"); e("v_lshl_add_u32 v3, v5, 4, v3")
    e("v_lshlrev_b32 v9, 4, v6")
    e("buffer_load_dwordx4 v[72:75], v9, s[12:15], s52 offen")
    for i in range(4):
        e(f"buffer_load_dwordx4 {vr(80+4*i,4)}, v3, s[12:15], s54 offen offset:{256*i}")
    e("s_waitcnt vmcnt(5) lgkmcnt(0)"); e("s_branch K4_TOP")
    e.lab("K4_LF")
    e("s_waitcnt vmcnt(0) lgkmcnt(0)")
    e.lab("K4_TOP"); stamp(e, 1)
    e("s_mov_b32 s56, 0xfffff800")
    for i in range(2):
        b = 64 + 4*i; t = 18 + 8*i
        e(f"v_mul_f32 v{t}, 0x3b000000, v{b}")
        e(f"v_mul_f32 v{t+1}, 0x3b000000, v{b+1}")
        e(f"v_fma_f32 v{t+1}, -v{t}, v{t}, v{t+1}")
        e(f"v_max_f32 v{t+1}, 0, v{t+1}")
        e(f"v_add_f32 v{t+1}, 0x3727c5ac, v{t+1}")
        e(f"v_rsq_f32 v{t+1}, v{t+1}")
        e(f"v_fma_f32 v{t+4}, -v{t}, s66, v{b+2}")
        e(f"v_sub_u32 v{t+5}, {2047 - 1024*i}, v0")
        e(f"v_mul_f32 v{t+4}, v{t+4}, v{t+1}")
        e(f"v_ashrrev_i32 v{t+2}, 31, v{t+4}")
        e(f"v_or_b32 v{t+2}, 0x80000000, v{t+2}")
        e(f"v_xor_b32 v{t+4}, v{t+4}, v{t+2}")
        e(f"v_and_or_b32 v{t+4}, v{t+4}, s56, v{t+5}")
    e("v_max_u32 v16, v22, v30"); e("v_min_u32 v17, v22, v30")
    def red16():
        for ror in (8, 4, 2, 1):
            e("s_nop 1")
            e(f"v_mov_b32_dpp v18, v16 row_ror:{ror} row_mask:0xf bank_mask:0xf")
            e(f"v_mov_b32_dpp v19, v17 row_ror:{ror} row_mask:0xf bank_mask:0xf")
            e("v_min_u32 v20, v16, v18"); e("v_max_u32 v16, v16, v18"); e("v_max3_u32 v17, v17, v19, v20")
    red16()
    e("v_lshrrev_b32 v18, 4, v0"); e("v_lshlrev_b32 v18, 3, v18")
    e("ds_write_b64 v18, v[16:17]")
    e("s_waitcnt lgkmcnt(0)"); e("s_barrier")
    e("v_lshlrev_b32 v18, 3, v2")
    e("ds_read_b64 v[16:17], v18")
    e("s_waitcnt lgkmcnt(0)")
    red16()
    e("s_nop 0")
    for q in range(4):
        e(f"v_readlane_b32 s{56+2*q}, v16, {16*q}"); e(f"v_readlane_b32 s{57+2*q}, v17, {16*q}")
    def smerge(d, a, b):
        e(f"s_min_u32 s64, s{a}, s{b}"); e(f"s_max_u32 s65, s{a+1}, s{b+1}"); e(f"s_max_u32 s{d}, s{a}, s{b}"); e(f"s_max_u32 s{d+1}, s64, s65")
    smerge(56, 56, 58); smerge(60, 60, 62); smerge(56, 56, 60)
    e("s_and_b32 s56, s56, 0x7ff"); e("s_and_b32 s57, s57, 0x7ff")
    e("s_sub_u32 s56, 2047, s56"); e("s_sub_u32 s57, 2047, s57")
    stamp(e, 2)
    e(f"s_cmp_lt_u32 s2, {NF}"); e("s_cbranch_scc1 K4_FFN")
    e("s_waitcnt vmcnt(0)")
    ln_scalars(e, 72, 73, 12, (14, 15), "0x3b000000")
    e("v_rcp_f32 v15, v15"); e("s_nop 0")
    for j in range(16):
        x = 80 + j
        ln2_elem(e, x, 14, 15, 32)
        e("v_and_b32 v35, 0xffff0000, v34"); e("v_lshlrev_b32 v34, 16, v34")
        e("v_add_f32 v34, v32, v34"); e("v_add_f32 v35, v33, v35")
        e(f"v_cvt_pk_bf16_f32 v{x}, v34, v35")
    e("v_cmp_ne_u32 vcc, s56, v6"); e("v_cmp_ne_u32 s[60:61], s57, v6"); e("s_nop 1")
    e("s_and_b64 s[60:61], s[60:61], vcc"); e("s_and_b64 exec, exec, s[60:61]")
    e("s_cbranch_execz K4_END")
    for i in range(4):
        e(f"buffer_store_dwordx4 {vr(80+4*i,4)}, v3, s[16:19], 0 offen offset:{256*i}")
    e("s_endpgm")
    e.lab("K4_FFN")
    e("s_cmp_ge_u32 s20, 8"); e("s_cbranch_scc1 K4_NOXL")
    e("s_cmp_lt_u32 s20, 4"); e("s_cselect_b32 s58, s56, s57")
    e("s_lshl_b32 s59, s58, 4"); e("s_add_u32 s59, s59, s52")
    e("s_lshl_b32 s60, s58, 10"); e("s_add_u32 s60, s60, s54")
    e("v_and_b32 v19, 255, v0"); e("v_lshlrev_b32 v20, 2, v19"); e("v_mov_b32 v21, 0")
    e("buffer_load_dwordx4 v[24:27], v21, s[12:15], s59 offen")
    e("buffer_load_dword v28, v20, s[12:15], s60 offen")
    e("buffer_load_dword v30, v20, s[24:27], 0 offen")
    e("v_lshrrev_b32 v41, 8, v0")
    e.lab("K4_NOXL")
    e("s_barrier")
    e("v_lshrrev_b32 v4, 4, v0"); e("v_and_b32 v5, 15, v0")
    e("v_mul_u32_u24 v3, 3584, v4"); e("v_lshl_add_u32 v3, v5, 2, v3")
    e("s_lshl_b32 s21, s2, 6"); e("v_add_u32 v3, s21, v3")
    for i in range(8):
        e(f"s_mov_b32 s55, {i*64*3584}")
        e(f"buffer_load_dword v{80+i}, v3, s[28:31], s55 offen")
        e(f"buffer_load_dword v{88+i}, v3, s[32:35], s55 offen")
    e("v_lshrrev_b32 v6, 8, v0"); e("v_and_b32 v9, 255, v0")
    e("v_lshlrev_b32 v11, 13, v6"); e("v_lshl_add_u32 v11, v9, 2, v11")
    e("s_lshl_b32 s21, s2, 15"); e("s_add_u32 s22, s21, 4096")
    for i in range(8):
        e(f"buffer_load_dword v{96+i}, v11, s[36:39], {'s21' if i < 4 else 's22'} offen offset:{(i&3)*1024}")
    e("s_cmp_ge_u32 s20, 8"); e("s_cbranch_scc1 K4_NOXS")
    e("s_waitcnt vmcnt(24)")
    ln_scalars(e, 24, 25, 32, (34, 35), "0x3b000000")
    e("v_rcp_f32 v35, v35"); e("s_nop 0")
    ln2_elem(e, 28, 34, 35, 36)
    e("v_mov_b32 v40, 0"); e("v_dot2_f32_bf16 v40, v38, v30, v40")
    e("v_lshlrev_b32 v42, 2, v41"); e("v_lshl_add_u32 v42, v19, 4, v42")
    e("v_lshlrev_b32 v43, 16, v38"); e("v_and_b32 v44, 0xffff0000, v38")
    e(f"ds_write_b32 v42, v43 offset:{L_XS}"); e(f"ds_write_b32 v42, v44 offset:{L_XS+8}")
    e("v_lshlrev_b32 v45, 2, v0")
    e(f"ds_write_b32 v45, v28 offset:{L_H}")
    for ror in (8, 4, 2, 1):
        e("s_nop 1"); e(f"v_add_f32_dpp v40, v40, v40 row_ror:{ror} row_mask:0xf bank_mask:0xf")
    e("v_lshrrev_b32 v45, 4, v0"); e("v_lshlrev_b32 v45, 2, v45")
    e("ds_write_b32 v45, v40 offset:512")
    e.lab("K4_NOXS")
    e("s_waitcnt lgkmcnt(0)"); e("s_barrier"); stamp(e, 3)
    for r in range(104, 112): e(f"v_mov_b32 v{r}, 0")
    e("v_lshlrev_b32 v41, 3, v4")
    for i in range(8):
        e(f"ds_read_b64 {vr(48+2*i,2)}, v41 offset:{L_XS + i*512}")
    for i in range(8):
        e(f"s_waitcnt vmcnt({22-2*i}) lgkmcnt({7-i})")
        for m in range(2):
            w = 80 + 8*m + i; t = 44 + 2*m
            e(f"v_lshlrev_b32 v{t}, 16, v{w}"); e(f"v_and_b32 v{t+1}, 0xffff0000, v{w}")
            for tk in range(2):
                a = 104 + m*4 + tk*2
                e(f"v_fmac_f32 v{a}, v{t}, v{48+2*i+tk}"); e(f"v_fmac_f32 v{a+1}, v{t+1}, v{48+2*i+tk}")
    e("v_lshlrev_b32 v41, 5, v0")
    e(f"ds_write_b128 v41, v[104:107] offset:{L_G}"); e(f"ds_write_b128 v41, v[108:111] offset:{L_G+16}")
    e("s_waitcnt lgkmcnt(0)"); e("s_barrier")
    e("v_and_b32 v41, 127, v0"); e("v_lshrrev_b32 v42, 7, v0")
    e("v_lshlrev_b32 v43, 12, v42"); e("v_lshl_add_u32 v43, v41, 2, v43")
    for g in range(8): e(f"ds_read_b32 v{48+g}, v43 offset:{L_G + 512*g}")
    e("s_waitcnt lgkmcnt(0)")
    for g in range(1, 8): e(f"v_add_f32 v48, v48, v{48+g}")
    e("v_lshlrev_b32 v43, 2, v0")
    e(f"ds_write_b32 v43, v48 offset:{L_S2}")
    e("s_waitcnt lgkmcnt(0)"); e("s_barrier")
    e("s_cmp_lg_u32 s20, 0"); e("s_cbranch_scc1 K4_NS3")
    e("v_lshrrev_b32 v41, 5, v2"); e("v_and_b32 v42, 31, v2"); e("v_lshrrev_b32 v43, 1, v42"); e("v_and_b32 v44, 1, v42")
    e("v_lshlrev_b32 v45, 5, v43"); e("v_lshl_add_u32 v45, v41, 3, v45"); e("v_lshl_add_u32 v45, v44, 2, v45")
    for g in range(8):
        e(f"ds_read_b32 v{48+g}, v45 offset:{L_S2 + 512*g}")
        e(f"ds_read_b32 v{56+g}, v45 offset:{L_S2 + 512*g + 16}")
    e("s_waitcnt lgkmcnt(0)")
    for g in range(1, 8):
        e(f"v_add_f32 v48, v48, v{48+g}"); e(f"v_add_f32 v56, v56, v{56+g}")
    rnd_bf16(e, 48, 48); rnd_bf16(e, 56, 56)
    e("v_mul_f32 v49, 0xbfb8aa3b, v48"); e("v_exp_f32 v49, v49"); e("s_nop 0")
    e("v_add_f32 v49, 1.0, v49"); e("v_rcp_f32 v49, v49"); e("s_nop 0")
    e("v_mul_f32 v49, v48, v49"); rnd_bf16(e, 49, 49)
    e("v_mul_f32 v49, v49, v56"); rnd_bf16(e, 49, 49)
    e("v_lshlrev_b32 v50, 3, v42"); e("v_lshl_add_u32 v50, v41, 2, v50")
    e(f"ds_write_b32 v50, v49 offset:{L_ACT}")
    e("s_waitcnt lgkmcnt(0)")
    e.lab("K4_NS3")
    e("s_barrier"); stamp(e, 4)
    e("v_lshlrev_b32 v41, 6, v6")
    for i in range(8): e(f"ds_read_b64 {vr(48+2*i,2)}, v41 offset:{L_ACT + 8*i}")
    for r in range(104, 108): e(f"v_mov_b32 v{r}, 0")
    for i in range(8):
        e(f"s_waitcnt vmcnt({7-i}) lgkmcnt({7-i})")
        w = 96 + i; t = 44 + 2*(i & 1)
        e(f"v_lshlrev_b32 v{t}, 16, v{w}"); e(f"v_and_b32 v{t+1}, 0xffff0000, v{w}")
        for tk in range(2):
            a = 104 + tk*2
            e(f"v_fmac_f32 v{a}, v{t}, v{48+2*i+tk}"); e(f"v_fmac_f32 v{a+1}, v{t+1}, v{48+2*i+tk}")
    e("v_lshlrev_b32 v41, 4, v0")
    e(f"ds_write_b128 v41, v[104:107] offset:{L_D}")
    e("s_waitcnt lgkmcnt(0)"); e("s_barrier")
    e("v_lshrrev_b32 v41, 9, v0"); e("v_and_b32 v42, 511, v0"); e("v_lshrrev_b32 v43, 1, v42"); e("v_and_b32 v44, 1, v42")
    e("v_lshlrev_b32 v45, 4, v43"); e("v_lshl_add_u32 v45, v41, 3, v45"); e("v_lshl_add_u32 v45, v44, 2, v45")
    for g in range(4): e(f"ds_read_b32 v{48+g}, v45 offset:{L_D + 4096*g}")
    e("s_waitcnt lgkmcnt(0)")
    e("v_add_f32 v48, v48, v49"); e("v_add_f32 v50, v50, v51"); e("v_add_f32 v48, v48, v50")
    e("v_lshlrev_b32 v46, 2, v0"); e(f"s_mov_b32 s58, {WS_Y:#x}")
    e("buffer_atomic_add_f32 v48, v46, s[12:15], s58 offen")
    e("s_waitcnt vmcnt(0)"); e("s_barrier"); stamp(e, 5)
    e("s_cmp_lg_u32 s20, 0"); e("s_cbranch_scc1 K4_NCNT")
    e("v_mov_b32 v48, 1"); e("v_mov_b32 v49, 0"); e(f"v_mov_b32 v50, {L_FLAG}")
    e("s_mov_b64 exec, 1")
    e("buffer_atomic_add v48, v49, s[40:43], 0 offen sc0")
    e("s_waitcnt vmcnt(0)")
    e("ds_write_b32 v50, v48")
    e("s_mov_b64 exec, -1")
    e("s_waitcnt lgkmcnt(0)")
    e.lab("K4_NCNT")
    e("s_barrier")
    e(f"v_mov_b32 v50, {L_FLAG}"); e("ds_read_b32 v48, v50"); e("s_waitcnt lgkmcnt(0)")
    e("v_readfirstlane_b32 s59, v48")
    if DIAG:
        stamp(e, 6); stamp_out(e, 7, 4, 12)
    e(f"s_cmp_lg_u32 s59, {NF-1}"); e("s_cbranch_scc1 K4_END")
    e("v_mov_b32 v48, 0")
    e("buffer_atomic_add_f32 v48, v46, s[12:15], s58 offen sc0")
    e("v_lshlrev_b32 v47, 6, v41")
    for q in range(4): e(f"ds_read_b128 {vr(52+4*q,4)}, v47 offset:{512 + 16*q}")
    e("v_lshlrev_b32 v47, 3, v42"); e("v_lshl_add_u32 v47, v41, 2, v47")
    e(f"ds_read_b32 v49, v47 offset:{L_XS}")
    e("v_lshlrev_b32 v47, 1, v0")
    e(f"ds_read_u16 v50, v47 offset:{L_H}")
    e("s_waitcnt lgkmcnt(0)")
    for q in range(1, 16): e(f"v_add_f32 v52, v52, v{52+q}")
    rnd_bf16(e, 52, 52)
    e("v_mul_f32 v52, 0xbfb8aa3b, v52"); e("v_exp_f32 v52, v52"); e("s_nop 0")
    e("v_add_f32 v52, 1.0, v52"); e("v_rcp_f32 v52, v52"); e("s_nop 0")
    rnd_bf16(e, 52, 52)
    e("v_lshlrev_b32 v50, 16, v50")
    e("s_cmp_lt_u32 s20, 8"); e("s_cselect_b32 s60, s56, s57"); e("s_lshl_b32 s60, s60, 10")
    e("v_lshlrev_b32 v51, 1, v42")
    e("s_waitcnt vmcnt(0)")
    rnd_bf16(e, 48, 48)
    e("v_mul_f32 v48, v48, v52"); rnd_bf16(e, 48, 48)
    e("v_add_f32 v48, v49, v48"); rnd_bf16(e, 48, 48)
    e("v_add_f32 v48, v50, v48"); e("v_cvt_pk_bf16_f32 v48, v48, v48")
    e("buffer_store_short v48, v51, s[16:19], s60 offen")
    if TL:
        e("s_cmp_lg_u32 s20, 0"); e("s_cbranch_scc1 K4_END")
        e("s_waitcnt vmcnt(0)")
        e("s_memrealtime s[60:61]"); e("s_waitcnt lgkmcnt(0)")
        e("v_lshlrev_b32 v50, 2, v2"); e(f"s_mov_b32 s62, {0xB00000:#x}")
        e("buffer_load_dword v51, v50, s[12:15], s62 offen sc1")
        e("s_waitcnt vmcnt(0)")
        e("v_mov_b32 v52, s60"); e("v_cmp_eq_u32 vcc, 5, v2"); e("s_nop 1"); e("v_cndmask_b32 v51, v51, v52, vcc")
        e("v_cmp_gt_u32 vcc, 6, v2"); e("v_cmp_lt_u32 s[60:61], 0, v2"); e("s_nop 1"); e("s_and_b64 exec, vcc, s[60:61]")
        e("buffer_store_dword v51, v50, s[40:43], 0 offen")
    e.lab("K4_END"); e("s_endpgm")
    return e.txt(), descr(name, 112, 96), f"; @launch kernel={name} grid=({NF+NE},1,1) block=(1024,1,1) lds=65536"

def main(out):
    ks = [k1(), k2(), k3(), k4()]
    s = "; generated 5-kernel pipeline: LN1+QKV | attention | out-proj+stats | LN2 out + top2 + gate/up | down + final rows\n"
    for k in ks: s += k[2] + "\n"
    s += '.amdgcn_target "amdgcn-amd-amdhsa--gfx950"\n.text\n'
    for k in ks: s += k[0]
    s += '.section .rodata,"a"\n'
    for k in ks: s += k[1]
    open(out, "w").write(s)

if __name__ == "__main__":
    if len(sys.argv) > 2 and sys.argv[2] == "diag": DIAG = True
    if len(sys.argv) > 2 and sys.argv[2] == "codepf": CODEPF = True
    if len(sys.argv) > 2 and sys.argv[2] == "tl": TL = True
    for q in range(1536): assert (q * 2731) >> 16 == q // 24
    main(sys.argv[1] if len(sys.argv) > 1 else "sequential_preLN__softmax_full_mha__moe_arch_mod__prompt.s")
```

```python
import sys, math

WS_Q = 0x000000; WS_K = 0x200000; WS_V = 0x400000; WS_O = 0x600000; WS_H = 0x800000
WS_ST = 0xA00000; WS_ACT = 0xA10000; WS_SEL = 0xA20000
C_SCALE = 0.25 * math.log2(math.e)
import struct
def f32bits(x): return struct.unpack("<I", struct.pack("<f", x))[0]

class E:
    def __init__(self): self.l = []
    def __call__(self, s): self.l.append("    " + s)
    def lab(self, s): self.l.append(s + ":")
    def c(self, s): self.l.append("    ; " + s)
    def nop(self, n):
        while n > 0:
            k = min(n, 16); self(f"s_nop {k-1}"); n -= k
    def txt(self): return "\n".join(self.l) + "\n"

def vr(a, n): return f"v[{a}:{a+n-1}]"
def sr(a, n): return f"s[{a}:{a+n-1}]"

def srd(e, d, lo, hi, size):
    e(f"s_mov_b32 s{d}, s{lo}"); e(f"s_mov_b32 s{d+1}, s{hi}"); e(f"s_mov_b32 s{d+2}, {size:#x}"); e(f"s_mov_b32 s{d+3}, 0x00020000")

def header(e, name):
    e.l.append(f".globl {name}"); e.l.append(".p2align 8"); e.l.append(f".type {name},@function"); e.lab(name)

def descr(name, vg, sg=64):
    if DIAG: vg = max(vg, 128); sg = 102
    vg4 = (vg + 3) // 4 * 4
    return f""".p2align 6
.amdhsa_kernel {name}
  .amdhsa_next_free_vgpr {vg}
  .amdhsa_next_free_sgpr {sg}
  .amdhsa_accum_offset {vg4}
  .amdhsa_group_segment_fixed_size 0
  .amdhsa_kernarg_size 88
  .amdhsa_user_sgpr_count 2
  .amdhsa_user_sgpr_kernarg_segment_ptr 1
  .amdhsa_system_sgpr_workgroup_id_x 1
.end_amdhsa_kernel
"""

DIAG = False
CODEPF = False
TL = False
WPF = False
def tl_start(e, k, srdb, vt):
    if not TL: return
    e("s_cmp_lg_u32 s2, 0"); e(f"s_cbranch_scc1 TL{k}"); e("s_cmp_lg_u32 s20, 0"); e(f"s_cbranch_scc1 TL{k}")
    e("s_memrealtime s[60:61]"); e("s_waitcnt lgkmcnt(0)")
    e(f"v_mov_b32 v{vt}, s60"); e(f"v_mov_b32 v{vt+1}, 0"); e(f"s_mov_b32 s62, {0xB00000 + 4*k:#x}")
    e(f"buffer_store_dword v{vt}, v{vt+1}, s[{srdb}:{srdb+3}], s62 offen")
    e("s_waitcnt vmcnt(0)")
    e.lab(f"TL{k}")
WS_DIAG = 0xB00000
def stamp(e, idx):
    if not DIAG: return
    b = 70 + 4*idx
    e(f"s_memtime s[{b}:{b+1}]"); e(f"s_memrealtime s[{b+2}:{b+3}]"); e("s_waitcnt lgkmcnt(0)")
def stamp_out(e, n, kid, srdbase, wavesreg="s20"):
    if not DIAG: return
    e("s_mov_b64 exec, 1")
    e(f"s_lshl_b32 s68, s2, 4"); e(f"s_add_u32 s68, s68, {wavesreg}"); e("s_lshl_b32 s68, s68, 7"); e(f"s_add_u32 s68, s68, {WS_DIAG + kid*0x80000:#x}")
    e("v_mov_b32 v122, 0")
    for i in range(n):
        b = 70 + 4*i
        e(f"v_mov_b32 v124, s{b}"); e(f"v_mov_b32 v125, s{b+1}"); e(f"v_mov_b32 v126, s{b+2}"); e(f"v_mov_b32 v127, s{b+3}")
        e(f"buffer_store_dwordx4 v[124:127], v122, s[{srdbase}:{srdbase+3}], s68 offen offset:{16*i}")
        e("s_nop 1")
    e("s_mov_b64 exec, -1")

def rnd_bf16(e, d, s):
    e(f"v_cvt_pk_bf16_f32 v{d}, v{s}, v{s}")
    e(f"v_lshlrev_b32 v{d}, 16, v{d}")

def ln_scalars(e, sm, sq, t, outs, inv_n):
    mb, sb = outs
    e(f"v_mul_f32 v{t}, {inv_n}, v{sm}")
    e(f"v_mul_f32 v{t+1}, {inv_n}, v{sq}")
    e(f"v_fma_f32 v{t+1}, -v{t}, v{t}, v{t+1}")
    e(f"v_max_f32 v{t+1}, 0, v{t+1}")
    rnd_bf16(e, mb, t)
    rnd_bf16(e, t+1, t+1)
    e(f"v_add_f32 v{t+1}, 0x3727c5ac, v{t+1}")
    rnd_bf16(e, t+1, t+1)
    e(f"v_sqrt_f32 v{t+1}, v{t+1}")
    e("s_nop 0")
    rnd_bf16(e, sb, t+1)

def k1():
    e = E(); name = "k1_kernel"; header(e, name)
    A_BASE = 73728; AP = 1040
    e("s_cmp_ge_u32 s2, 256"); e("s_cbranch_scc1 K1_END")
    e("s_load_dwordx4 s[4:7], s[0:1], 0"); e("s_load_dwordx2 s[8:9], s[0:1], 80")
    e("v_lshrrev_b32 v1, 6, v0"); e("v_and_b32 v2, 63, v0"); e("s_nop 0")
    e("v_readfirstlane_b32 s20, v1")
    e("s_bfe_u32 s21, s2, 0x20001"); e("s_lshl_b32 s21, s21, 3"); e("s_bfe_u32 s22, s2, 0x30003"); e("s_add_u32 s21, s21, s22")
    e("s_and_b32 s22, s2, 1"); e("s_lshl_b32 s22, s22, 2"); e("s_lshr_b32 s23, s2, 6"); e("s_add_u32 s22, s22, s23")
    e("s_waitcnt lgkmcnt(0)")
    srd(e, 12, 4, 5, 2097152); srd(e, 16, 6, 7, 1572864); srd(e, 24, 8, 9, 0x1000000); stamp(e, 0); tl_start(e, 1, 24, 120)
    e("v_lshrrev_b32 v4, 3, v2"); e("v_and_b32 v5, 7, v2")
    e("s_cmp_ge_u32 s20, 8"); e("s_cbranch_scc1 K1_NOX")
    e("s_lshl_b32 s23, s21, 6"); e("s_lshl_b32 s31, s20, 3"); e("s_add_u32 s23, s23, s31")
    e("v_add_u32 v3, s23, v4"); e("v_lshlrev_b32 v3, 10, v3"); e("v_lshl_add_u32 v3, v5, 4, v3")
    for i in range(8):
        e(f"buffer_load_dwordx4 {vr(64+4*i,4)}, v3, s[12:15], 0 offen offset:{i*128}")
    e.lab("K1_NOX")
    e("s_lshl_b32 s31, s20, 7")
    e("s_movk_i32 s33, 2731")
    e("s_mul_i32 s34, s22, 384")
    for i in range(2):
        e(f"v_add_u32 v6, s31, v2")
        if i: e(f"v_add_u32 v6, {i*64}, v6")
        e("v_mul_lo_u32 v7, v6, s33"); e("v_lshrrev_b32 v7, 16, v7")
        e("v_mul_u32_u24 v8, 24, v7"); e("v_sub_u32 v8, v6, v8")
        e("v_lshrrev_b32 v9, 2, v8")
        e("v_bfe_u32 v16, v7, 1, 1"); e("v_xor_b32 v9, v9, v16")
        e("v_and_b32 v8, 3, v8")
        e("v_mul_u32_u24 v7, 3072, v7")
        e("v_lshl_add_u32 v7, v9, 6, v7"); e("v_lshl_add_u32 v7, v8, 4, v7")
        e(f"v_add_u32 v{10+i}, s34, v7")
    e("s_lshl_b32 s35, s20, 11")
    def dma_chunk(c):
        buf = c % 3
        e(f"s_mov_b32 s36, {c*196608}")
        for i in range(2):
            e(f"s_add_u32 m0, s35, {buf*24576 + i*1024}")
            e("s_nop 0")
            e(f"buffer_load_dwordx4 v{10+i}, s[16:19], s36 offen lds")
    for c in range(3): dma_chunk(c)
    e("s_cmp_ge_u32 s20, 8"); e("s_cbranch_scc1 K1_WPF" if WPF else "s_cbranch_scc1 K1_NOLN")
    e("s_mov_b32 s38, 0x3f803f80")
    e("v_mov_b32 v17, s38")
    for p in range(4): e(f"v_mov_b32 v{32+p}, 0")
    e("s_lshl_b32 s31, s20, 3")
    e("v_add_u32 v18, s31, v4"); e(f"v_mul_u32_u24 v18, {AP}, v18"); e("v_lshl_add_u32 v18, v5, 4, v18")
    e(f"v_add_u32 v18, {A_BASE}, v18")
    e("s_waitcnt vmcnt(6)"); stamp(e, 1)
    for j in range(32):
        r = 64 + j
        e(f"v_dot2_f32_bf16 v{32+(j&1)}, v{r}, v17, v{32+(j&1)}")
        e(f"v_dot2_f32_bf16 v{34+(j&1)}, v{r}, v{r}, v{34+(j&1)}")
    e("s_nop 2")
    e("v_add_f32 v32, v32, v33"); e("v_add_f32 v34, v34, v35"); e("s_nop 1")
    for m in ("quad_perm:[1,0,3,2]", "quad_perm:[2,3,0,1]", "row_half_mirror"):
        e(f"v_add_f32_dpp v32, v32, v32 {m} row_mask:0xf bank_mask:0xf")
        e(f"v_add_f32_dpp v34, v34, v34 {m} row_mask:0xf bank_mask:0xf")
        e("s_nop 0")
    ln_scalars(e, 32, 34, 48, (50, 51), "0x3b000000")
    e(f"v_rcp_f32 v40, v51"); e("s_nop 0")
    e(f"v_mul_f32 v44, v50, v40"); e(f"v_sub_f32 v44, 0, v44")
    for j in range(32):
        r = 64 + j; t = 52 + 2*(j & 1)
        e(f"v_lshlrev_b32 v{t}, 16, v{r}"); e(f"v_and_b32 v{t+1}, 0xffff0000, v{r}")
        e(f"v_fma_f32 v{t}, v{t}, v40, v44"); e(f"v_fma_f32 v{t+1}, v{t+1}, v40, v44")
        e(f"v_cvt_pk_bf16_f32 v{r}, v{t}, v{t+1}")
        if j % 4 == 3:
            e(f"ds_write_b128 v18, {vr(r-3,4)} offset:{(j//4)*128}")
    if WPF:
        e("s_branch K1_NOLN")
        e.lab("K1_WPF")
        e("s_and_b32 s41, s21, 7"); e("s_cmp_ge_u32 s41, 5"); e("s_cbranch_scc1 K1_NOLN")
        e("s_add_u32 s41, s41, 3"); e("s_mul_i32 s41, s41, 196608")
        e("s_sub_u32 s42, s20, 8"); e("s_mul_i32 s42, s42, 384")
        for i in range(6):
            e("v_add_u32 v6, s42, v2")
            if i: e(f"v_add_u32 v6, {i*64}, v6")
            e("v_mul_lo_u32 v7, v6, s33"); e("v_lshrrev_b32 v7, 16, v7")
            e("v_mul_u32_u24 v8, 24, v7"); e("v_sub_u32 v8, v6, v8")
            e("v_mul_u32_u24 v7, 3072, v7"); e("v_lshl_add_u32 v7, v8, 4, v7"); e("v_add_u32 v7, s34, v7")
            e(f"buffer_load_dwordx4 {vr(64+4*i,4)}, v7, s[16:19], s41 offen")
        e("s_waitcnt vmcnt(0)")
    e.lab("K1_NOLN")
    e("s_and_b32 s39, s20, 1"); e("s_lshr_b32 s40, s20, 1")
    e("v_and_b32 v19, 31, v2"); e("v_lshrrev_b32 v20, 5, v2")
    e("s_lshl_b32 s31, s39, 5")
    e("v_add_u32 v21, s31, v19"); e(f"v_mul_u32_u24 v21, {AP}, v21"); e("v_lshl_add_u32 v21, v20, 4, v21")
    e(f"v_add_u32 v21, {A_BASE}, v21")
    e("v_bfe_u32 v22, v2, 2, 2")
    e("v_and_b32 v23, 3, v2")
    e("v_bfe_u32 v24, v2, 4, 1")
    e("v_lshl_add_u32 v25, v20, 3, v22")
    e("v_mul_u32_u24 v25, 384, v25")
    e("v_lshl_add_u32 v25, v24, 5, v25"); e("v_lshl_add_u32 v25, v23, 3, v25")
    e("v_lshrrev_b32 v26, 1, v22")
    e("v_xor_b32 v27, s40, v26")
    e("v_lshl_add_u32 v54, v27, 6, v25")
    e("v_add_u32 v55, 49152, v54")
    for r in range(96, 112): e(f"v_mov_b32 v{r}, 0")
    e("s_waitcnt lgkmcnt(0)")
    stamp(e, 2)
    XF = [112, 116]; WF = [120, 124]
    def reads(c, ks, sel):
        buf = c % 3; s = c*4 + ks
        e(f"ds_read_b128 {vr(XF[sel],4)}, v21 offset:{32*s}")
        base = 55 if buf == 2 else 54
        bo = 0 if buf == 2 else buf*24576
        for u in range(2):
            e(f"ds_read_b64_tr_b16 {vr(WF[sel]+2*u,2)}, v{base} offset:{bo + (16*ks+4*u)*384}")
    for c in range(8):
        n = 4 if c == 0 else (0 if c == 7 else 2)
        e(f"s_waitcnt vmcnt({n})"); e("s_barrier")
        reads(c, 0, 0)
        if 1 <= c <= 5: dma_chunk(c+2)
        for ks in range(4):
            sel = ks & 1
            if ks < 3:
                reads(c, ks+1, sel ^ 1); e("s_waitcnt lgkmcnt(3)")
            else:
                e("s_waitcnt lgkmcnt(0)")
            e(f"v_mfma_f32_32x32x16_bf16 {vr(96,16)}, {vr(WF[sel],4)}, {vr(XF[sel],4)}, {vr(96,16)}")
    stamp(e, 3)
    e("s_lshl_b32 s31, s21, 6"); e("s_lshl_b32 s42, s39, 5"); e("s_add_u32 s31, s31, s42")
    e("v_add_u32 v22, s31, v19"); e("v_lshlrev_b32 v22, 5, v22"); e("v_lshl_add_u32 v22, v20, 4, v22")
    e("s_mul_i32 s44, s22, 6"); e("s_add_u32 s44, s44, s40")
    e("s_lshr_b32 s45, s44, 4")
    e("s_and_b32 s46, s44, 15")
    e("s_lshl_b32 s47, s45, 21"); e("s_lshl_b32 s46, s46, 17"); e("s_add_u32 s47, s47, s46")
    e("s_add_u32 s48, s47, 0x10000")
    e("s_cmp_eq_u32 s45, 0"); e(f"s_cselect_b32 s49, {f32bits(C_SCALE):#x}, 1.0")
    e.nop(8)
    a = 96
    for r in range(16): e(f"v_mul_f32 v{a+r}, s49, v{a+r}")
    for r in range(8): e(f"v_cvt_pk_bf16_f32 v{a+r}, v{a+2*r}, v{a+2*r+1}")
    e(f"buffer_store_dwordx4 {vr(a,4)}, v22, s[24:27], s47 offen")
    e(f"buffer_store_dwordx4 {vr(a+4,4)}, v22, s[24:27], s48 offen")
    e("s_cmp_ge_u32 s2, 9"); e("s_cbranch_scc1 K1_NOZ"); e("s_cmp_ge_u32 s20, 4"); e("s_cbranch_scc1 K1_NOZ")
    e("v_mov_b32 v20, 0"); e("v_mov_b32 v21, 0"); e("v_mov_b32 v22, 0"); e("v_mov_b32 v23, 0")
    e("s_lshl_b32 s37, s2, 12"); e("s_cmp_eq_u32 s2, 8"); e("s_cselect_b32 s37, 0x10000, s37"); e(f"s_add_u32 s37, s37, {WS_ST:#x}")
    e("v_lshlrev_b32 v24, 4, v0")
    e("buffer_store_dwordx4 v[20:23], v24, s[24:27], s37 offen")
    e.lab("K1_NOZ")
    e("s_cmp_lg_u32 s2, 9"); e("s_cbranch_scc1 K1_NOS"); e("s_cmp_lg_u32 s20, 0"); e("s_cbranch_scc1 K1_NOS")
    e("s_load_dwordx2 s[4:5], s[0:1], 32"); e("s_waitcnt lgkmcnt(0)")
    srd(e, 52, 4, 5, 1024)
    e("v_lshlrev_b32 v8, 4, v2")
    e("buffer_load_dwordx4 v[12:15], v8, s[52:55], 0 offen")
    e("s_mov_b32 s56, 0x3f803f80"); e("v_mov_b32 v18, s56"); e("v_mov_b32 v10, 0")
    e("s_waitcnt vmcnt(0)")
    for q in range(4): e(f"v_dot2_f32_bf16 v10, v{12+q}, v18, v10")
    e("s_nop 2")
    for ror in (8, 4, 2, 1):
        e(f"v_add_f32_dpp v10, v10, v10 row_ror:{ror} row_mask:0xf bank_mask:0xf"); e("s_nop 1")
    for q in range(4): e(f"v_readlane_b32 s{56+q}, v10, {16*q}")
    e("s_nop 1")
    e("v_mov_b32 v10, s56"); e("v_add_f32 v10, s57, v10"); e("v_add_f32 v10, s58, v10"); e("v_add_f32 v10, s59, v10")
    e("v_mov_b32 v8, 0"); e(f"s_mov_b32 s37, {WS_ST + 0x8000:#x}")
    e("buffer_store_dword v10, v8, s[24:27], s37 offen")
    e.lab("K1_NOS")
    if CODEPF:
        e("s_cmp_lt_u32 s2, 16"); e("s_cbranch_scc1 K1_NOPF"); e("s_cmp_ge_u32 s2, 29"); e("s_cbranch_scc1 K1_NOPF"); e("s_cmp_lg_u32 s20, 11"); e("s_cbranch_scc1 K1_NOPF")
        e("s_getpc_b64 s[56:57]")
        e("s_sub_u32 s58, s2, 16"); e("s_lshl_b32 s58, s58, 10")
        e("v_lshlrev_b32 v8, 4, v2"); e("v_add_u32 v8, s58, v8")
        e("global_load_dwordx4 v[12:15], v8, s[56:57]")
        e.lab("K1_NOPF")
    if DIAG:
        e("s_waitcnt vmcnt(0)"); stamp(e, 4)
        e("s_cmp_ge_u32 s20, 8"); e("s_cbranch_scc1 K1_END")
        stamp_out(e, 5, 1, 24)
    e.lab("K1_END"); e("s_endpgm")
    return e.txt(), descr(name, 128, 64), f"; @launch kernel={name} grid=(256,1,1) block=(768,1,1) lds=140288"

def k2():
    e = E(); name = "k2_kernel"; header(e, name)
    VB = 65536; CB = 131072; XB = 140288
    Q = 8; NM = 16; S = [32, 48]; O = 64; P2 = [80, 112]; KB = [88, 92]; VF = [96, 104]; T = 120
    e("s_cmp_ge_u32 s2, 256"); e("s_cbranch_scc1 K2_END")
    e("s_load_dwordx2 s[4:5], s[0:1], 80")
    e("v_lshrrev_b32 v1, 6, v0"); e("v_and_b32 v2, 63, v0"); e("s_nop 0")
    e("v_readfirstlane_b32 s20, v1")
    e("s_and_b32 s21, s2, 7"); e("s_lshl_b32 s21, s21, 2"); e("s_bfe_u32 s22, s2, 0x20003"); e("s_add_u32 s21, s21, s22")
    e("s_lshr_b32 s22, s2, 5")
    e("s_and_b32 s31, s20, 7"); e("s_lshr_b32 s32, s20, 3")
    e("s_waitcnt lgkmcnt(0)")
    srd(e, 8, 4, 5, 0x1000000); stamp(e, 0); tl_start(e, 2, 8, 120)
    e("v_and_b32 v7, 31, v2"); e("v_lshrrev_b32 v6, 5, v2")
    e("v_lshlrev_b32 v3, 5, v7"); e("v_lshl_add_u32 v3, v6, 4, v3")
    e("v_lshlrev_b32 v4, 4, v2")
    e("s_lshl_b32 s23, s21, 16"); e("s_lshl_b32 s24, s22, 13"); e("s_lshl_b32 s25, s31, 10")
    e("s_add_u32 s24, s24, s25"); e("s_add_u32 s24, s24, s23")
    e(f"buffer_load_dwordx4 {vr(Q,4)}, v3, s[8:11], s24 offen")
    e("s_lshl_b32 s33, s32, 15"); e("s_add_u32 s25, s25, s33")
    e(f"s_add_u32 s26, s23, s25"); e(f"s_add_u32 s26, s26, {WS_K:#x}")
    def dma(c):
        e(f"s_add_u32 s27, s26, {c*8192}"); e(f"s_add_u32 s28, s27, {WS_V-WS_K:#x}")
        e(f"s_add_u32 m0, s25, {c*8192}"); e("s_nop 0")
        e("buffer_load_dwordx4 v4, s[8:11], s27 offen lds")
        e(f"s_add_u32 m0, s25, {VB + c*8192}"); e("s_nop 0")
        e("buffer_load_dwordx4 v4, s[8:11], s28 offen lds")
    dma(0); dma(1)
    e(f"v_and_b32 v{T}, 1, v0")
    e(f"v_mov_b32 v{T+4}, 0x3f80"); e(f"v_mov_b32 v{T+5}, 0"); e(f"v_mov_b32 v{T+7}, 0")
    e(f"v_cmp_eq_u32 vcc, 0, v{T}"); e("s_nop 1")
    e(f"v_cndmask_b32 v{T+4}, 0, v{T+4}, vcc"); e(f"v_mov_b32 v{T+6}, v{T+4}")
    e(f"v_lshlrev_b32 v{T+1}, 4, v0"); e(f"v_add_u32 v{T+1}, {CB}, v{T+1}")
    e("s_cmp_ge_u32 s20, 9"); e("s_cbranch_scc1 K2_NOC")
    e(f"ds_write_b128 v{T+1}, {vr(T+4,4)}")
    e.lab("K2_NOC")
    e("v_add_u32 v3, s33, v3")
    e(f"v_bfe_u32 v{T}, v2, 2, 2"); e(f"v_and_b32 v{T+1}, 3, v2"); e(f"v_bfe_u32 v{T+2}, v2, 4, 1")
    e(f"v_lshl_add_u32 v{T+3}, v6, 2, v{T}")
    e(f"v_lshlrev_b32 v{T+3}, 5, v{T+3}"); e(f"v_lshl_add_u32 v{T+3}, v{T+1}, 3, v{T+3}")
    e(f"v_add_u32 v{T+3}, {VB}, v{T+3}"); e(f"v_add_u32 v{T+3}, s33, v{T+3}")
    e(f"v_lshlrev_b32 v{T+4}, 5, v{T}"); e(f"v_lshl_add_u32 v{T+4}, v{T+1}, 3, v{T+4}"); e(f"v_add_u32 v{T+4}, {CB}, v{T+4}")
    e(f"v_cmp_eq_u32 vcc, 0, v{T+2}"); e(f"v_mov_b32 v{T+5}, 0x2000"); e("s_nop 1")
    e(f"v_cndmask_b32 v5, v{T+4}, v{T+3}, vcc")
    e(f"v_cndmask_b32 v1, 0, v{T+5}, vcc")
    for r in range(16): e(f"v_mov_b32 v{O+r}, 0")
    for r in range(8): e(f"v_mov_b32 v{P2[1]+r}, 0"); e(f"v_mov_b32 v{VF[1]+r}, 0")
    e("s_waitcnt vmcnt(2) lgkmcnt(0)"); e("s_barrier"); stamp(e, 1)
    e(f"ds_read_b128 {vr(KB[0],4)}, v3")
    e("s_waitcnt lgkmcnt(0)")
    e(f"v_mfma_f32_32x32x16_bf16 {vr(S[0],16)}, {vr(KB[0],4)}, {vr(Q,4)}, 0")
    e(f"ds_read_b128 {vr(KB[1],4)}, v3 offset:1024")
    for j in range(2):
        for u in range(2):
            e(f"ds_read_b64_tr_b16 {vr(VF[0]+4*j+2*u,2)}, v5 offset:{j*512+u*256}")
    dma(2); dma(3)
    s0 = S[0]
    e(f"v_max3_f32 v{T}, v{s0}, v{s0+1}, v{s0+2}")
    for r in range(3, 15, 2): e(f"v_max3_f32 v{T}, v{T}, v{s0+r}, v{s0+r+1}")
    e(f"v_max_f32 v{T}, v{T}, v{s0+15}")
    e(f"v_mov_b32 v{T+1}, v{T}"); e("s_nop 1")
    e(f"v_permlane32_swap_b32 v{T}, v{T+1}"); e("s_nop 1")
    e(f"v_max_f32 v{T}, v{T}, v{T+1}")
    e(f"v_sub_f32 v{T}, 0, v{T}")
    for r in range(16): e(f"v_mov_b32 v{NM+r}, v{T}")
    e("s_nop 1")
    e(f"v_mfma_f32_32x32x16_bf16 {vr(S[0],16)}, {vr(KB[0],4)}, {vr(Q,4)}, {vr(NM,16)}")
    stamp(e, 2)
    e("s_mov_b32 s30, 0"); e.nop(10)
    e.lab("K2_LOOP")
    for i in range(8):
        cur = i & 1; nx = cur ^ 1; sc = S[cur]; Pc = P2[cur]; Pp = P2[nx]
        if i == 5:
            e("s_cmp_gt_u32 s30, 2"); e("s_cbranch_scc1 K2_NW")
            e("s_cmp_eq_u32 s30, 0"); e("s_cbranch_scc0 K2_W1")
            e("s_waitcnt vmcnt(4)"); e("s_branch K2_WB")
            e.lab("K2_W1"); e("s_cmp_eq_u32 s30, 1"); e("s_cbranch_scc0 K2_W2")
            e("s_waitcnt vmcnt(2)"); e("s_branch K2_WB")
            e.lab("K2_W2"); e("s_waitcnt vmcnt(0)")
            e("s_load_dwordx2 s[40:41], s[0:1], 16"); e("s_load_dwordx4 s[44:47], s[0:1], 40"); e("s_load_dwordx2 s[48:49], s[0:1], 56")
            e("s_lshl_b32 s42, s2, 4"); e("s_add_u32 s42, s42, s20")
            e("s_waitcnt lgkmcnt(0)")
            e("s_cmp_lt_u32 s42, 1792"); e("s_cselect_b32 s52, s44, s46"); e("s_cselect_b32 s53, s45, s47"); e("s_cselect_b32 s43, 0, 1792")
            e("s_cmp_lt_u32 s42, 3584"); e("s_cselect_b32 s52, s52, s48"); e("s_cselect_b32 s53, s53, s49"); e("s_cselect_b32 s43, s43, 3584")
            e("s_mov_b32 s54, 1835008"); e("s_mov_b32 s55, 0x00020000")
            e("s_sub_u32 s43, s42, s43"); e("s_lshl_b32 s43, s43, 10")
            e("buffer_load_dwordx4 v[12:15], v4, s[52:55], s43 offen")
            e("s_add_u32 s43, s42, 512"); e("s_sub_u32 s50, s42, 1280"); e("s_mov_b32 s51, 524288")
            e("s_cmp_lt_u32 s42, 1280"); e("s_cselect_b32 s56, s48, s40"); e("s_cselect_b32 s57, s49, s41"); e("s_cselect_b32 s58, s54, s51")
            e("s_cselect_b32 s43, s43, s50"); e("s_mov_b32 s59, 0x00020000"); e("s_lshl_b32 s43, s43, 10")
            e("buffer_load_dwordx4 v[12:15], v4, s[56:59], s43 offen")
            e.lab("K2_WB"); e("s_barrier")
            e.lab("K2_NW")
        ex = lambda r: e(f"v_exp_f32 v{sc+r}, v{sc+r}")
        cv = lambda p: e(f"v_cvt_pk_bf16_f32 v{Pc+p}, v{sc+2*p}, v{sc+2*p+1}")
        e("s_waitcnt lgkmcnt(4)")
        e(f"v_mfma_f32_32x32x16_bf16 {vr(S[nx],16)}, {vr(KB[nx],4)}, {vr(Q,4)}, {vr(NM,16)}")
        e(f"ds_read_b128 {vr(KB[cur],4)}, v3 offset:{(i+2)*1024}")
        ex(0); ex(1); ex(2); cv(0); ex(3); ex(4); cv(1)
        e(f"v_mfma_f32_32x32x16_bf16 {vr(O,16)}, {vr(VF[nx],4)}, {vr(Pp,4)}, {vr(O,16)}")
        ex(5); ex(6); cv(2); ex(7); ex(8); cv(3); ex(9); ex(10); cv(4)
        e(f"v_mfma_f32_32x32x16_bf16 {vr(O,16)}, {vr(VF[nx]+4,4)}, {vr(Pp+4,4)}, {vr(O,16)}")
        for j in range(2):
            for u in range(2):
                e(f"ds_read_b64_tr_b16 {vr(VF[nx]+4*j+2*u,2)}, v5 offset:{(i+1)*1024 + j*512+u*256}")
        ex(11); ex(12); cv(5); ex(13); ex(14); cv(6); ex(15); e("s_nop 0"); cv(7)
    e("v_add_u32 v3, 0x2000, v3"); e("v_add_u32 v5, v5, v1")
    e("s_add_u32 s30, s30, 1"); e("s_cmp_lt_u32 s30, 4"); e("s_cbranch_scc1 K2_LOOP")
    e("s_waitcnt lgkmcnt(0)")
    e(f"v_mfma_f32_32x32x16_bf16 {vr(O,16)}, {vr(VF[1],4)}, {vr(P2[1],4)}, {vr(O,16)}")
    e(f"v_mfma_f32_32x32x16_bf16 {vr(O,16)}, {vr(VF[1]+4,4)}, {vr(P2[1]+4,4)}, {vr(O,16)}")
    e.nop(16)
    stamp(e, 3)
    e(f"v_mov_b32 v{T}, 0x5d800000")
    e(f"v_cmp_nlt_f32 vcc, v{O+8}, v{T}"); e("s_nop 4")
    e("s_cbranch_vccnz K2_SLOW")
    e.lab("K2_OUT")
    e("s_mul_i32 s34, s31, 2560"); e(f"s_add_u32 s34, s34, {XB}")
    e(f"v_lshl_add_u32 v{T+1}, v2, 2, s34")
    e("s_cmp_eq_u32 s32, 0"); e("s_cbranch_scc1 K2_LOW")
    for r in range(9): e(f"ds_write_b32 v{T+1}, v{O+r} offset:{256*r}")
    e(f"ds_write_b32 v{T+1}, v{NM} offset:{256*9}")
    e("s_waitcnt lgkmcnt(0)"); e("s_barrier")
    if DIAG: stamp_out(e, 4, 2, 8, "s20")
    e("s_endpgm")
    e.lab("K2_LOW")
    e("s_barrier")
    for r in range(10): e(f"ds_read_b32 v{S[0]+r}, v{T+1} offset:{256*r}")
    e("s_waitcnt lgkmcnt(0)")
    e(f"v_min_f32 v{T}, v{NM}, v{S[0]+9}")
    e(f"v_sub_f32 v{T+2}, v{T}, v{NM}"); e(f"v_sub_f32 v{T+3}, v{T}, v{S[0]+9}")
    e(f"v_exp_f32 v{T+2}, v{T+2}"); e(f"v_exp_f32 v{T+3}, v{T+3}"); e("s_nop 0")
    for r in range(9):
        e(f"v_mul_f32 v{O+r}, v{O+r}, v{T+2}"); e(f"v_fmac_f32 v{O+r}, v{S[0]+r}, v{T+3}")
    e(f"v_rcp_f32 v{T}, v{O+8}"); e("s_nop 0")
    for r in range(8): e(f"v_mul_f32 v{O+r}, v{O+r}, v{T}")
    for r in range(4): e(f"v_cvt_pk_bf16_f32 v{P2[0]+r}, v{O+2*r}, v{O+2*r+1}")
    e("s_lshl_b32 s24, s22, 8"); e("s_lshl_b32 s25, s31, 5"); e("s_add_u32 s24, s24, s25")
    e(f"v_add_u32 v{T+1}, s24, v7"); e(f"v_lshlrev_b32 v{T+1}, 10, v{T+1}"); e(f"v_lshl_add_u32 v{T+1}, v6, 4, v{T+1}")
    e("s_lshl_b32 s25, s21, 5"); e(f"s_add_u32 s25, s25, {WS_O:#x}")
    e(f"buffer_store_dwordx4 {vr(P2[0],4)}, v{T+1}, s[8:11], s25 offen")
    if DIAG: stamp_out(e, 4, 2, 8, "s20")
    e("s_endpgm")
    e.lab("K2_SLOW")
    P = P2[0]
    e("v_subrev_u32 v3, 0x8000, v3")
    e(f"v_lshlrev_b32 v{T+5}, 2, v1"); e(f"v_sub_u32 v5, v5, v{T+5}")
    e(f"v_lshrrev_b32 v1, 3, v1")
    e(f"v_sub_f32 v{NM}, 0, v{NM}")
    for r in range(16): e(f"v_mov_b32 v{O+r}, 0")
    e("s_mov_b32 s30, 0")
    e.lab("K2_SL")
    e(f"ds_read_b128 {vr(KB[0],4)}, v3")
    for j in range(2):
        for u in range(2):
            e(f"ds_read_b64_tr_b16 {vr(VF[0]+4*j+2*u,2)}, v5 offset:{j*512+u*256}")
    e("s_waitcnt lgkmcnt(0)")
    e(f"v_mfma_f32_32x32x16_bf16 {vr(S[0],16)}, {vr(KB[0],4)}, {vr(Q,4)}, 0")
    e.nop(16)
    e(f"v_max3_f32 v{T}, v{s0}, v{s0+1}, v{s0+2}")
    for r in range(3, 15, 2): e(f"v_max3_f32 v{T}, v{T}, v{s0+r}, v{s0+r+1}")
    e(f"v_max3_f32 v{T}, v{T}, v{s0+15}, v{NM}")
    e(f"v_mov_b32 v{T+1}, v{T}"); e("s_nop 1")
    e(f"v_permlane32_swap_b32 v{T}, v{T+1}"); e("s_nop 1")
    e(f"v_max_f32 v{T}, v{T}, v{T+1}")
    e(f"v_sub_f32 v{T+1}, v{NM}, v{T}"); e(f"v_exp_f32 v{T+1}, v{T+1}"); e(f"v_mov_b32 v{NM}, v{T}")
    for r in range(16): e(f"v_mul_f32 v{O+r}, v{O+r}, v{T+1}")
    for r in range(16): e(f"v_sub_f32 v{s0+r}, v{s0+r}, v{T}")
    for r in range(16): e(f"v_exp_f32 v{s0+r}, v{s0+r}")
    e("s_nop 0")
    for p in range(8): e(f"v_cvt_pk_bf16_f32 v{P+p}, v{s0+2*p}, v{s0+2*p+1}")
    e("s_nop 1")
    e(f"v_mfma_f32_32x32x16_bf16 {vr(O,16)}, {vr(VF[0],4)}, {vr(P,4)}, {vr(O,16)}")
    e(f"v_mfma_f32_32x32x16_bf16 {vr(O,16)}, {vr(VF[0]+4,4)}, {vr(P+4,4)}, {vr(O,16)}")
    e("v_add_u32 v3, 0x400, v3"); e("v_add_u32 v5, v5, v1")
    e.nop(16)
    e("s_add_u32 s30, s30, 1"); e("s_cmp_lt_u32 s30, 32"); e("s_cbranch_scc1 K2_SL")
    e(f"v_sub_f32 v{NM}, 0, v{NM}")
    e("s_branch K2_OUT")
    e.lab("K2_END"); e("s_endpgm")
    return e.txt(), descr(name, 128, 64), f"; @launch kernel={name} grid=(256,1,1) block=(1024,1,1) lds=160768"

def k3():
    e = E(); name = "k3_kernel"; header(e, name)
    OB = 65536; AP = 1040
    e("s_cmp_ge_u32 s2, 256"); e("s_cbranch_scc1 K3_END")
    e("s_load_dwordx2 s[4:5], s[0:1], 0"); e("s_load_dwordx2 s[6:7], s[0:1], 16"); e("s_load_dwordx2 s[8:9], s[0:1], 80"); e("s_load_dwordx2 s[10:11], s[0:1], 32")
    e("v_lshrrev_b32 v1, 6, v0"); e("v_and_b32 v2, 63, v0"); e("s_nop 0")
    e("v_readfirstlane_b32 s20, v1")
    e("s_and_b32 s21, s2, 7"); e("s_lshl_b32 s21, s21, 2"); e("s_bfe_u32 s22, s2, 0x20003"); e("s_add_u32 s21, s21, s22"); e("s_lshr_b32 s22, s2, 5")
    e("s_and_b32 s39, s20, 1"); e("s_lshr_b32 s40, s20, 1")
    e("s_waitcnt lgkmcnt(0)")
    srd(e, 12, 4, 5, 2097152); srd(e, 16, 6, 7, 524288); srd(e, 24, 8, 9, 0x1000000); srd(e, 44, 10, 11, 1024); stamp(e, 0); tl_start(e, 3, 24, 90)
    e("v_lshrrev_b32 v4, 3, v2"); e("v_lshlrev_b32 v4, 10, v4")
    e("v_bfe_u32 v5, v2, 2, 1"); e("v_bfe_u32 v6, v2, 4, 1"); e("v_xor_b32 v5, v5, v6")
    e("v_lshl_add_u32 v4, v5, 6, v4"); e("v_and_b32 v5, 3, v2"); e("v_lshl_add_u32 v4, v5, 4, v4")
    e("s_lshl_b32 s31, s22, 7"); e("v_add_u32 v4, s31, v4")
    e("v_lshlrev_b32 v3, 4, v2")
    e("s_lshl_b32 s32, s20, 17")
    e("s_lshl_b32 s33, s20, 14")
    e("s_lshl_b32 s35, s21, 16"); e("s_lshl_b32 s36, s20, 14"); e("s_add_u32 s35, s35, s36"); e(f"s_add_u32 s35, s35, {WS_O:#x}")
    e(f"s_mul_i32 s36, s20, {16*AP}"); e(f"s_add_u32 s36, s36, {OB}")
    for i in range(16):
        e(f"s_add_u32 s34, s35, {i*1024}"); e(f"s_add_u32 m0, s36, {i*AP}"); e("s_nop 0")
        e("buffer_load_dwordx4 v3, s[24:27], s34 offen lds")
        e(f"s_add_u32 s34, s32, {i*8192}"); e(f"s_add_u32 m0, s33, {i*1024}"); e("s_nop 0")
        e("buffer_load_dwordx4 v4, s[16:19], s34 offen lds")
    e("v_and_b32 v19, 31, v2"); e("v_lshrrev_b32 v20, 5, v2")
    e("s_lshl_b32 s31, s21, 6"); e("s_lshl_b32 s35, s39, 5"); e("s_add_u32 s31, s31, s35")
    e("v_add_u32 v21, s31, v19")
    e("v_lshlrev_b32 v22, 10, v21")
    e("s_lshl_b32 s37, s22, 7"); e("s_lshl_b32 s38, s40, 6"); e("s_add_u32 s37, s37, s38")
    e("v_lshlrev_b32 v23, 3, v20"); e("v_add_u32 v23, s37, v23")
    e("v_add_u32 v24, v22, v23")
    for g in range(4):
        e(f"buffer_load_dwordx2 {vr(32+2*g,2)}, v24, s[12:15], 0 offen offset:{16*g}")
    for g in range(4):
        e(f"buffer_load_dwordx2 {vr(40+2*g,2)}, v23, s[44:47], 0 offen offset:{16*g}")
    e("v_add_u32 v26, s35, v19"); e(f"v_mul_u32_u24 v26, {AP}, v26"); e("v_lshl_add_u32 v26, v20, 4, v26"); e(f"v_add_u32 v26, {OB}, v26")
    e("v_bfe_u32 v5, v2, 2, 2"); e("v_and_b32 v6, 3, v2"); e("v_bfe_u32 v7, v2, 4, 1")
    e("v_lshl_add_u32 v25, v20, 3, v5"); e("v_lshlrev_b32 v25, 7, v25")
    e("v_lshl_add_u32 v25, v7, 5, v25"); e("v_lshl_add_u32 v25, v6, 3, v25")
    e("v_lshrrev_b32 v5, 1, v5"); e("v_xor_b32 v5, s40, v5"); e("v_lshl_add_u32 v25, v5, 6, v25")
    for r in range(16): e(f"v_mov_b32 v{48+r}, 0")
    e("s_waitcnt vmcnt(8)"); e("s_barrier"); stamp(e, 1)
    NB = 4
    WF = [64 + 8*i for i in range(NB)]; XF = [68 + 8*i for i in range(NB)]
    def rd(s):
        sel = s % NB
        e(f"ds_read_b128 {vr(XF[sel],4)}, v26 offset:{32*s}")
        for u in range(2):
            e(f"ds_read_b64_tr_b16 {vr(WF[sel]+2*u,2)}, v25 offset:{(16*s+4*u)*128}")
    for s in range(NB-1): rd(s)
    for s in range(32):
        sel = s % NB
        if s + NB - 1 < 32: rd(s + NB - 1)
        rem = min(31 - s, NB - 1)
        e(f"s_waitcnt lgkmcnt({3*rem})")
        e(f"v_mfma_f32_32x32x16_bf16 {vr(48,16)}, {vr(WF[sel],4)}, {vr(XF[sel],4)}, {vr(48,16)}")
    stamp(e, 2)
    e("s_mov_b32 s41, 0x3f803f80"); e("v_mov_b32 v8, s41")
    e("v_mov_b32 v9, 0"); e("v_mov_b32 v10, 0"); e("v_mov_b32 v11, 0")
    e("s_waitcnt vmcnt(0)")
    e.nop(12)
    for p in range(8):
        a = 48 + 2*p; x = 32 + p
        e(f"v_cvt_pk_bf16_f32 v12, v{a}, v{a+1}")
        e("v_lshlrev_b32 v13, 16, v12"); e("v_and_b32 v14, 0xffff0000, v12")
        e(f"v_lshlrev_b32 v15, 16, v{x}"); e(f"v_and_b32 v16, 0xffff0000, v{x}")
        e("v_add_f32 v13, v13, v15"); e("v_add_f32 v14, v14, v16")
        e(f"v_cvt_pk_bf16_f32 v{x}, v13, v14")
        e(f"v_dot2_f32_bf16 v9, v{x}, v8, v9")
        e(f"v_dot2_f32_bf16 v10, v{x}, v{x}, v10")
        e(f"v_dot2_f32_bf16 v11, v{x}, v{40+p}, v11")
    e(f"s_mov_b32 s36, {WS_H:#x}")
    for g in range(4):
        e(f"buffer_store_dwordx2 {vr(32+2*g,2)}, v24, s[24:27], s36 offen offset:{16*g}")
    e("s_nop 2")
    for q in range(3): e(f"v_mov_b32 v{12+q}, v{9+q}")
    e("s_nop 1")
    for q in range(3): e(f"v_permlane32_swap_b32 v{9+q}, v{12+q}")
    e("s_nop 1")
    for q in range(3): e(f"v_add_f32 v{9+q}, v{9+q}, v{12+q}")
    e("v_lshlrev_b32 v15, 4, v21")
    e(f"s_mov_b32 s36, {WS_ST:#x}")
    e("s_mov_b64 exec, 0xffffffff")
    for q in range(3):
        e(f"buffer_atomic_add_f32 v{9+q}, v15, s[24:27], s36 offen offset:{4*q}")
    if DIAG:
        e("s_waitcnt vmcnt(0)"); stamp(e, 3); stamp_out(e, 4, 3, 24)
    e.lab("K3_END"); e("s_endpgm")
    return e.txt(), descr(name, 96, 64), f"; @launch kernel={name} grid=(256,1,1) block=(256,1,1) lds=132096"

def ln2_elem(e, x, mb, rinv, t):
    e(f"v_lshlrev_b32 v{t}, 16, v{x}"); e(f"v_and_b32 v{t+1}, 0xffff0000, v{x}")
    e(f"v_sub_f32 v{t+2}, v{t}, v{mb}"); e(f"v_sub_f32 v{t+3}, v{t+1}, v{mb}")
    e(f"v_cvt_pk_bf16_f32 v{t+2}, v{t+2}, v{t+3}")
    e(f"v_and_b32 v{t+3}, 0xffff0000, v{t+2}"); e(f"v_lshlrev_b32 v{t+2}, 16, v{t+2}")
    e(f"v_mul_f32 v{t+2}, v{t+2}, v{rinv}"); e(f"v_mul_f32 v{t+3}, v{t+3}, v{rinv}")
    e(f"v_cvt_pk_bf16_f32 v{t+2}, v{t+2}, v{t+3}")

WS_Y = 0xA10000
def k4():
    e = E(); name = "k4_kernel"; header(e, name)
    NF = 56; NE = 32
    L_XS = 1024; L_H = 5120; L_G = 8192; L_S2 = 40960; L_ACT = 45056; L_D = 49152; L_FLAG = 8064
    e(f"s_cmp_ge_u32 s2, {NF+NE}"); e("s_cbranch_scc1 K4_END")
    e("s_load_dwordx2 s[4:5], s[0:1], 80"); e("s_load_dwordx4 s[8:11], s[0:1], 64")
    e("s_load_dwordx8 s[44:51], s[0:1], 32")
    e("v_lshrrev_b32 v1, 6, v0"); e("v_and_b32 v2, 63, v0"); e("s_nop 0")
    e("v_readfirstlane_b32 s20, v1")
    e("s_waitcnt lgkmcnt(0)")
    srd(e, 12, 4, 5, 0x1000000); srd(e, 16, 8, 9, 2097152); srd(e, 24, 44, 45, 1024)
    srd(e, 28, 46, 47, 1835008); srd(e, 32, 48, 49, 1835008); srd(e, 36, 50, 51, 1835008); srd(e, 40, 10, 11, 256)
    stamp(e, 0); tl_start(e, 4, 12, 108)
    e("v_lshlrev_b32 v7, 4, v0"); e("v_mov_b32 v3, 0"); e("v_mov_b32 v6, 0"); e("v_mov_b32 v11, 0")
    e(f"s_mov_b32 s52, {WS_ST:#x}"); e(f"s_mov_b32 s53, {WS_ST + 16384:#x}"); e(f"s_mov_b32 s54, {WS_H:#x}")
    e("buffer_load_dwordx4 v[64:67], v7, s[12:15], s52 offen")
    e("buffer_load_dwordx4 v[68:71], v7, s[12:15], s53 offen")
    e(f"s_mov_b32 s55, {WS_ST + 0x8000:#x}")
    e("s_load_dword s66, s[4:5], s55")
    e(f"s_cmp_lt_u32 s2, {NF}"); e("s_cbranch_scc1 K4_LF")
    e(f"s_sub_u32 s21, s2, {NF}"); e("s_lshl_b32 s21, s21, 6"); e("s_lshl_b32 s22, s20, 2"); e("s_add_u32 s21, s21, s22")
    e("v_lshrrev_b32 v4, 4, v2"); e("v_and_b32 v5, 15, v2")
    e("v_add_u32 v6, s21, v4")
    e("v_lshlrev_b32 v3, 10, v6"); e("v_lshl_add_u32 v3, v5, 4, v3")
    e("v_lshlrev_b32 v9, 4, v6")
    e("buffer_load_dwordx4 v[72:75], v9, s[12:15], s52 offen")
    for i in range(4):
        e(f"buffer_load_dwordx4 {vr(80+4*i,4)}, v3, s[12:15], s54 offen offset:{256*i}")
    e("s_waitcnt vmcnt(5) lgkmcnt(0)"); e("s_branch K4_TOP")
    e.lab("K4_LF")
    e("s_waitcnt vmcnt(0) lgkmcnt(0)")
    e.lab("K4_TOP"); stamp(e, 1)
    e("s_mov_b32 s56, 0xfffff800")
    for i in range(2):
        b = 64 + 4*i; t = 18 + 8*i
        e(f"v_mul_f32 v{t}, 0x3b000000, v{b}")
        e(f"v_mul_f32 v{t+1}, 0x3b000000, v{b+1}")
        e(f"v_fma_f32 v{t+1}, -v{t}, v{t}, v{t+1}")
        e(f"v_max_f32 v{t+1}, 0, v{t+1}")
        e(f"v_add_f32 v{t+1}, 0x3727c5ac, v{t+1}")
        e(f"v_rsq_f32 v{t+1}, v{t+1}")
        e(f"v_fma_f32 v{t+4}, -v{t}, s66, v{b+2}")
        e(f"v_sub_u32 v{t+5}, {2047 - 1024*i}, v0")
        e(f"v_mul_f32 v{t+4}, v{t+4}, v{t+1}")
        e(f"v_ashrrev_i32 v{t+2}, 31, v{t+4}")
        e(f"v_or_b32 v{t+2}, 0x80000000, v{t+2}")
        e(f"v_xor_b32 v{t+4}, v{t+4}, v{t+2}")
        e(f"v_and_or_b32 v{t+4}, v{t+4}, s56, v{t+5}")
    e("v_max_u32 v16, v22, v30"); e("v_min_u32 v17, v22, v30")
    def red16():
        for ror in (8, 4, 2, 1):
            e("s_nop 1")
            e(f"v_mov_b32_dpp v18, v16 row_ror:{ror} row_mask:0xf bank_mask:0xf")
            e(f"v_mov_b32_dpp v19, v17 row_ror:{ror} row_mask:0xf bank_mask:0xf")
            e("v_min_u32 v20, v16, v18"); e("v_max_u32 v16, v16, v18"); e("v_max3_u32 v17, v17, v19, v20")
    red16()
    e("v_lshrrev_b32 v18, 4, v0"); e("v_lshlrev_b32 v18, 3, v18")
    e("ds_write_b64 v18, v[16:17]")
    e("s_waitcnt lgkmcnt(0)"); e("s_barrier")
    e("v_lshlrev_b32 v18, 3, v2")
    e("ds_read_b64 v[16:17], v18")
    e("s_waitcnt lgkmcnt(0)")
    red16()
    e("s_nop 0")
    for q in range(4):
        e(f"v_readlane_b32 s{56+2*q}, v16, {16*q}"); e(f"v_readlane_b32 s{57+2*q}, v17, {16*q}")
    def smerge(d, a, b):
        e(f"s_min_u32 s64, s{a}, s{b}"); e(f"s_max_u32 s65, s{a+1}, s{b+1}"); e(f"s_max_u32 s{d}, s{a}, s{b}"); e(f"s_max_u32 s{d+1}, s64, s65")
    smerge(56, 56, 58); smerge(60, 60, 62); smerge(56, 56, 60)
    e("s_and_b32 s56, s56, 0x7ff"); e("s_and_b32 s57, s57, 0x7ff")
    e("s_sub_u32 s56, 2047, s56"); e("s_sub_u32 s57, 2047, s57")
    stamp(e, 2)
    e(f"s_cmp_lt_u32 s2, {NF}"); e("s_cbranch_scc1 K4_FFN")
    e("s_waitcnt vmcnt(0)")
    ln_scalars(e, 72, 73, 12, (14, 15), "0x3b000000")
    e("v_rcp_f32 v15, v15"); e("s_nop 0")
    for j in range(16):
        x = 80 + j
        ln2_elem(e, x, 14, 15, 32)
        e("v_and_b32 v35, 0xffff0000, v34"); e("v_lshlrev_b32 v34, 16, v34")
        e("v_add_f32 v34, v32, v34"); e("v_add_f32 v35, v33, v35")
        e(f"v_cvt_pk_bf16_f32 v{x}, v34, v35")
    e("v_cmp_ne_u32 vcc, s56, v6"); e("v_cmp_ne_u32 s[60:61], s57, v6"); e("s_nop 1")
    e("s_and_b64 s[60:61], s[60:61], vcc"); e("s_and_b64 exec, exec, s[60:61]")
    e("s_cbranch_execz K4_END")
    for i in range(4):
        e(f"buffer_store_dwordx4 {vr(80+4*i,4)}, v3, s[16:19], 0 offen offset:{256*i}")
    e("s_endpgm")
    e.lab("K4_FFN")
    e("s_cmp_ge_u32 s20, 8"); e("s_cbranch_scc1 K4_NOXL")
    e("s_cmp_lt_u32 s20, 4"); e("s_cselect_b32 s58, s56, s57")
    e("s_lshl_b32 s59, s58, 4"); e("s_add_u32 s59, s59, s52")
    e("s_lshl_b32 s60, s58, 10"); e("s_add_u32 s60, s60, s54")
    e("v_and_b32 v19, 255, v0"); e("v_lshlrev_b32 v20, 2, v19"); e("v_mov_b32 v21, 0")
    e("buffer_load_dwordx4 v[24:27], v21, s[12:15], s59 offen")
    e("buffer_load_dword v28, v20, s[12:15], s60 offen")
    e("buffer_load_dword v30, v20, s[24:27], 0 offen")
    e("v_lshrrev_b32 v41, 8, v0")
    e.lab("K4_NOXL")
    e("s_barrier")
    e("v_lshrrev_b32 v4, 4, v0"); e("v_and_b32 v5, 15, v0")
    e("v_mul_u32_u24 v3, 3584, v4"); e("v_lshl_add_u32 v3, v5, 2, v3")
    e("s_lshl_b32 s21, s2, 6"); e("v_add_u32 v3, s21, v3")
    for i in range(8):
        e(f"s_mov_b32 s55, {i*64*3584}")
        e(f"buffer_load_dword v{80+i}, v3, s[28:31], s55 offen")
        e(f"buffer_load_dword v{88+i}, v3, s[32:35], s55 offen")
    e("v_lshrrev_b32 v6, 8, v0"); e("v_and_b32 v9, 255, v0")
    e("v_lshlrev_b32 v11, 13, v6"); e("v_lshl_add_u32 v11, v9, 2, v11")
    e("s_lshl_b32 s21, s2, 15"); e("s_add_u32 s22, s21, 4096")
    for i in range(8):
        e(f"buffer_load_dword v{96+i}, v11, s[36:39], {'s21' if i < 4 else 's22'} offen offset:{(i&3)*1024}")
    e("s_cmp_ge_u32 s20, 8"); e("s_cbranch_scc1 K4_NOXS")
    e("s_waitcnt vmcnt(24)")
    ln_scalars(e, 24, 25, 32, (34, 35), "0x3b000000")
    e("v_rcp_f32 v35, v35"); e("s_nop 0")
    ln2_elem(e, 28, 34, 35, 36)
    e("v_mov_b32 v40, 0"); e("v_dot2_f32_bf16 v40, v38, v30, v40")
    e("v_lshlrev_b32 v42, 2, v41"); e("v_lshl_add_u32 v42, v19, 4, v42")
    e("v_lshlrev_b32 v43, 16, v38"); e("v_and_b32 v44, 0xffff0000, v38")
    e(f"ds_write_b32 v42, v43 offset:{L_XS}"); e(f"ds_write_b32 v42, v44 offset:{L_XS+8}")
    e("v_lshlrev_b32 v45, 2, v0")
    e(f"ds_write_b32 v45, v28 offset:{L_H}")
    for ror in (8, 4, 2, 1):
        e("s_nop 1"); e(f"v_add_f32_dpp v40, v40, v40 row_ror:{ror} row_mask:0xf bank_mask:0xf")
    e("v_lshrrev_b32 v45, 4, v0"); e("v_lshlrev_b32 v45, 2, v45")
    e("ds_write_b32 v45, v40 offset:512")
    e.lab("K4_NOXS")
    e("s_waitcnt lgkmcnt(0)"); e("s_barrier"); stamp(e, 3)
    for r in range(104, 112): e(f"v_mov_b32 v{r}, 0")
    e("v_lshlrev_b32 v41, 3, v4")
    for i in range(8):
        e(f"ds_read_b64 {vr(48+2*i,2)}, v41 offset:{L_XS + i*512}")
    for i in range(8):
        e(f"s_waitcnt vmcnt({22-2*i}) lgkmcnt({7-i})")
        for m in range(2):
            w = 80 + 8*m + i; t = 44 + 2*m
            e(f"v_lshlrev_b32 v{t}, 16, v{w}"); e(f"v_and_b32 v{t+1}, 0xffff0000, v{w}")
            for tk in range(2):
                a = 104 + m*4 + tk*2
                e(f"v_fmac_f32 v{a}, v{t}, v{48+2*i+tk}"); e(f"v_fmac_f32 v{a+1}, v{t+1}, v{48+2*i+tk}")
    e("v_lshlrev_b32 v41, 5, v0")
    e(f"ds_write_b128 v41, v[104:107] offset:{L_G}"); e(f"ds_write_b128 v41, v[108:111] offset:{L_G+16}")
    e("s_waitcnt lgkmcnt(0)"); e("s_barrier")
    e("v_and_b32 v41, 127, v0"); e("v_lshrrev_b32 v42, 7, v0")
    e("v_lshlrev_b32 v43, 12, v42"); e("v_lshl_add_u32 v43, v41, 2, v43")
    for g in range(8): e(f"ds_read_b32 v{48+g}, v43 offset:{L_G + 512*g}")
    e("s_waitcnt lgkmcnt(0)")
    for g in range(1, 8): e(f"v_add_f32 v48, v48, v{48+g}")
    e("v_lshlrev_b32 v43, 2, v0")
    e(f"ds_write_b32 v43, v48 offset:{L_S2}")
    e("s_waitcnt lgkmcnt(0)"); e("s_barrier")
    e("s_cmp_lg_u32 s20, 0"); e("s_cbranch_scc1 K4_NS3")
    e("v_lshrrev_b32 v41, 5, v2"); e("v_and_b32 v42, 31, v2"); e("v_lshrrev_b32 v43, 1, v42"); e("v_and_b32 v44, 1, v42")
    e("v_lshlrev_b32 v45, 5, v43"); e("v_lshl_add_u32 v45, v41, 3, v45"); e("v_lshl_add_u32 v45, v44, 2, v45")
    for g in range(8):
        e(f"ds_read_b32 v{48+g}, v45 offset:{L_S2 + 512*g}")
        e(f"ds_read_b32 v{56+g}, v45 offset:{L_S2 + 512*g + 16}")
    e("s_waitcnt lgkmcnt(0)")
    for g in range(1, 8):
        e(f"v_add_f32 v48, v48, v{48+g}"); e(f"v_add_f32 v56, v56, v{56+g}")
    rnd_bf16(e, 48, 48); rnd_bf16(e, 56, 56)
    e("v_mul_f32 v49, 0xbfb8aa3b, v48"); e("v_exp_f32 v49, v49"); e("s_nop 0")
    e("v_add_f32 v49, 1.0, v49"); e("v_rcp_f32 v49, v49"); e("s_nop 0")
    e("v_mul_f32 v49, v48, v49"); rnd_bf16(e, 49, 49)
    e("v_mul_f32 v49, v49, v56"); rnd_bf16(e, 49, 49)
    e("v_lshlrev_b32 v50, 3, v42"); e("v_lshl_add_u32 v50, v41, 2, v50")
    e(f"ds_write_b32 v50, v49 offset:{L_ACT}")
    e("s_waitcnt lgkmcnt(0)")
    e.lab("K4_NS3")
    e("s_barrier"); stamp(e, 4)
    e("v_lshlrev_b32 v41, 6, v6")
    for i in range(8): e(f"ds_read_b64 {vr(48+2*i,2)}, v41 offset:{L_ACT + 8*i}")
    for r in range(104, 108): e(f"v_mov_b32 v{r}, 0")
    for i in range(8):
        e(f"s_waitcnt vmcnt({7-i}) lgkmcnt({7-i})")
        w = 96 + i; t = 44 + 2*(i & 1)
        e(f"v_lshlrev_b32 v{t}, 16, v{w}"); e(f"v_and_b32 v{t+1}, 0xffff0000, v{w}")
        for tk in range(2):
            a = 104 + tk*2
            e(f"v_fmac_f32 v{a}, v{t}, v{48+2*i+tk}"); e(f"v_fmac_f32 v{a+1}, v{t+1}, v{48+2*i+tk}")
    e("v_lshlrev_b32 v41, 4, v0")
    e(f"ds_write_b128 v41, v[104:107] offset:{L_D}")
    e("s_waitcnt lgkmcnt(0)"); e("s_barrier")
    e("v_lshrrev_b32 v41, 9, v0"); e("v_and_b32 v42, 511, v0"); e("v_lshrrev_b32 v43, 1, v42"); e("v_and_b32 v44, 1, v42")
    e("v_lshlrev_b32 v45, 4, v43"); e("v_lshl_add_u32 v45, v41, 3, v45"); e("v_lshl_add_u32 v45, v44, 2, v45")
    for g in range(4): e(f"ds_read_b32 v{48+g}, v45 offset:{L_D + 4096*g}")
    e("s_waitcnt lgkmcnt(0)")
    e("v_add_f32 v48, v48, v49"); e("v_add_f32 v50, v50, v51"); e("v_add_f32 v48, v48, v50")
    e("v_lshlrev_b32 v46, 2, v0"); e(f"s_mov_b32 s58, {WS_Y:#x}")
    e("buffer_atomic_add_f32 v48, v46, s[12:15], s58 offen")
    e("s_waitcnt vmcnt(0)"); e("s_barrier"); stamp(e, 5)
    e("s_cmp_lg_u32 s20, 0"); e("s_cbranch_scc1 K4_NCNT")
    e("v_mov_b32 v48, 1"); e("v_mov_b32 v49, 0"); e(f"v_mov_b32 v50, {L_FLAG}")
    e("s_mov_b64 exec, 1")
    e("buffer_atomic_add v48, v49, s[40:43], 0 offen sc0")
    e("s_waitcnt vmcnt(0)")
    e("ds_write_b32 v50, v48")
    e("s_mov_b64 exec, -1")
    e("s_waitcnt lgkmcnt(0)")
    e.lab("K4_NCNT")
    e("s_barrier")
    e(f"v_mov_b32 v50, {L_FLAG}"); e("ds_read_b32 v48, v50"); e("s_waitcnt lgkmcnt(0)")
    e("v_readfirstlane_b32 s59, v48")
    if DIAG:
        stamp(e, 6); stamp_out(e, 7, 4, 12)
    e(f"s_cmp_lg_u32 s59, {NF-1}"); e("s_cbranch_scc1 K4_END")
    e("v_mov_b32 v48, 0")
    e("buffer_atomic_add_f32 v48, v46, s[12:15], s58 offen sc0")
    e("v_lshlrev_b32 v47, 6, v41")
    for q in range(4): e(f"ds_read_b128 {vr(52+4*q,4)}, v47 offset:{512 + 16*q}")
    e("v_lshlrev_b32 v47, 3, v42"); e("v_lshl_add_u32 v47, v41, 2, v47")
    e(f"ds_read_b32 v49, v47 offset:{L_XS}")
    e("v_lshlrev_b32 v47, 1, v0")
    e(f"ds_read_u16 v50, v47 offset:{L_H}")
    e("s_waitcnt lgkmcnt(0)")
    for q in range(1, 16): e(f"v_add_f32 v52, v52, v{52+q}")
    rnd_bf16(e, 52, 52)
    e("v_mul_f32 v52, 0xbfb8aa3b, v52"); e("v_exp_f32 v52, v52"); e("s_nop 0")
    e("v_add_f32 v52, 1.0, v52"); e("v_rcp_f32 v52, v52"); e("s_nop 0")
    rnd_bf16(e, 52, 52)
    e("v_lshlrev_b32 v50, 16, v50")
    e("s_cmp_lt_u32 s20, 8"); e("s_cselect_b32 s60, s56, s57"); e("s_lshl_b32 s60, s60, 10")
    e("v_lshlrev_b32 v51, 1, v42")
    e("s_waitcnt vmcnt(0)")
    rnd_bf16(e, 48, 48)
    e("v_mul_f32 v48, v48, v52"); rnd_bf16(e, 48, 48)
    e("v_add_f32 v48, v49, v48"); rnd_bf16(e, 48, 48)
    e("v_add_f32 v48, v50, v48"); e("v_cvt_pk_bf16_f32 v48, v48, v48")
    e("buffer_store_short v48, v51, s[16:19], s60 offen")
    if TL:
        e("s_cmp_lg_u32 s20, 0"); e("s_cbranch_scc1 K4_END")
        e("s_waitcnt vmcnt(0)")
        e("s_memrealtime s[60:61]"); e("s_waitcnt lgkmcnt(0)")
        e("v_lshlrev_b32 v50, 2, v2"); e(f"s_mov_b32 s62, {0xB00000:#x}")
        e("buffer_load_dword v51, v50, s[12:15], s62 offen sc1")
        e("s_waitcnt vmcnt(0)")
        e("v_mov_b32 v52, s60"); e("v_cmp_eq_u32 vcc, 5, v2"); e("s_nop 1"); e("v_cndmask_b32 v51, v51, v52, vcc")
        e("v_cmp_gt_u32 vcc, 6, v2"); e("v_cmp_lt_u32 s[60:61], 0, v2"); e("s_nop 1"); e("s_and_b64 exec, vcc, s[60:61]")
        e("buffer_store_dword v51, v50, s[40:43], 0 offen")
    e.lab("K4_END"); e("s_endpgm")
    return e.txt(), descr(name, 112, 96), f"; @launch kernel={name} grid=({NF+NE},1,1) block=(1024,1,1) lds=65536"

def main(out):
    ks = [k1(), k2(), k3(), k4()]
    s = "; generated 5-kernel pipeline: LN1+QKV | attention | out-proj+stats | LN2 out + top2 + gate/up | down + final rows\n"
    for k in ks: s += k[2] + "\n"
    s += '.amdgcn_target "amdgcn-amd-amdhsa--gfx950"\n.text\n'
    for k in ks: s += k[0]
    s += '.section .rodata,"a"\n'
    for k in ks: s += k[1]
    open(out, "w").write(s)

if __name__ == "__main__":
    if len(sys.argv) > 2 and sys.argv[2] == "diag": DIAG = True
    if len(sys.argv) > 2 and sys.argv[2] == "codepf": CODEPF = True
    if len(sys.argv) > 2 and "tl" in sys.argv[2:]: TL = True
    if len(sys.argv) > 2 and "wpf" in sys.argv[2:]: WPF = True
    for q in range(1536): assert (q * 2731) >> 16 == q // 24
    main(sys.argv[1] if len(sys.argv) > 1 else "sequential_preLN__softmax_full_mha__moe_arch_mod__prompt.s")
```

```python
import sys, math

WS_Q = 0x000000; WS_K = 0x200000; WS_V = 0x400000; WS_O = 0x600000; WS_H = 0x800000
WS_ST = 0xA00000; WS_ACT = 0xA10000; WS_SEL = 0xA20000
C_SCALE = 0.25 * math.log2(math.e)
import struct
def f32bits(x): return struct.unpack("<I", struct.pack("<f", x))[0]

class E:
    def __init__(self): self.l = []
    def __call__(self, s): self.l.append("    " + s)
    def lab(self, s): self.l.append(s + ":")
    def c(self, s): self.l.append("    ; " + s)
    def nop(self, n):
        while n > 0:
            k = min(n, 16); self(f"s_nop {k-1}"); n -= k
    def txt(self): return "\n".join(self.l) + "\n"

def vr(a, n): return f"v[{a}:{a+n-1}]"
def sr(a, n): return f"s[{a}:{a+n-1}]"

def srd(e, d, lo, hi, size):
    e(f"s_mov_b32 s{d}, s{lo}"); e(f"s_mov_b32 s{d+1}, s{hi}"); e(f"s_mov_b32 s{d+2}, {size:#x}"); e(f"s_mov_b32 s{d+3}, 0x00020000")

def header(e, name):
    e.l.append(f".globl {name}"); e.l.append(".p2align 8"); e.l.append(f".type {name},@function"); e.lab(name)

def descr(name, vg, sg=64):
    if DIAG: vg = max(vg, 128); sg = 102
    vg4 = (vg + 3) // 4 * 4
    return f""".p2align 6
.amdhsa_kernel {name}
  .amdhsa_next_free_vgpr {vg}
  .amdhsa_next_free_sgpr {sg}
  .amdhsa_accum_offset {vg4}
  .amdhsa_group_segment_fixed_size 0
  .amdhsa_kernarg_size 88
  .amdhsa_user_sgpr_count 2
  .amdhsa_user_sgpr_kernarg_segment_ptr 1
  .amdhsa_system_sgpr_workgroup_id_x 1
.end_amdhsa_kernel
"""

DIAG = False
CODEPF = False
TL = False
WPF = False
def tl_start(e, k, srdb, vt):
    if not TL: return
    e("s_cmp_lg_u32 s2, 0"); e(f"s_cbranch_scc1 TL{k}"); e("s_cmp_lg_u32 s20, 0"); e(f"s_cbranch_scc1 TL{k}")
    e("s_memrealtime s[60:61]"); e("s_waitcnt lgkmcnt(0)")
    e(f"v_mov_b32 v{vt}, s60"); e(f"v_mov_b32 v{vt+1}, 0"); e(f"s_mov_b32 s62, {0xB00000 + 4*k:#x}")
    e(f"buffer_store_dword v{vt}, v{vt+1}, s[{srdb}:{srdb+3}], s62 offen")
    e("s_waitcnt vmcnt(0)")
    e.lab(f"TL{k}")
WS_DIAG = 0xB00000
def stamp(e, idx):
    if not DIAG: return
    b = 70 + 4*idx
    e(f"s_memtime s[{b}:{b+1}]"); e(f"s_memrealtime s[{b+2}:{b+3}]"); e("s_waitcnt lgkmcnt(0)")
def stamp_out(e, n, kid, srdbase, wavesreg="s20"):
    if not DIAG: return
    e("s_mov_b64 exec, 1")
    e(f"s_lshl_b32 s68, s2, 4"); e(f"s_add_u32 s68, s68, {wavesreg}"); e("s_lshl_b32 s68, s68, 7"); e(f"s_add_u32 s68, s68, {WS_DIAG + kid*0x80000:#x}")
    e("v_mov_b32 v122, 0")
    for i in range(n):
        b = 70 + 4*i
        e(f"v_mov_b32 v124, s{b}"); e(f"v_mov_b32 v125, s{b+1}"); e(f"v_mov_b32 v126, s{b+2}"); e(f"v_mov_b32 v127, s{b+3}")
        e(f"buffer_store_dwordx4 v[124:127], v122, s[{srdbase}:{srdbase+3}], s68 offen offset:{16*i}")
        e("s_nop 1")
    e("s_mov_b64 exec, -1")

def rnd_bf16(e, d, s):
    e(f"v_cvt_pk_bf16_f32 v{d}, v{s}, v{s}")
    e(f"v_lshlrev_b32 v{d}, 16, v{d}")

def ln_scalars(e, sm, sq, t, outs, inv_n):
    mb, sb = outs
    e(f"v_mul_f32 v{t}, {inv_n}, v{sm}")
    e(f"v_mul_f32 v{t+1}, {inv_n}, v{sq}")
    e(f"v_fma_f32 v{t+1}, -v{t}, v{t}, v{t+1}")
    e(f"v_max_f32 v{t+1}, 0, v{t+1}")
    rnd_bf16(e, mb, t)
    rnd_bf16(e, t+1, t+1)
    e(f"v_add_f32 v{t+1}, 0x3727c5ac, v{t+1}")
    rnd_bf16(e, t+1, t+1)
    e(f"v_sqrt_f32 v{t+1}, v{t+1}")
    e("s_nop 0")
    rnd_bf16(e, sb, t+1)

def k1():
    e = E(); name = "k1_kernel"; header(e, name)
    A_BASE = 73728; AP = 1040
    e("s_cmp_ge_u32 s2, 256"); e("s_cbranch_scc1 K1_END")
    e("s_load_dwordx4 s[4:7], s[0:1], 0"); e("s_load_dwordx2 s[8:9], s[0:1], 80")
    e("v_lshrrev_b32 v1, 6, v0"); e("v_and_b32 v2, 63, v0"); e("s_nop 0")
    e("v_readfirstlane_b32 s20, v1")
    e("s_bfe_u32 s21, s2, 0x20001"); e("s_lshl_b32 s21, s21, 3"); e("s_bfe_u32 s22, s2, 0x30003"); e("s_add_u32 s21, s21, s22")
    e("s_and_b32 s22, s2, 1"); e("s_lshl_b32 s22, s22, 2"); e("s_lshr_b32 s23, s2, 6"); e("s_add_u32 s22, s22, s23")
    e("s_waitcnt lgkmcnt(0)")
    srd(e, 12, 4, 5, 2097152); srd(e, 16, 6, 7, 1572864); srd(e, 24, 8, 9, 0x1000000); stamp(e, 0); tl_start(e, 1, 24, 120)
    e("v_lshrrev_b32 v4, 3, v2"); e("v_and_b32 v5, 7, v2")
    e("s_cmp_ge_u32 s20, 8"); e("s_cbranch_scc1 K1_NOX")
    e("s_lshl_b32 s23, s21, 6"); e("s_lshl_b32 s31, s20, 3"); e("s_add_u32 s23, s23, s31")
    e("v_add_u32 v3, s23, v4"); e("v_lshlrev_b32 v3, 10, v3"); e("v_lshl_add_u32 v3, v5, 4, v3")
    for i in range(8):
        e(f"buffer_load_dwordx4 {vr(64+4*i,4)}, v3, s[12:15], 0 offen offset:{i*128}")
    e.lab("K1_NOX")
    e("s_lshl_b32 s31, s20, 7")
    e("s_movk_i32 s33, 2731")
    e("s_mul_i32 s34, s22, 384")
    for i in range(2):
        e(f"v_add_u32 v6, s31, v2")
        if i: e(f"v_add_u32 v6, {i*64}, v6")
        e("v_mul_lo_u32 v7, v6, s33"); e("v_lshrrev_b32 v7, 16, v7")
        e("v_mul_u32_u24 v8, 24, v7"); e("v_sub_u32 v8, v6, v8")
        e("v_lshrrev_b32 v9, 2, v8")
        e("v_bfe_u32 v16, v7, 1, 1"); e("v_xor_b32 v9, v9, v16")
        e("v_and_b32 v8, 3, v8")
        e("v_mul_u32_u24 v7, 3072, v7")
        e("v_lshl_add_u32 v7, v9, 6, v7"); e("v_lshl_add_u32 v7, v8, 4, v7")
        e(f"v_add_u32 v{10+i}, s34, v7")
    e("s_lshl_b32 s35, s20, 11")
    def dma_chunk(c):
        buf = c % 3
        e(f"s_mov_b32 s36, {c*196608}")
        for i in range(2):
            e(f"s_add_u32 m0, s35, {buf*24576 + i*1024}")
            e("s_nop 0")
            e(f"buffer_load_dwordx4 v{10+i}, s[16:19], s36 offen lds")
    for c in range(3): dma_chunk(c)
    e("s_cmp_ge_u32 s20, 8"); e("s_cbranch_scc1 K1_IDLE")
    e("s_mov_b32 s38, 0x3f803f80")
    e("v_mov_b32 v17, s38")
    for p in range(4): e(f"v_mov_b32 v{32+p}, 0")
    e("s_lshl_b32 s31, s20, 3")
    e("v_add_u32 v18, s31, v4"); e(f"v_mul_u32_u24 v18, {AP}, v18"); e("v_lshl_add_u32 v18, v5, 4, v18")
    e(f"v_add_u32 v18, {A_BASE}, v18")
    e("s_waitcnt vmcnt(6)"); stamp(e, 1)
    for j in range(32):
        r = 64 + j
        e(f"v_dot2_f32_bf16 v{32+(j&1)}, v{r}, v17, v{32+(j&1)}")
        e(f"v_dot2_f32_bf16 v{34+(j&1)}, v{r}, v{r}, v{34+(j&1)}")
    e("s_nop 2")
    e("v_add_f32 v32, v32, v33"); e("v_add_f32 v34, v34, v35"); e("s_nop 1")
    for m in ("quad_perm:[1,0,3,2]", "quad_perm:[2,3,0,1]", "row_half_mirror"):
        e(f"v_add_f32_dpp v32, v32, v32 {m} row_mask:0xf bank_mask:0xf")
        e(f"v_add_f32_dpp v34, v34, v34 {m} row_mask:0xf bank_mask:0xf")
        e("s_nop 0")
    ln_scalars(e, 32, 34, 48, (50, 51), "0x3b000000")
    e(f"v_rcp_f32 v40, v51"); e("s_nop 0")
    e(f"v_mul_f32 v44, v50, v40"); e(f"v_sub_f32 v44, 0, v44")
    for j in range(32):
        r = 64 + j; t = 52 + 2*(j & 1)
        e(f"v_lshlrev_b32 v{t}, 16, v{r}"); e(f"v_and_b32 v{t+1}, 0xffff0000, v{r}")
        e(f"v_fma_f32 v{t}, v{t}, v40, v44"); e(f"v_fma_f32 v{t+1}, v{t+1}, v40, v44")
        e(f"v_cvt_pk_bf16_f32 v{r}, v{t}, v{t+1}")
        if j % 4 == 3:
            e(f"ds_write_b128 v18, {vr(r-3,4)} offset:{(j//4)*128}")
    e("s_branch K1_NOLN")
    e.lab("K1_IDLE")
    e("s_cmp_lg_u32 s2, 9"); e("s_cbranch_scc1 K1_NOLN"); e("s_cmp_lg_u32 s20, 11"); e("s_cbranch_scc1 K1_NOLN")
    e("s_load_dwordx2 s[4:5], s[0:1], 32"); e("s_waitcnt lgkmcnt(0)")
    srd(e, 52, 4, 5, 1024)
    e("v_lshlrev_b32 v8, 4, v2")
    e("buffer_load_dwordx4 v[12:15], v8, s[52:55], 0 offen")
    e("s_mov_b32 s56, 0x3f803f80"); e("v_mov_b32 v18, s56"); e("v_mov_b32 v28, 0")
    e("s_waitcnt vmcnt(0)")
    for q in range(4): e(f"v_dot2_f32_bf16 v28, v{12+q}, v18, v28")
    e("s_nop 2")
    for ror in (8, 4, 2, 1):
        e(f"v_add_f32_dpp v28, v28, v28 row_ror:{ror} row_mask:0xf bank_mask:0xf"); e("s_nop 1")
    for q in range(4): e(f"v_readlane_b32 s{56+q}, v28, {16*q}")
    e("s_nop 1")
    e("v_mov_b32 v28, s56"); e("v_add_f32 v28, s57, v28"); e("v_add_f32 v28, s58, v28"); e("v_add_f32 v28, s59, v28")
    e("v_mov_b32 v8, 0"); e(f"s_mov_b32 s37, {WS_ST + 0x8000:#x}")
    e("buffer_store_dword v28, v8, s[24:27], s37 offen")
    e.lab("K1_NOLN")
    e("s_and_b32 s39, s20, 1"); e("s_lshr_b32 s40, s20, 1")
    e("v_and_b32 v19, 31, v2"); e("v_lshrrev_b32 v20, 5, v2")
    e("s_lshl_b32 s31, s39, 5")
    e("v_add_u32 v21, s31, v19"); e(f"v_mul_u32_u24 v21, {AP}, v21"); e("v_lshl_add_u32 v21, v20, 4, v21")
    e(f"v_add_u32 v21, {A_BASE}, v21")
    e("v_bfe_u32 v22, v2, 2, 2")
    e("v_and_b32 v23, 3, v2")
    e("v_bfe_u32 v24, v2, 4, 1")
    e("v_lshl_add_u32 v25, v20, 3, v22")
    e("v_mul_u32_u24 v25, 384, v25")
    e("v_lshl_add_u32 v25, v24, 5, v25"); e("v_lshl_add_u32 v25, v23, 3, v25")
    e("v_lshrrev_b32 v26, 1, v22")
    e("v_xor_b32 v27, s40, v26")
    e("v_lshl_add_u32 v54, v27, 6, v25")
    e("v_add_u32 v55, 49152, v54")
    for r in range(96, 112): e(f"v_mov_b32 v{r}, 0")
    e("s_waitcnt lgkmcnt(0)")
    stamp(e, 2)
    XF = [112, 116]; WF = [120, 124]
    def reads(c, ks, sel):
        buf = c % 3; s = c*4 + ks
        e(f"ds_read_b128 {vr(XF[sel],4)}, v21 offset:{32*s}")
        base = 55 if buf == 2 else 54
        bo = 0 if buf == 2 else buf*24576
        for u in range(2):
            e(f"ds_read_b64_tr_b16 {vr(WF[sel]+2*u,2)}, v{base} offset:{bo + (16*ks+4*u)*384}")
    for c in range(8):
        n = 4 if c == 0 else (0 if c == 7 else 2)
        e(f"s_waitcnt vmcnt({n})"); e("s_barrier")
        reads(c, 0, 0)
        if 1 <= c <= 5: dma_chunk(c+2)
        for ks in range(4):
            sel = ks & 1
            if ks < 3:
                reads(c, ks+1, sel ^ 1); e("s_waitcnt lgkmcnt(3)")
            else:
                e("s_waitcnt lgkmcnt(0)")
            e(f"v_mfma_f32_32x32x16_bf16 {vr(96,16)}, {vr(WF[sel],4)}, {vr(XF[sel],4)}, {vr(96,16)}")
    stamp(e, 3)
    e("s_lshl_b32 s31, s21, 6"); e("s_lshl_b32 s42, s39, 5"); e("s_add_u32 s31, s31, s42")
    e("v_add_u32 v22, s31, v19"); e("v_lshlrev_b32 v22, 5, v22"); e("v_lshl_add_u32 v22, v20, 4, v22")
    e("s_mul_i32 s44, s22, 6"); e("s_add_u32 s44, s44, s40")
    e("s_lshr_b32 s45, s44, 4")
    e("s_and_b32 s46, s44, 15")
    e("s_lshl_b32 s47, s45, 21"); e("s_lshl_b32 s46, s46, 17"); e("s_add_u32 s47, s47, s46")
    e("s_add_u32 s48, s47, 0x10000")
    e("s_cmp_eq_u32 s45, 0"); e(f"s_cselect_b32 s49, {f32bits(C_SCALE):#x}, 1.0")
    e.nop(8)
    a = 96
    for r in range(16): e(f"v_mul_f32 v{a+r}, s49, v{a+r}")
    for r in range(8): e(f"v_cvt_pk_bf16_f32 v{a+r}, v{a+2*r}, v{a+2*r+1}")
    e(f"buffer_store_dwordx4 {vr(a,4)}, v22, s[24:27], s47 offen")
    e(f"buffer_store_dwordx4 {vr(a+4,4)}, v22, s[24:27], s48 offen")
    e("s_cmp_ge_u32 s2, 9"); e("s_cbranch_scc1 K1_NOZ"); e("s_cmp_ge_u32 s20, 4"); e("s_cbranch_scc1 K1_NOZ")
    e("v_mov_b32 v20, 0"); e("v_mov_b32 v21, 0"); e("v_mov_b32 v22, 0"); e("v_mov_b32 v23, 0")
    e("s_lshl_b32 s37, s2, 12"); e("s_cmp_eq_u32 s2, 8"); e("s_cselect_b32 s37, 0x10000, s37"); e(f"s_add_u32 s37, s37, {WS_ST:#x}")
    e("v_lshlrev_b32 v24, 4, v0")
    e("buffer_store_dwordx4 v[20:23], v24, s[24:27], s37 offen")
    e.lab("K1_NOZ")
    if CODEPF:
        e("s_cmp_lt_u32 s2, 16"); e("s_cbranch_scc1 K1_NOPF"); e("s_cmp_ge_u32 s2, 29"); e("s_cbranch_scc1 K1_NOPF"); e("s_cmp_lg_u32 s20, 11"); e("s_cbranch_scc1 K1_NOPF")
        e("s_getpc_b64 s[56:57]")
        e("s_sub_u32 s58, s2, 16"); e("s_lshl_b32 s58, s58, 10")
        e("v_lshlrev_b32 v8, 4, v2"); e("v_add_u32 v8, s58, v8")
        e("global_load_dwordx4 v[12:15], v8, s[56:57]")
        e.lab("K1_NOPF")
    if DIAG:
        e("s_waitcnt vmcnt(0)"); stamp(e, 4)
        e("s_cmp_ge_u32 s20, 8"); e("s_cbranch_scc1 K1_END")
        stamp_out(e, 5, 1, 24)
    e.lab("K1_END"); e("s_endpgm")
    return e.txt(), descr(name, 128, 64), f"; @launch kernel={name} grid=(256,1,1) block=(768,1,1) lds=140288"

def k2():
    e = E(); name = "k2_kernel"; header(e, name)
    VB = 65536; CB = 131072; XB = 140288
    Q = 8; NM = 16; S = [32, 48]; O = 64; P2 = [80, 112]; KB = [88, 92]; VF = [96, 104]; T = 120
    e("s_cmp_ge_u32 s2, 256"); e("s_cbranch_scc1 K2_END")
    e("s_load_dwordx2 s[4:5], s[0:1], 80")
    e("v_lshrrev_b32 v1, 6, v0"); e("v_and_b32 v2, 63, v0"); e("s_nop 0")
    e("v_readfirstlane_b32 s20, v1")
    e("s_and_b32 s21, s2, 7"); e("s_lshl_b32 s21, s21, 2"); e("s_bfe_u32 s22, s2, 0x20003"); e("s_add_u32 s21, s21, s22")
    e("s_lshr_b32 s22, s2, 5")
    e("s_and_b32 s31, s20, 7"); e("s_lshr_b32 s32, s20, 3")
    e("s_waitcnt lgkmcnt(0)")
    srd(e, 8, 4, 5, 0x1000000); stamp(e, 0); tl_start(e, 2, 8, 120)
    e("v_and_b32 v7, 31, v2"); e("v_lshrrev_b32 v6, 5, v2")
    e("v_lshlrev_b32 v3, 5, v7"); e("v_lshl_add_u32 v3, v6, 4, v3")
    e("v_lshlrev_b32 v4, 4, v2")
    e("s_lshl_b32 s23, s21, 16"); e("s_lshl_b32 s24, s22, 13"); e("s_lshl_b32 s25, s31, 10")
    e("s_add_u32 s24, s24, s25"); e("s_add_u32 s24, s24, s23")
    e(f"buffer_load_dwordx4 {vr(Q,4)}, v3, s[8:11], s24 offen")
    e("s_lshl_b32 s33, s32, 15"); e("s_add_u32 s25, s25, s33")
    e(f"s_add_u32 s26, s23, s25"); e(f"s_add_u32 s26, s26, {WS_K:#x}")
    def dma(c):
        e(f"s_add_u32 s27, s26, {c*8192}"); e(f"s_add_u32 s28, s27, {WS_V-WS_K:#x}")
        e(f"s_add_u32 m0, s25, {c*8192}"); e("s_nop 0")
        e("buffer_load_dwordx4 v4, s[8:11], s27 offen lds")
        e(f"s_add_u32 m0, s25, {VB + c*8192}"); e("s_nop 0")
        e("buffer_load_dwordx4 v4, s[8:11], s28 offen lds")
    dma(0); dma(1)
    e(f"v_and_b32 v{T}, 1, v0")
    e(f"v_mov_b32 v{T+4}, 0x3f80"); e(f"v_mov_b32 v{T+5}, 0"); e(f"v_mov_b32 v{T+7}, 0")
    e(f"v_cmp_eq_u32 vcc, 0, v{T}"); e("s_nop 1")
    e(f"v_cndmask_b32 v{T+4}, 0, v{T+4}, vcc"); e(f"v_mov_b32 v{T+6}, v{T+4}")
    e(f"v_lshlrev_b32 v{T+1}, 4, v0"); e(f"v_add_u32 v{T+1}, {CB}, v{T+1}")
    e("s_cmp_ge_u32 s20, 9"); e("s_cbranch_scc1 K2_NOC")
    e(f"ds_write_b128 v{T+1}, {vr(T+4,4)}")
    e.lab("K2_NOC")
    e("v_add_u32 v3, s33, v3")
    e(f"v_bfe_u32 v{T}, v2, 2, 2"); e(f"v_and_b32 v{T+1}, 3, v2"); e(f"v_bfe_u32 v{T+2}, v2, 4, 1")
    e(f"v_lshl_add_u32 v{T+3}, v6, 2, v{T}")
    e(f"v_lshlrev_b32 v{T+3}, 5, v{T+3}"); e(f"v_lshl_add_u32 v{T+3}, v{T+1}, 3, v{T+3}")
    e(f"v_add_u32 v{T+3}, {VB}, v{T+3}"); e(f"v_add_u32 v{T+3}, s33, v{T+3}")
    e(f"v_lshlrev_b32 v{T+4}, 5, v{T}"); e(f"v_lshl_add_u32 v{T+4}, v{T+1}, 3, v{T+4}"); e(f"v_add_u32 v{T+4}, {CB}, v{T+4}")
    e(f"v_cmp_eq_u32 vcc, 0, v{T+2}"); e(f"v_mov_b32 v{T+5}, 0x2000"); e("s_nop 1")
    e(f"v_cndmask_b32 v5, v{T+4}, v{T+3}, vcc")
    e(f"v_cndmask_b32 v1, 0, v{T+5}, vcc")
    for r in range(16): e(f"v_mov_b32 v{O+r}, 0")
    for r in range(8): e(f"v_mov_b32 v{P2[1]+r}, 0"); e(f"v_mov_b32 v{VF[1]+r}, 0")
    e("s_waitcnt vmcnt(2) lgkmcnt(0)"); e("s_barrier"); stamp(e, 1)
    e(f"ds_read_b128 {vr(KB[0],4)}, v3")
    e("s_waitcnt lgkmcnt(0)")
    e(f"v_mfma_f32_32x32x16_bf16 {vr(S[0],16)}, {vr(KB[0],4)}, {vr(Q,4)}, 0")
    e(f"ds_read_b128 {vr(KB[1],4)}, v3 offset:1024")
    for j in range(2):
        for u in range(2):
            e(f"ds_read_b64_tr_b16 {vr(VF[0]+4*j+2*u,2)}, v5 offset:{j*512+u*256}")
    dma(2); dma(3)
    s0 = S[0]
    e(f"v_max3_f32 v{T}, v{s0}, v{s0+1}, v{s0+2}")
    for r in range(3, 15, 2): e(f"v_max3_f32 v{T}, v{T}, v{s0+r}, v{s0+r+1}")
    e(f"v_max_f32 v{T}, v{T}, v{s0+15}")
    e(f"v_mov_b32 v{T+1}, v{T}"); e("s_nop 1")
    e(f"v_permlane32_swap_b32 v{T}, v{T+1}"); e("s_nop 1")
    e(f"v_max_f32 v{T}, v{T}, v{T+1}")
    e(f"v_sub_f32 v{T}, 0, v{T}")
    for r in range(16): e(f"v_mov_b32 v{NM+r}, v{T}")
    e("s_nop 1")
    e(f"v_mfma_f32_32x32x16_bf16 {vr(S[0],16)}, {vr(KB[0],4)}, {vr(Q,4)}, {vr(NM,16)}")
    stamp(e, 2)
    e("s_mov_b32 s30, 0"); e.nop(10)
    e.lab("K2_LOOP")
    for i in range(8):
        cur = i & 1; nx = cur ^ 1; sc = S[cur]; Pc = P2[cur]; Pp = P2[nx]
        if i == 5:
            e("s_cmp_gt_u32 s30, 2"); e("s_cbranch_scc1 K2_NW")
            e("s_cmp_eq_u32 s30, 0"); e("s_cbranch_scc0 K2_W1")
            e("s_waitcnt vmcnt(4)"); e("s_branch K2_WB")
            e.lab("K2_W1"); e("s_cmp_eq_u32 s30, 1"); e("s_cbranch_scc0 K2_W2")
            e("s_waitcnt vmcnt(2)"); e("s_branch K2_WB")
            e.lab("K2_W2"); e("s_waitcnt vmcnt(0)")
            e("s_load_dwordx2 s[40:41], s[0:1], 16"); e("s_load_dwordx4 s[44:47], s[0:1], 40"); e("s_load_dwordx2 s[48:49], s[0:1], 56")
            e("s_lshl_b32 s42, s2, 4"); e("s_add_u32 s42, s42, s20")
            e("s_waitcnt lgkmcnt(0)")
            e("s_cmp_lt_u32 s42, 1792"); e("s_cselect_b32 s52, s44, s46"); e("s_cselect_b32 s53, s45, s47"); e("s_cselect_b32 s43, 0, 1792")
            e("s_cmp_lt_u32 s42, 3584"); e("s_cselect_b32 s52, s52, s48"); e("s_cselect_b32 s53, s53, s49"); e("s_cselect_b32 s43, s43, 3584")
            e("s_mov_b32 s54, 1835008"); e("s_mov_b32 s55, 0x00020000")
            e("s_sub_u32 s43, s42, s43"); e("s_lshl_b32 s43, s43, 10")
            e("buffer_load_dwordx4 v[12:15], v4, s[52:55], s43 offen")
            e("s_add_u32 s43, s42, 512"); e("s_sub_u32 s50, s42, 1280"); e("s_mov_b32 s51, 524288")
            e("s_cmp_lt_u32 s42, 1280"); e("s_cselect_b32 s56, s48, s40"); e("s_cselect_b32 s57, s49, s41"); e("s_cselect_b32 s58, s54, s51")
            e("s_cselect_b32 s43, s43, s50"); e("s_mov_b32 s59, 0x00020000"); e("s_lshl_b32 s43, s43, 10")
            e("buffer_load_dwordx4 v[12:15], v4, s[56:59], s43 offen")
            e.lab("K2_WB"); e("s_barrier")
            e.lab("K2_NW")
        ex = lambda r: e(f"v_exp_f32 v{sc+r}, v{sc+r}")
        cv = lambda p: e(f"v_cvt_pk_bf16_f32 v{Pc+p}, v{sc+2*p}, v{sc+2*p+1}")
        e("s_waitcnt lgkmcnt(4)")
        e(f"v_mfma_f32_32x32x16_bf16 {vr(S[nx],16)}, {vr(KB[nx],4)}, {vr(Q,4)}, {vr(NM,16)}")
        e(f"ds_read_b128 {vr(KB[cur],4)}, v3 offset:{(i+2)*1024}")
        ex(0); ex(1); ex(2); cv(0); ex(3); ex(4); cv(1)
        e(f"v_mfma_f32_32x32x16_bf16 {vr(O,16)}, {vr(VF[nx],4)}, {vr(Pp,4)}, {vr(O,16)}")
        ex(5); ex(6); cv(2); ex(7); ex(8); cv(3); ex(9); ex(10); cv(4)
        e(f"v_mfma_f32_32x32x16_bf16 {vr(O,16)}, {vr(VF[nx]+4,4)}, {vr(Pp+4,4)}, {vr(O,16)}")
        for j in range(2):
            for u in range(2):
                e(f"ds_read_b64_tr_b16 {vr(VF[nx]+4*j+2*u,2)}, v5 offset:{(i+1)*1024 + j*512+u*256}")
        ex(11); ex(12); cv(5); ex(13); ex(14); cv(6); ex(15); e("s_nop 0"); cv(7)
    e("v_add_u32 v3, 0x2000, v3"); e("v_add_u32 v5, v5, v1")
    e("s_add_u32 s30, s30, 1"); e("s_cmp_lt_u32 s30, 4"); e("s_cbranch_scc1 K2_LOOP")
    e("s_waitcnt lgkmcnt(0)")
    e(f"v_mfma_f32_32x32x16_bf16 {vr(O,16)}, {vr(VF[1],4)}, {vr(P2[1],4)}, {vr(O,16)}")
    e(f"v_mfma_f32_32x32x16_bf16 {vr(O,16)}, {vr(VF[1]+4,4)}, {vr(P2[1]+4,4)}, {vr(O,16)}")
    e.nop(16)
    stamp(e, 3)
    e(f"v_mov_b32 v{T}, 0x5d800000")
    e(f"v_cmp_nlt_f32 vcc, v{O+8}, v{T}"); e("s_nop 4")
    e("s_cbranch_vccnz K2_SLOW")
    e.lab("K2_OUT")
    e("s_mul_i32 s34, s31, 2560"); e(f"s_add_u32 s34, s34, {XB}")
    e(f"v_lshl_add_u32 v{T+1}, v2, 2, s34")
    e("s_cmp_eq_u32 s32, 0"); e("s_cbranch_scc1 K2_LOW")
    for r in range(9): e(f"ds_write_b32 v{T+1}, v{O+r} offset:{256*r}")
    e(f"ds_write_b32 v{T+1}, v{NM} offset:{256*9}")
    e("s_waitcnt lgkmcnt(0)"); e("s_barrier")
    if DIAG: stamp_out(e, 4, 2, 8, "s20")
    e("s_endpgm")
    e.lab("K2_LOW")
    e("s_barrier")
    for r in range(10): e(f"ds_read_b32 v{S[0]+r}, v{T+1} offset:{256*r}")
    e("s_waitcnt lgkmcnt(0)")
    e(f"v_min_f32 v{T}, v{NM}, v{S[0]+9}")
    e(f"v_sub_f32 v{T+2}, v{T}, v{NM}"); e(f"v_sub_f32 v{T+3}, v{T}, v{S[0]+9}")
    e(f"v_exp_f32 v{T+2}, v{T+2}"); e(f"v_exp_f32 v{T+3}, v{T+3}"); e("s_nop 0")
    for r in range(9):
        e(f"v_mul_f32 v{O+r}, v{O+r}, v{T+2}"); e(f"v_fmac_f32 v{O+r}, v{S[0]+r}, v{T+3}")
    e(f"v_rcp_f32 v{T}, v{O+8}"); e("s_nop 0")
    for r in range(8): e(f"v_mul_f32 v{O+r}, v{O+r}, v{T}")
    for r in range(4): e(f"v_cvt_pk_bf16_f32 v{P2[0]+r}, v{O+2*r}, v{O+2*r+1}")
    e("s_lshl_b32 s24, s22, 8"); e("s_lshl_b32 s25, s31, 5"); e("s_add_u32 s24, s24, s25")
    e(f"v_add_u32 v{T+1}, s24, v7"); e(f"v_lshlrev_b32 v{T+1}, 10, v{T+1}"); e(f"v_lshl_add_u32 v{T+1}, v6, 4, v{T+1}")
    e("s_lshl_b32 s25, s21, 5"); e(f"s_add_u32 s25, s25, {WS_O:#x}")
    e(f"buffer_store_dwordx4 {vr(P2[0],4)}, v{T+1}, s[8:11], s25 offen")
    if DIAG: stamp_out(e, 4, 2, 8, "s20")
    e("s_endpgm")
    e.lab("K2_SLOW")
    P = P2[0]
    e("v_subrev_u32 v3, 0x8000, v3")
    e(f"v_lshlrev_b32 v{T+5}, 2, v1"); e(f"v_sub_u32 v5, v5, v{T+5}")
    e(f"v_lshrrev_b32 v1, 3, v1")
    e(f"v_sub_f32 v{NM}, 0, v{NM}")
    for r in range(16): e(f"v_mov_b32 v{O+r}, 0")
    e("s_mov_b32 s30, 0")
    e.lab("K2_SL")
    e(f"ds_read_b128 {vr(KB[0],4)}, v3")
    for j in range(2):
        for u in range(2):
            e(f"ds_read_b64_tr_b16 {vr(VF[0]+4*j+2*u,2)}, v5 offset:{j*512+u*256}")
    e("s_waitcnt lgkmcnt(0)")
    e(f"v_mfma_f32_32x32x16_bf16 {vr(S[0],16)}, {vr(KB[0],4)}, {vr(Q,4)}, 0")
    e.nop(16)
    e(f"v_max3_f32 v{T}, v{s0}, v{s0+1}, v{s0+2}")
    for r in range(3, 15, 2): e(f"v_max3_f32 v{T}, v{T}, v{s0+r}, v{s0+r+1}")
    e(f"v_max3_f32 v{T}, v{T}, v{s0+15}, v{NM}")
    e(f"v_mov_b32 v{T+1}, v{T}"); e("s_nop 1")
    e(f"v_permlane32_swap_b32 v{T}, v{T+1}"); e("s_nop 1")
    e(f"v_max_f32 v{T}, v{T}, v{T+1}")
    e(f"v_sub_f32 v{T+1}, v{NM}, v{T}"); e(f"v_exp_f32 v{T+1}, v{T+1}"); e(f"v_mov_b32 v{NM}, v{T}")
    for r in range(16): e(f"v_mul_f32 v{O+r}, v{O+r}, v{T+1}")
    for r in range(16): e(f"v_sub_f32 v{s0+r}, v{s0+r}, v{T}")
    for r in range(16): e(f"v_exp_f32 v{s0+r}, v{s0+r}")
    e("s_nop 0")
    for p in range(8): e(f"v_cvt_pk_bf16_f32 v{P+p}, v{s0+2*p}, v{s0+2*p+1}")
    e("s_nop 1")
    e(f"v_mfma_f32_32x32x16_bf16 {vr(O,16)}, {vr(VF[0],4)}, {vr(P,4)}, {vr(O,16)}")
    e(f"v_mfma_f32_32x32x16_bf16 {vr(O,16)}, {vr(VF[0]+4,4)}, {vr(P+4,4)}, {vr(O,16)}")
    e("v_add_u32 v3, 0x400, v3"); e("v_add_u32 v5, v5, v1")
    e.nop(16)
    e("s_add_u32 s30, s30, 1"); e("s_cmp_lt_u32 s30, 32"); e("s_cbranch_scc1 K2_SL")
    e(f"v_sub_f32 v{NM}, 0, v{NM}")
    e("s_branch K2_OUT")
    e.lab("K2_END"); e("s_endpgm")
    return e.txt(), descr(name, 128, 64), f"; @launch kernel={name} grid=(256,1,1) block=(1024,1,1) lds=160768"

def k3():
    e = E(); name = "k3_kernel"; header(e, name)
    OB = 65536; AP = 1040
    e("s_cmp_ge_u32 s2, 256"); e("s_cbranch_scc1 K3_END")
    e("s_load_dwordx2 s[4:5], s[0:1], 0"); e("s_load_dwordx2 s[6:7], s[0:1], 16"); e("s_load_dwordx2 s[8:9], s[0:1], 80"); e("s_load_dwordx2 s[10:11], s[0:1], 32")
    e("v_lshrrev_b32 v1, 6, v0"); e("v_and_b32 v2, 63, v0"); e("s_nop 0")
    e("v_readfirstlane_b32 s20, v1")
    e("s_and_b32 s21, s2, 7"); e("s_lshl_b32 s21, s21, 2"); e("s_bfe_u32 s22, s2, 0x20003"); e("s_add_u32 s21, s21, s22"); e("s_lshr_b32 s22, s2, 5")
    e("s_and_b32 s39, s20, 1"); e("s_lshr_b32 s40, s20, 1")
    e("s_waitcnt lgkmcnt(0)")
    srd(e, 12, 4, 5, 2097152); srd(e, 16, 6, 7, 524288); srd(e, 24, 8, 9, 0x1000000); srd(e, 44, 10, 11, 1024); stamp(e, 0); tl_start(e, 3, 24, 90)
    e("v_lshrrev_b32 v4, 3, v2"); e("v_lshlrev_b32 v4, 10, v4")
    e("v_bfe_u32 v5, v2, 2, 1"); e("v_bfe_u32 v6, v2, 4, 1"); e("v_xor_b32 v5, v5, v6")
    e("v_lshl_add_u32 v4, v5, 6, v4"); e("v_and_b32 v5, 3, v2"); e("v_lshl_add_u32 v4, v5, 4, v4")
    e("s_lshl_b32 s31, s22, 7"); e("v_add_u32 v4, s31, v4")
    e("v_lshlrev_b32 v3, 4, v2")
    e("s_lshl_b32 s32, s20, 17")
    e("s_lshl_b32 s33, s20, 14")
    e("s_lshl_b32 s35, s21, 16"); e("s_lshl_b32 s36, s20, 14"); e("s_add_u32 s35, s35, s36"); e(f"s_add_u32 s35, s35, {WS_O:#x}")
    e(f"s_mul_i32 s36, s20, {16*AP}"); e(f"s_add_u32 s36, s36, {OB}")
    for i in range(16):
        e(f"s_add_u32 s34, s35, {i*1024}"); e(f"s_add_u32 m0, s36, {i*AP}"); e("s_nop 0")
        e("buffer_load_dwordx4 v3, s[24:27], s34 offen lds")
        e(f"s_add_u32 s34, s32, {i*8192}"); e(f"s_add_u32 m0, s33, {i*1024}"); e("s_nop 0")
        e("buffer_load_dwordx4 v4, s[16:19], s34 offen lds")
    e("v_and_b32 v19, 31, v2"); e("v_lshrrev_b32 v20, 5, v2")
    e("s_lshl_b32 s31, s21, 6"); e("s_lshl_b32 s35, s39, 5"); e("s_add_u32 s31, s31, s35")
    e("v_add_u32 v21, s31, v19")
    e("v_lshlrev_b32 v22, 10, v21")
    e("s_lshl_b32 s37, s22, 7"); e("s_lshl_b32 s38, s40, 6"); e("s_add_u32 s37, s37, s38")
    e("v_lshlrev_b32 v23, 3, v20"); e("v_add_u32 v23, s37, v23")
    e("v_add_u32 v24, v22, v23")
    for g in range(4):
        e(f"buffer_load_dwordx2 {vr(32+2*g,2)}, v24, s[12:15], 0 offen offset:{16*g}")
    for g in range(4):
        e(f"buffer_load_dwordx2 {vr(40+2*g,2)}, v23, s[44:47], 0 offen offset:{16*g}")
    e("v_add_u32 v26, s35, v19"); e(f"v_mul_u32_u24 v26, {AP}, v26"); e("v_lshl_add_u32 v26, v20, 4, v26"); e(f"v_add_u32 v26, {OB}, v26")
    e("v_bfe_u32 v5, v2, 2, 2"); e("v_and_b32 v6, 3, v2"); e("v_bfe_u32 v7, v2, 4, 1")
    e("v_lshl_add_u32 v25, v20, 3, v5"); e("v_lshlrev_b32 v25, 7, v25")
    e("v_lshl_add_u32 v25, v7, 5, v25"); e("v_lshl_add_u32 v25, v6, 3, v25")
    e("v_lshrrev_b32 v5, 1, v5"); e("v_xor_b32 v5, s40, v5"); e("v_lshl_add_u32 v25, v5, 6, v25")
    for r in range(16): e(f"v_mov_b32 v{48+r}, 0")
    e("s_waitcnt vmcnt(8)"); e("s_barrier"); stamp(e, 1)
    NB = 4
    WF = [64 + 8*i for i in range(NB)]; XF = [68 + 8*i for i in range(NB)]
    def rd(s):
        sel = s % NB
        e(f"ds_read_b128 {vr(XF[sel],4)}, v26 offset:{32*s}")
        for u in range(2):
            e(f"ds_read_b64_tr_b16 {vr(WF[sel]+2*u,2)}, v25 offset:{(16*s+4*u)*128}")
    for s in range(NB-1): rd(s)
    for s in range(32):
        sel = s % NB
        if s + NB - 1 < 32: rd(s + NB - 1)
        rem = min(31 - s, NB - 1)
        e(f"s_waitcnt lgkmcnt({3*rem})")
        e(f"v_mfma_f32_32x32x16_bf16 {vr(48,16)}, {vr(WF[sel],4)}, {vr(XF[sel],4)}, {vr(48,16)}")
    stamp(e, 2)
    e("s_mov_b32 s41, 0x3f803f80"); e("v_mov_b32 v8, s41")
    e("v_mov_b32 v9, 0"); e("v_mov_b32 v10, 0"); e("v_mov_b32 v11, 0")
    e("s_waitcnt vmcnt(0)")
    e.nop(12)
    for p in range(8):
        a = 48 + 2*p; x = 32 + p
        e(f"v_cvt_pk_bf16_f32 v12, v{a}, v{a+1}")
        e("v_lshlrev_b32 v13, 16, v12"); e("v_and_b32 v14, 0xffff0000, v12")
        e(f"v_lshlrev_b32 v15, 16, v{x}"); e(f"v_and_b32 v16, 0xffff0000, v{x}")
        e("v_add_f32 v13, v13, v15"); e("v_add_f32 v14, v14, v16")
        e(f"v_cvt_pk_bf16_f32 v{x}, v13, v14")
        e(f"v_dot2_f32_bf16 v9, v{x}, v8, v9")
        e(f"v_dot2_f32_bf16 v10, v{x}, v{x}, v10")
        e(f"v_dot2_f32_bf16 v11, v{x}, v{40+p}, v11")
    e(f"s_mov_b32 s36, {WS_H:#x}")
    for g in range(4):
        e(f"buffer_store_dwordx2 {vr(32+2*g,2)}, v24, s[24:27], s36 offen offset:{16*g}")
    e("s_nop 2")
    for q in range(3): e(f"v_mov_b32 v{12+q}, v{9+q}")
    e("s_nop 1")
    for q in range(3): e(f"v_permlane32_swap_b32 v{9+q}, v{12+q}")
    e("s_nop 1")
    for q in range(3): e(f"v_add_f32 v{9+q}, v{9+q}, v{12+q}")
    e("v_lshlrev_b32 v15, 4, v21")
    e(f"s_mov_b32 s36, {WS_ST:#x}")
    e("s_mov_b64 exec, 0xffffffff")
    for q in range(3):
        e(f"buffer_atomic_add_f32 v{9+q}, v15, s[24:27], s36 offen offset:{4*q}")
    if DIAG:
        e("s_waitcnt vmcnt(0)"); stamp(e, 3); stamp_out(e, 4, 3, 24)
    e.lab("K3_END"); e("s_endpgm")
    return e.txt(), descr(name, 96, 64), f"; @launch kernel={name} grid=(256,1,1) block=(256,1,1) lds=132096"

def ln2_elem(e, x, mb, rinv, t):
    e(f"v_lshlrev_b32 v{t}, 16, v{x}"); e(f"v_and_b32 v{t+1}, 0xffff0000, v{x}")
    e(f"v_sub_f32 v{t+2}, v{t}, v{mb}"); e(f"v_sub_f32 v{t+3}, v{t+1}, v{mb}")
    e(f"v_cvt_pk_bf16_f32 v{t+2}, v{t+2}, v{t+3}")
    e(f"v_and_b32 v{t+3}, 0xffff0000, v{t+2}"); e(f"v_lshlrev_b32 v{t+2}, 16, v{t+2}")
    e(f"v_mul_f32 v{t+2}, v{t+2}, v{rinv}"); e(f"v_mul_f32 v{t+3}, v{t+3}, v{rinv}")
    e(f"v_cvt_pk_bf16_f32 v{t+2}, v{t+2}, v{t+3}")

WS_Y = 0xA10000
def k4():
    e = E(); name = "k4_kernel"; header(e, name)
    NF = 56; NE = 32
    L_XS = 1024; L_H = 5120; L_G = 8192; L_S2 = 40960; L_ACT = 45056; L_D = 49152; L_FLAG = 8064
    e(f"s_cmp_ge_u32 s2, {NF+NE}"); e("s_cbranch_scc1 K4_END")
    e("s_load_dwordx2 s[4:5], s[0:1], 80"); e("s_load_dwordx4 s[8:11], s[0:1], 64")
    e("s_load_dwordx8 s[44:51], s[0:1], 32")
    e("v_lshrrev_b32 v1, 6, v0"); e("v_and_b32 v2, 63, v0"); e("s_nop 0")
    e("v_readfirstlane_b32 s20, v1")
    e("s_waitcnt lgkmcnt(0)")
    srd(e, 12, 4, 5, 0x1000000); srd(e, 16, 8, 9, 2097152); srd(e, 24, 44, 45, 1024)
    srd(e, 28, 46, 47, 1835008); srd(e, 32, 48, 49, 1835008); srd(e, 36, 50, 51, 1835008); srd(e, 40, 10, 11, 256)
    stamp(e, 0); tl_start(e, 4, 12, 108)
    e("v_lshlrev_b32 v7, 4, v0"); e("v_mov_b32 v3, 0"); e("v_mov_b32 v6, 0"); e("v_mov_b32 v11, 0")
    e(f"s_mov_b32 s52, {WS_ST:#x}"); e(f"s_mov_b32 s53, {WS_ST + 16384:#x}"); e(f"s_mov_b32 s54, {WS_H:#x}")
    e("buffer_load_dwordx4 v[64:67], v7, s[12:15], s52 offen")
    e("buffer_load_dwordx4 v[68:71], v7, s[12:15], s53 offen")
    e(f"s_mov_b32 s55, {WS_ST + 0x8000:#x}")
    e("s_load_dword s66, s[4:5], s55")
    e(f"s_cmp_lt_u32 s2, {NF}"); e("s_cbranch_scc1 K4_LF")
    e(f"s_sub_u32 s21, s2, {NF}"); e("s_lshl_b32 s21, s21, 6"); e("s_lshl_b32 s22, s20, 2"); e("s_add_u32 s21, s21, s22")
    e("v_lshrrev_b32 v4, 4, v2"); e("v_and_b32 v5, 15, v2")
    e("v_add_u32 v6, s21, v4")
    e("v_lshlrev_b32 v3, 10, v6"); e("v_lshl_add_u32 v3, v5, 4, v3")
    e("v_lshlrev_b32 v9, 4, v6")
    e("buffer_load_dwordx4 v[72:75], v9, s[12:15], s52 offen")
    for i in range(4):
        e(f"buffer_load_dwordx4 {vr(80+4*i,4)}, v3, s[12:15], s54 offen offset:{256*i}")
    e("s_waitcnt vmcnt(5) lgkmcnt(0)"); e("s_branch K4_TOP")
    e.lab("K4_LF")
    e("s_waitcnt vmcnt(0) lgkmcnt(0)")
    e.lab("K4_TOP"); stamp(e, 1)
    e("s_mov_b32 s56, 0xfffff800")
    for i in range(2):
        b = 64 + 4*i; t = 18 + 8*i
        e(f"v_mul_f32 v{t}, 0x3b000000, v{b}")
        e(f"v_mul_f32 v{t+1}, 0x3b000000, v{b+1}")
        e(f"v_fma_f32 v{t+1}, -v{t}, v{t}, v{t+1}")
        e(f"v_max_f32 v{t+1}, 0, v{t+1}")
        e(f"v_add_f32 v{t+1}, 0x3727c5ac, v{t+1}")
        e(f"v_rsq_f32 v{t+1}, v{t+1}")
        e(f"v_fma_f32 v{t+4}, -v{t}, s66, v{b+2}")
        e(f"v_sub_u32 v{t+5}, {2047 - 1024*i}, v0")
        e(f"v_mul_f32 v{t+4}, v{t+4}, v{t+1}")
        e(f"v_ashrrev_i32 v{t+2}, 31, v{t+4}")
        e(f"v_or_b32 v{t+2}, 0x80000000, v{t+2}")
        e(f"v_xor_b32 v{t+4}, v{t+4}, v{t+2}")
        e(f"v_and_or_b32 v{t+4}, v{t+4}, s56, v{t+5}")
    e("v_max_u32 v16, v22, v30"); e("v_min_u32 v17, v22, v30")
    def red16():
        for ror in (8, 4, 2, 1):
            e("s_nop 1")
            e(f"v_mov_b32_dpp v18, v16 row_ror:{ror} row_mask:0xf bank_mask:0xf")
            e(f"v_mov_b32_dpp v19, v17 row_ror:{ror} row_mask:0xf bank_mask:0xf")
            e("v_min_u32 v20, v16, v18"); e("v_max_u32 v16, v16, v18"); e("v_max3_u32 v17, v17, v19, v20")
    red16()
    e("v_lshrrev_b32 v18, 4, v0"); e("v_lshlrev_b32 v18, 3, v18")
    e("ds_write_b64 v18, v[16:17]")
    e("s_waitcnt lgkmcnt(0)"); e("s_barrier")
    e("v_lshlrev_b32 v18, 3, v2")
    e("ds_read_b64 v[16:17], v18")
    e("s_waitcnt lgkmcnt(0)")
    red16()
    e("s_nop 0")
    for q in range(4):
        e(f"v_readlane_b32 s{56+2*q}, v16, {16*q}"); e(f"v_readlane_b32 s{57+2*q}, v17, {16*q}")
    def smerge(d, a, b):
        e(f"s_min_u32 s64, s{a}, s{b}"); e(f"s_max_u32 s65, s{a+1}, s{b+1}"); e(f"s_max_u32 s{d}, s{a}, s{b}"); e(f"s_max_u32 s{d+1}, s64, s65")
    smerge(56, 56, 58); smerge(60, 60, 62); smerge(56, 56, 60)
    e("s_and_b32 s56, s56, 0x7ff"); e("s_and_b32 s57, s57, 0x7ff")
    e("s_sub_u32 s56, 2047, s56"); e("s_sub_u32 s57, 2047, s57")
    stamp(e, 2)
    e(f"s_cmp_lt_u32 s2, {NF}"); e("s_cbranch_scc1 K4_FFN")
    e("s_waitcnt vmcnt(0)")
    ln_scalars(e, 72, 73, 12, (14, 15), "0x3b000000")
    e("v_rcp_f32 v15, v15"); e("s_nop 0")
    for j in range(16):
        x = 80 + j
        ln2_elem(e, x, 14, 15, 32)
        e("v_and_b32 v35, 0xffff0000, v34"); e("v_lshlrev_b32 v34, 16, v34")
        e("v_add_f32 v34, v32, v34"); e("v_add_f32 v35, v33, v35")
        e(f"v_cvt_pk_bf16_f32 v{x}, v34, v35")
    e("v_cmp_ne_u32 vcc, s56, v6"); e("v_cmp_ne_u32 s[60:61], s57, v6"); e("s_nop 1")
    e("s_and_b64 s[60:61], s[60:61], vcc"); e("s_and_b64 exec, exec, s[60:61]")
    e("s_cbranch_execz K4_END")
    for i in range(4):
        e(f"buffer_store_dwordx4 {vr(80+4*i,4)}, v3, s[16:19], 0 offen offset:{256*i}")
    e("s_endpgm")
    e.lab("K4_FFN")
    e("s_cmp_ge_u32 s20, 8"); e("s_cbranch_scc1 K4_NOXL")
    e("s_cmp_lt_u32 s20, 4"); e("s_cselect_b32 s58, s56, s57")
    e("s_lshl_b32 s59, s58, 4"); e("s_add_u32 s59, s59, s52")
    e("s_lshl_b32 s60, s58, 10"); e("s_add_u32 s60, s60, s54")
    e("v_and_b32 v19, 255, v0"); e("v_lshlrev_b32 v20, 2, v19"); e("v_mov_b32 v21, 0")
    e("buffer_load_dwordx4 v[24:27], v21, s[12:15], s59 offen")
    e("buffer_load_dword v28, v20, s[12:15], s60 offen")
    e("buffer_load_dword v30, v20, s[24:27], 0 offen")
    e("v_lshrrev_b32 v41, 8, v0")
    e.lab("K4_NOXL")
    e("s_barrier")
    e("v_lshrrev_b32 v4, 4, v0"); e("v_and_b32 v5, 15, v0")
    e("v_mul_u32_u24 v3, 3584, v4"); e("v_lshl_add_u32 v3, v5, 2, v3")
    e("s_lshl_b32 s21, s2, 6"); e("v_add_u32 v3, s21, v3")
    for i in range(8):
        e(f"s_mov_b32 s55, {i*64*3584}")
        e(f"buffer_load_dword v{80+i}, v3, s[28:31], s55 offen")
        e(f"buffer_load_dword v{88+i}, v3, s[32:35], s55 offen")
    e("v_lshrrev_b32 v6, 8, v0"); e("v_and_b32 v9, 255, v0")
    e("v_lshlrev_b32 v11, 13, v6"); e("v_lshl_add_u32 v11, v9, 2, v11")
    e("s_lshl_b32 s21, s2, 15"); e("s_add_u32 s22, s21, 4096")
    for i in range(8):
        e(f"buffer_load_dword v{96+i}, v11, s[36:39], {'s21' if i < 4 else 's22'} offen offset:{(i&3)*1024}")
    e("s_cmp_ge_u32 s20, 8"); e("s_cbranch_scc1 K4_NOXS")
    e("s_waitcnt vmcnt(24)")
    ln_scalars(e, 24, 25, 32, (34, 35), "0x3b000000")
    e("v_rcp_f32 v35, v35"); e("s_nop 0")
    ln2_elem(e, 28, 34, 35, 36)
    e("v_mov_b32 v40, 0"); e("v_dot2_f32_bf16 v40, v38, v30, v40")
    e("v_lshlrev_b32 v42, 2, v41"); e("v_lshl_add_u32 v42, v19, 4, v42")
    e("v_lshlrev_b32 v43, 16, v38"); e("v_and_b32 v44, 0xffff0000, v38")
    e(f"ds_write_b32 v42, v43 offset:{L_XS}"); e(f"ds_write_b32 v42, v44 offset:{L_XS+8}")
    e("v_lshlrev_b32 v45, 2, v0")
    e(f"ds_write_b32 v45, v28 offset:{L_H}")
    for ror in (8, 4, 2, 1):
        e("s_nop 1"); e(f"v_add_f32_dpp v40, v40, v40 row_ror:{ror} row_mask:0xf bank_mask:0xf")
    e("v_lshrrev_b32 v45, 4, v0"); e("v_lshlrev_b32 v45, 2, v45")
    e("ds_write_b32 v45, v40 offset:512")
    e.lab("K4_NOXS")
    e("s_waitcnt lgkmcnt(0)"); e("s_barrier"); stamp(e, 3)
    for r in range(104, 112): e(f"v_mov_b32 v{r}, 0")
    e("v_lshlrev_b32 v41, 3, v4")
    for i in range(8):
        e(f"ds_read_b64 {vr(48+2*i,2)}, v41 offset:{L_XS + i*512}")
    for i in range(8):
        e(f"s_waitcnt vmcnt({22-2*i}) lgkmcnt({7-i})")
        for m in range(2):
            w = 80 + 8*m + i; t = 44 + 2*m
            e(f"v_lshlrev_b32 v{t}, 16, v{w}"); e(f"v_and_b32 v{t+1}, 0xffff0000, v{w}")
            for tk in range(2):
                a = 104 + m*4 + tk*2
                e(f"v_fmac_f32 v{a}, v{t}, v{48+2*i+tk}"); e(f"v_fmac_f32 v{a+1}, v{t+1}, v{48+2*i+tk}")
    e("v_lshlrev_b32 v41, 5, v0")
    e(f"ds_write_b128 v41, v[104:107] offset:{L_G}"); e(f"ds_write_b128 v41, v[108:111] offset:{L_G+16}")
    e("s_waitcnt lgkmcnt(0)"); e("s_barrier")
    e("v_and_b32 v41, 127, v0"); e("v_lshrrev_b32 v42, 7, v0")
    e("v_lshlrev_b32 v43, 12, v42"); e("v_lshl_add_u32 v43, v41, 2, v43")
    for g in range(8): e(f"ds_read_b32 v{48+g}, v43 offset:{L_G + 512*g}")
    e("s_waitcnt lgkmcnt(0)")
    for g in range(1, 8): e(f"v_add_f32 v48, v48, v{48+g}")
    e("v_lshlrev_b32 v43, 2, v0")
    e(f"ds_write_b32 v43, v48 offset:{L_S2}")
    e("s_waitcnt lgkmcnt(0)"); e("s_barrier")
    e("s_cmp_lg_u32 s20, 0"); e("s_cbranch_scc1 K4_NS3")
    e("v_lshrrev_b32 v41, 5, v2"); e("v_and_b32 v42, 31, v2"); e("v_lshrrev_b32 v43, 1, v42"); e("v_and_b32 v44, 1, v42")
    e("v_lshlrev_b32 v45, 5, v43"); e("v_lshl_add_u32 v45, v41, 3, v45"); e("v_lshl_add_u32 v45, v44, 2, v45")
    for g in range(8):
        e(f"ds_read_b32 v{48+g}, v45 offset:{L_S2 + 512*g}")
        e(f"ds_read_b32 v{56+g}, v45 offset:{L_S2 + 512*g + 16}")
    e("s_waitcnt lgkmcnt(0)")
    for g in range(1, 8):
        e(f"v_add_f32 v48, v48, v{48+g}"); e(f"v_add_f32 v56, v56, v{56+g}")
    rnd_bf16(e, 48, 48); rnd_bf16(e, 56, 56)
    e("v_mul_f32 v49, 0xbfb8aa3b, v48"); e("v_exp_f32 v49, v49"); e("s_nop 0")
    e("v_add_f32 v49, 1.0, v49"); e("v_rcp_f32 v49, v49"); e("s_nop 0")
    e("v_mul_f32 v49, v48, v49"); rnd_bf16(e, 49, 49)
    e("v_mul_f32 v49, v49, v56"); rnd_bf16(e, 49, 49)
    e("v_lshlrev_b32 v50, 3, v42"); e("v_lshl_add_u32 v50, v41, 2, v50")
    e(f"ds_write_b32 v50, v49 offset:{L_ACT}")
    e("s_waitcnt lgkmcnt(0)")
    e.lab("K4_NS3")
    e("s_barrier"); stamp(e, 4)
    e("v_lshlrev_b32 v41, 6, v6")
    for i in range(8): e(f"ds_read_b64 {vr(48+2*i,2)}, v41 offset:{L_ACT + 8*i}")
    for r in range(104, 108): e(f"v_mov_b32 v{r}, 0")
    for i in range(8):
        e(f"s_waitcnt vmcnt({7-i}) lgkmcnt({7-i})")
        w = 96 + i; t = 44 + 2*(i & 1)
        e(f"v_lshlrev_b32 v{t}, 16, v{w}"); e(f"v_and_b32 v{t+1}, 0xffff0000, v{w}")
        for tk in range(2):
            a = 104 + tk*2
            e(f"v_fmac_f32 v{a}, v{t}, v{48+2*i+tk}"); e(f"v_fmac_f32 v{a+1}, v{t+1}, v{48+2*i+tk}")
    e("v_lshlrev_b32 v41, 4, v0")
    e(f"ds_write_b128 v41, v[104:107] offset:{L_D}")
    e("s_waitcnt lgkmcnt(0)"); e("s_barrier")
    e("v_lshrrev_b32 v41, 9, v0"); e("v_and_b32 v42, 511, v0"); e("v_lshrrev_b32 v43, 1, v42"); e("v_and_b32 v44, 1, v42")
    e("v_lshlrev_b32 v45, 4, v43"); e("v_lshl_add_u32 v45, v41, 3, v45"); e("v_lshl_add_u32 v45, v44, 2, v45")
    for g in range(4): e(f"ds_read_b32 v{48+g}, v45 offset:{L_D + 4096*g}")
    e("s_waitcnt lgkmcnt(0)")
    e("v_add_f32 v48, v48, v49"); e("v_add_f32 v50, v50, v51"); e("v_add_f32 v48, v48, v50")
    e("v_lshlrev_b32 v46, 2, v0"); e(f"s_mov_b32 s58, {WS_Y:#x}")
    e("buffer_atomic_add_f32 v48, v46, s[12:15], s58 offen")
    e("s_waitcnt vmcnt(0)"); e("s_barrier"); stamp(e, 5)
    e("s_cmp_lg_u32 s20, 0"); e("s_cbranch_scc1 K4_NCNT")
    e("v_mov_b32 v48, 1"); e("v_mov_b32 v49, 0"); e(f"v_mov_b32 v50, {L_FLAG}")
    e("s_mov_b64 exec, 1")
    e("buffer_atomic_add v48, v49, s[40:43], 0 offen sc0")
    e("s_waitcnt vmcnt(0)")
    e("ds_write_b32 v50, v48")
    e("s_mov_b64 exec, -1")
    e("s_waitcnt lgkmcnt(0)")
    e.lab("K4_NCNT")
    e("s_barrier")
    e(f"v_mov_b32 v50, {L_FLAG}"); e("ds_read_b32 v48, v50"); e("s_waitcnt lgkmcnt(0)")
    e("v_readfirstlane_b32 s59, v48")
    if DIAG:
        stamp(e, 6); stamp_out(e, 7, 4, 12)
    e(f"s_cmp_lg_u32 s59, {NF-1}"); e("s_cbranch_scc1 K4_END")
    e("v_mov_b32 v48, 0")
    e("buffer_atomic_add_f32 v48, v46, s[12:15], s58 offen sc0")
    e("v_lshlrev_b32 v47, 6, v41")
    for q in range(4): e(f"ds_read_b128 {vr(52+4*q,4)}, v47 offset:{512 + 16*q}")
    e("v_lshlrev_b32 v47, 3, v42"); e("v_lshl_add_u32 v47, v41, 2, v47")
    e(f"ds_read_b32 v49, v47 offset:{L_XS}")
    e("v_lshlrev_b32 v47, 1, v0")
    e(f"ds_read_u16 v50, v47 offset:{L_H}")
    e("s_waitcnt lgkmcnt(0)")
    for q in range(1, 16): e(f"v_add_f32 v52, v52, v{52+q}")
    rnd_bf16(e, 52, 52)
    e("v_mul_f32 v52, 0xbfb8aa3b, v52"); e("v_exp_f32 v52, v52"); e("s_nop 0")
    e("v_add_f32 v52, 1.0, v52"); e("v_rcp_f32 v52, v52"); e("s_nop 0")
    rnd_bf16(e, 52, 52)
    e("v_lshlrev_b32 v50, 16, v50")
    e("s_cmp_lt_u32 s20, 8"); e("s_cselect_b32 s60, s56, s57"); e("s_lshl_b32 s60, s60, 10")
    e("v_lshlrev_b32 v51, 1, v42")
    e("s_waitcnt vmcnt(0)")
    rnd_bf16(e, 48, 48)
    e("v_mul_f32 v48, v48, v52"); rnd_bf16(e, 48, 48)
    e("v_add_f32 v48, v49, v48"); rnd_bf16(e, 48, 48)
    e("v_add_f32 v48, v50, v48"); e("v_cvt_pk_bf16_f32 v48, v48, v48")
    e("buffer_store_short v48, v51, s[16:19], s60 offen")
    if TL:
        e("s_cmp_lg_u32 s20, 0"); e("s_cbranch_scc1 K4_END")
        e("s_waitcnt vmcnt(0)")
        e("s_memrealtime s[60:61]"); e("s_waitcnt lgkmcnt(0)")
        e("v_lshlrev_b32 v50, 2, v2"); e(f"s_mov_b32 s62, {0xB00000:#x}")
        e("buffer_load_dword v51, v50, s[12:15], s62 offen sc1")
        e("s_waitcnt vmcnt(0)")
        e("v_mov_b32 v52, s60"); e("v_cmp_eq_u32 vcc, 5, v2"); e("s_nop 1"); e("v_cndmask_b32 v51, v51, v52, vcc")
        e("v_cmp_gt_u32 vcc, 6, v2"); e("v_cmp_lt_u32 s[60:61], 0, v2"); e("s_nop 1"); e("s_and_b64 exec, vcc, s[60:61]")
        e("buffer_store_dword v51, v50, s[40:43], 0 offen")
    e.lab("K4_END"); e("s_endpgm")
    return e.txt(), descr(name, 112, 96), f"; @launch kernel={name} grid=({NF+NE},1,1) block=(1024,1,1) lds=65536"

def main(out):
    ks = [k1(), k2(), k3(), k4()]
    s = "; generated 5-kernel pipeline: LN1+QKV | attention | out-proj+stats | LN2 out + top2 + gate/up | down + final rows\n"
    for k in ks: s += k[2] + "\n"
    s += '.amdgcn_target "amdgcn-amd-amdhsa--gfx950"\n.text\n'
    for k in ks: s += k[0]
    s += '.section .rodata,"a"\n'
    for k in ks: s += k[1]
    open(out, "w").write(s)

if __name__ == "__main__":
    if len(sys.argv) > 2 and sys.argv[2] == "diag": DIAG = True
    if len(sys.argv) > 2 and sys.argv[2] == "codepf": CODEPF = True
    if len(sys.argv) > 2 and "tl" in sys.argv[2:]: TL = True
    if len(sys.argv) > 2 and "wpf" in sys.argv[2:]: WPF = True
    for q in range(1536): assert (q * 2731) >> 16 == q // 24
    main(sys.argv[1] if len(sys.argv) > 1 else "sequential_preLN__softmax_full_mha__moe_arch_mod__prompt.s")
```

```python
import sys, math

WS_Q = 0x000000; WS_K = 0x200000; WS_V = 0x400000; WS_O = 0x600000; WS_H = 0x800000
WS_ST = 0xA00000; WS_ACT = 0xA10000; WS_SEL = 0xA20000
C_SCALE = 0.25 * math.log2(math.e)
import struct
def f32bits(x): return struct.unpack("<I", struct.pack("<f", x))[0]

class E:
    def __init__(self): self.l = []
    def __call__(self, s): self.l.append("    " + s)
    def lab(self, s): self.l.append(s + ":")
    def c(self, s): self.l.append("    ; " + s)
    def nop(self, n):
        while n > 0:
            k = min(n, 16); self(f"s_nop {k-1}"); n -= k
    def txt(self): return "\n".join(self.l) + "\n"

def vr(a, n): return f"v[{a}:{a+n-1}]"
def sr(a, n): return f"s[{a}:{a+n-1}]"

def srd(e, d, lo, hi, size):
    e(f"s_mov_b32 s{d}, s{lo}"); e(f"s_mov_b32 s{d+1}, s{hi}"); e(f"s_mov_b32 s{d+2}, {size:#x}"); e(f"s_mov_b32 s{d+3}, 0x00020000")

def header(e, name):
    e.l.append(f".globl {name}"); e.l.append(".p2align 8"); e.l.append(f".type {name},@function"); e.lab(name)

def descr(name, vg, sg=64):
    if DIAG: vg = max(vg, 128); sg = 102
    vg4 = (vg + 3) // 4 * 4
    return f""".p2align 6
.amdhsa_kernel {name}
  .amdhsa_next_free_vgpr {vg}
  .amdhsa_next_free_sgpr {sg}
  .amdhsa_accum_offset {vg4}
  .amdhsa_group_segment_fixed_size 0
  .amdhsa_kernarg_size 88
  .amdhsa_user_sgpr_count 2
  .amdhsa_user_sgpr_kernarg_segment_ptr 1
  .amdhsa_system_sgpr_workgroup_id_x 1
.end_amdhsa_kernel
"""

DIAG = False
CODEPF = False
TL = False
WPF = False
def tl_start(e, k, srdb, vt):
    if not TL: return
    e("s_cmp_lg_u32 s2, 0"); e(f"s_cbranch_scc1 TL{k}"); e("s_cmp_lg_u32 s20, 0"); e(f"s_cbranch_scc1 TL{k}")
    e("s_memrealtime s[60:61]"); e("s_waitcnt lgkmcnt(0)")
    e(f"v_mov_b32 v{vt}, s60"); e(f"v_mov_b32 v{vt+1}, 0"); e(f"s_mov_b32 s62, {0xB00000 + 4*k:#x}")
    e(f"buffer_store_dword v{vt}, v{vt+1}, s[{srdb}:{srdb+3}], s62 offen")
    e("s_waitcnt vmcnt(0)")
    e.lab(f"TL{k}")
WS_DIAG = 0xB00000
def stamp(e, idx):
    if not DIAG: return
    b = 70 + 4*idx
    e(f"s_memtime s[{b}:{b+1}]"); e(f"s_memrealtime s[{b+2}:{b+3}]"); e("s_waitcnt lgkmcnt(0)")
def stamp_out(e, n, kid, srdbase, wavesreg="s20"):
    if not DIAG: return
    e("s_mov_b64 exec, 1")
    e(f"s_lshl_b32 s68, s2, 4"); e(f"s_add_u32 s68, s68, {wavesreg}"); e("s_lshl_b32 s68, s68, 7"); e(f"s_add_u32 s68, s68, {WS_DIAG + kid*0x80000:#x}")
    e("v_mov_b32 v122, 0")
    for i in range(n):
        b = 70 + 4*i
        e(f"v_mov_b32 v124, s{b}"); e(f"v_mov_b32 v125, s{b+1}"); e(f"v_mov_b32 v126, s{b+2}"); e(f"v_mov_b32 v127, s{b+3}")
        e(f"buffer_store_dwordx4 v[124:127], v122, s[{srdbase}:{srdbase+3}], s68 offen offset:{16*i}")
        e("s_nop 1")
    e("s_mov_b64 exec, -1")

def rnd_bf16(e, d, s):
    e(f"v_cvt_pk_bf16_f32 v{d}, v{s}, v{s}")
    e(f"v_lshlrev_b32 v{d}, 16, v{d}")

def ln_scalars(e, sm, sq, t, outs, inv_n):
    mb, sb = outs
    e(f"v_mul_f32 v{t}, {inv_n}, v{sm}")
    e(f"v_mul_f32 v{t+1}, {inv_n}, v{sq}")
    e(f"v_fma_f32 v{t+1}, -v{t}, v{t}, v{t+1}")
    e(f"v_max_f32 v{t+1}, 0, v{t+1}")
    rnd_bf16(e, mb, t)
    rnd_bf16(e, t+1, t+1)
    e(f"v_add_f32 v{t+1}, 0x3727c5ac, v{t+1}")
    rnd_bf16(e, t+1, t+1)
    e(f"v_sqrt_f32 v{t+1}, v{t+1}")
    e("s_nop 0")
    rnd_bf16(e, sb, t+1)

def k1():
    e = E(); name = "k1_kernel"; header(e, name)
    A_BASE = 73728; AP = 1040
    e("s_cmp_ge_u32 s2, 256"); e("s_cbranch_scc1 K1_END")
    e("s_load_dwordx4 s[4:7], s[0:1], 0"); e("s_load_dwordx2 s[8:9], s[0:1], 80")
    e("v_lshrrev_b32 v1, 6, v0"); e("v_and_b32 v2, 63, v0"); e("s_nop 0")
    e("v_readfirstlane_b32 s20, v1")
    e("s_bfe_u32 s21, s2, 0x20001"); e("s_lshl_b32 s21, s21, 3"); e("s_bfe_u32 s22, s2, 0x30003"); e("s_add_u32 s21, s21, s22")
    e("s_and_b32 s22, s2, 1"); e("s_lshl_b32 s22, s22, 2"); e("s_lshr_b32 s23, s2, 6"); e("s_add_u32 s22, s22, s23")
    e("s_waitcnt lgkmcnt(0)")
    srd(e, 12, 4, 5, 2097152); srd(e, 16, 6, 7, 1572864); srd(e, 24, 8, 9, 0x1000000); stamp(e, 0); tl_start(e, 1, 24, 120)
    e("v_lshrrev_b32 v4, 3, v2"); e("v_and_b32 v5, 7, v2")
    e("s_cmp_ge_u32 s20, 8"); e("s_cbranch_scc1 K1_NOX")
    e("s_lshl_b32 s23, s21, 6"); e("s_lshl_b32 s31, s20, 3"); e("s_add_u32 s23, s23, s31")
    e("v_add_u32 v3, s23, v4"); e("v_lshlrev_b32 v3, 10, v3"); e("v_lshl_add_u32 v3, v5, 4, v3")
    for i in range(8):
        e(f"buffer_load_dwordx4 {vr(64+4*i,4)}, v3, s[12:15], 0 offen offset:{i*128}")
    e.lab("K1_NOX")
    e("s_lshl_b32 s31, s20, 7")
    e("s_movk_i32 s33, 2731")
    e("s_mul_i32 s34, s22, 384")
    for i in range(2):
        e(f"v_add_u32 v6, s31, v2")
        if i: e(f"v_add_u32 v6, {i*64}, v6")
        e("v_mul_lo_u32 v7, v6, s33"); e("v_lshrrev_b32 v7, 16, v7")
        e("v_mul_u32_u24 v8, 24, v7"); e("v_sub_u32 v8, v6, v8")
        e("v_lshrrev_b32 v9, 2, v8")
        e("v_bfe_u32 v16, v7, 1, 1"); e("v_xor_b32 v9, v9, v16")
        e("v_and_b32 v8, 3, v8")
        e("v_mul_u32_u24 v7, 3072, v7")
        e("v_lshl_add_u32 v7, v9, 6, v7"); e("v_lshl_add_u32 v7, v8, 4, v7")
        e(f"v_add_u32 v{10+i}, s34, v7")
    e("s_lshl_b32 s35, s20, 11")
    def dma_chunk(c):
        buf = c % 3
        e(f"s_mov_b32 s36, {c*196608}")
        for i in range(2):
            e(f"s_add_u32 m0, s35, {buf*24576 + i*1024}")
            e("s_nop 0")
            e(f"buffer_load_dwordx4 v{10+i}, s[16:19], s36 offen lds")
    for c in range(3): dma_chunk(c)
    e("s_cmp_ge_u32 s20, 8"); e("s_cbranch_scc1 K1_IDLE")
    e("s_mov_b32 s38, 0x3f803f80")
    e("v_mov_b32 v17, s38")
    for p in range(4): e(f"v_mov_b32 v{32+p}, 0")
    e("s_lshl_b32 s31, s20, 3")
    e("v_add_u32 v18, s31, v4"); e(f"v_mul_u32_u24 v18, {AP}, v18"); e("v_lshl_add_u32 v18, v5, 4, v18")
    e(f"v_add_u32 v18, {A_BASE}, v18")
    e("s_waitcnt vmcnt(6)"); stamp(e, 1)
    for j in range(32):
        r = 64 + j
        e(f"v_dot2_f32_bf16 v{32+(j&1)}, v{r}, v17, v{32+(j&1)}")
        e(f"v_dot2_f32_bf16 v{34+(j&1)}, v{r}, v{r}, v{34+(j&1)}")
    e("s_nop 2")
    e("v_add_f32 v32, v32, v33"); e("v_add_f32 v34, v34, v35"); e("s_nop 1")
    for m in ("quad_perm:[1,0,3,2]", "quad_perm:[2,3,0,1]", "row_half_mirror"):
        e(f"v_add_f32_dpp v32, v32, v32 {m} row_mask:0xf bank_mask:0xf")
        e(f"v_add_f32_dpp v34, v34, v34 {m} row_mask:0xf bank_mask:0xf")
        e("s_nop 0")
    ln_scalars(e, 32, 34, 48, (50, 51), "0x3b000000")
    e(f"v_rcp_f32 v40, v51"); e("s_nop 0")
    e(f"v_mul_f32 v44, v50, v40"); e(f"v_sub_f32 v44, 0, v44")
    for j in range(32):
        r = 64 + j; t = 52 + 2*(j & 1)
        e(f"v_lshlrev_b32 v{t}, 16, v{r}"); e(f"v_and_b32 v{t+1}, 0xffff0000, v{r}")
        e(f"v_fma_f32 v{t}, v{t}, v40, v44"); e(f"v_fma_f32 v{t+1}, v{t+1}, v40, v44")
        e(f"v_cvt_pk_bf16_f32 v{r}, v{t}, v{t+1}")
        if j % 4 == 3:
            e(f"ds_write_b128 v18, {vr(r-3,4)} offset:{(j//4)*128}")
    e("s_branch K1_NOLN")
    e.lab("K1_IDLE")
    e("s_cmp_lg_u32 s2, 9"); e("s_cbranch_scc1 K1_NOLN"); e("s_cmp_lg_u32 s20, 11"); e("s_cbranch_scc1 K1_NOLN")
    e("s_load_dwordx2 s[4:5], s[0:1], 32"); e("s_waitcnt lgkmcnt(0)")
    srd(e, 52, 4, 5, 1024)
    e("v_lshlrev_b32 v8, 4, v2")
    e("buffer_load_dwordx4 v[12:15], v8, s[52:55], 0 offen")
    e("s_mov_b32 s56, 0x3f803f80"); e("v_mov_b32 v18, s56"); e("v_mov_b32 v28, 0")
    e("s_waitcnt vmcnt(0)")
    for q in range(4): e(f"v_dot2_f32_bf16 v28, v{12+q}, v18, v28")
    e("s_nop 2")
    for ror in (8, 4, 2, 1):
        e(f"v_add_f32_dpp v28, v28, v28 row_ror:{ror} row_mask:0xf bank_mask:0xf"); e("s_nop 1")
    for q in range(4): e(f"v_readlane_b32 s{56+q}, v28, {16*q}")
    e("s_nop 1")
    e("v_mov_b32 v28, s56"); e("v_add_f32 v28, s57, v28"); e("v_add_f32 v28, s58, v28"); e("v_add_f32 v28, s59, v28")
    e("v_mov_b32 v8, 0"); e(f"s_mov_b32 s37, {WS_ST + 0x8000:#x}")
    e("buffer_store_dword v28, v8, s[24:27], s37 offen")
    e.lab("K1_NOLN")
    e("s_and_b32 s39, s20, 1"); e("s_lshr_b32 s40, s20, 1")
    e("v_and_b32 v19, 31, v2"); e("v_lshrrev_b32 v20, 5, v2")
    e("s_lshl_b32 s31, s39, 5")
    e("v_add_u32 v21, s31, v19"); e(f"v_mul_u32_u24 v21, {AP}, v21"); e("v_lshl_add_u32 v21, v20, 4, v21")
    e(f"v_add_u32 v21, {A_BASE}, v21")
    e("v_bfe_u32 v22, v2, 2, 2")
    e("v_and_b32 v23, 3, v2")
    e("v_bfe_u32 v24, v2, 4, 1")
    e("v_lshl_add_u32 v25, v20, 3, v22")
    e("v_mul_u32_u24 v25, 384, v25")
    e("v_lshl_add_u32 v25, v24, 5, v25"); e("v_lshl_add_u32 v25, v23, 3, v25")
    e("v_lshrrev_b32 v26, 1, v22")
    e("v_xor_b32 v27, s40, v26")
    e("v_lshl_add_u32 v54, v27, 6, v25")
    e("v_add_u32 v55, 49152, v54")
    for r in range(96, 112): e(f"v_mov_b32 v{r}, 0")
    e("s_waitcnt lgkmcnt(0)")
    stamp(e, 2)
    XF = [112, 116]; WF = [120, 124]
    def reads(c, ks, sel):
        buf = c % 3; s = c*4 + ks
        e(f"ds_read_b128 {vr(XF[sel],4)}, v21 offset:{32*s}")
        base = 55 if buf == 2 else 54
        bo = 0 if buf == 2 else buf*24576
        for u in range(2):
            e(f"ds_read_b64_tr_b16 {vr(WF[sel]+2*u,2)}, v{base} offset:{bo + (16*ks+4*u)*384}")
    for c in range(8):
        n = 4 if c == 0 else (0 if c == 7 else 2)
        e(f"s_waitcnt vmcnt({n})"); e("s_barrier")
        reads(c, 0, 0)
        if 1 <= c <= 5: dma_chunk(c+2)
        for ks in range(4):
            sel = ks & 1
            if ks < 3:
                reads(c, ks+1, sel ^ 1); e("s_waitcnt lgkmcnt(3)")
            else:
                e("s_waitcnt lgkmcnt(0)")
            e(f"v_mfma_f32_32x32x16_bf16 {vr(96,16)}, {vr(WF[sel],4)}, {vr(XF[sel],4)}, {vr(96,16)}")
    stamp(e, 3)
    e("s_lshl_b32 s31, s21, 6"); e("s_lshl_b32 s42, s39, 5"); e("s_add_u32 s31, s31, s42")
    e("v_add_u32 v22, s31, v19"); e("v_lshlrev_b32 v22, 5, v22"); e("v_lshl_add_u32 v22, v20, 4, v22")
    e("s_mul_i32 s44, s22, 6"); e("s_add_u32 s44, s44, s40")
    e("s_lshr_b32 s45, s44, 4")
    e("s_and_b32 s46, s44, 15")
    e("s_lshl_b32 s47, s45, 21"); e("s_lshl_b32 s46, s46, 17"); e("s_add_u32 s47, s47, s46")
    e("s_add_u32 s48, s47, 0x10000")
    e("s_cmp_eq_u32 s45, 0"); e(f"s_cselect_b32 s49, {f32bits(C_SCALE):#x}, 1.0")
    e.nop(8)
    a = 96
    for r in range(16): e(f"v_mul_f32 v{a+r}, s49, v{a+r}")
    for r in range(8): e(f"v_cvt_pk_bf16_f32 v{a+r}, v{a+2*r}, v{a+2*r+1}")
    e(f"buffer_store_dwordx4 {vr(a,4)}, v22, s[24:27], s47 offen")
    e(f"buffer_store_dwordx4 {vr(a+4,4)}, v22, s[24:27], s48 offen")
    e("s_cmp_ge_u32 s2, 9"); e("s_cbranch_scc1 K1_NOZ"); e("s_cmp_ge_u32 s20, 4"); e("s_cbranch_scc1 K1_NOZ")
    e("v_mov_b32 v20, 0"); e("v_mov_b32 v21, 0"); e("v_mov_b32 v22, 0"); e("v_mov_b32 v23, 0")
    e("s_lshl_b32 s37, s2, 12"); e("s_cmp_eq_u32 s2, 8"); e("s_cselect_b32 s37, 0x10000, s37"); e(f"s_add_u32 s37, s37, {WS_ST:#x}")
    e("v_lshlrev_b32 v24, 4, v0")
    e("buffer_store_dwordx4 v[20:23], v24, s[24:27], s37 offen")
    e.lab("K1_NOZ")
    if CODEPF:
        e("s_cmp_lt_u32 s2, 16"); e("s_cbranch_scc1 K1_NOPF"); e("s_cmp_ge_u32 s2, 29"); e("s_cbranch_scc1 K1_NOPF"); e("s_cmp_lg_u32 s20, 11"); e("s_cbranch_scc1 K1_NOPF")
        e("s_getpc_b64 s[56:57]")
        e("s_sub_u32 s58, s2, 16"); e("s_lshl_b32 s58, s58, 10")
        e("v_lshlrev_b32 v8, 4, v2"); e("v_add_u32 v8, s58, v8")
        e("global_load_dwordx4 v[12:15], v8, s[56:57]")
        e.lab("K1_NOPF")
    if DIAG:
        e("s_waitcnt vmcnt(0)"); stamp(e, 4)
        e("s_cmp_ge_u32 s20, 8"); e("s_cbranch_scc1 K1_END")
        stamp_out(e, 5, 1, 24)
    e.lab("K1_END"); e("s_endpgm")
    return e.txt(), descr(name, 128, 64), f"; @launch kernel={name} grid=(256,1,1) block=(768,1,1) lds=140288"

def k2():
    e = E(); name = "k2_kernel"; header(e, name)
    VB = 65536; CB = 131072; XB = 140288
    Q = 8; NM = 16; S = [32, 48]; O = 64; P2 = [80, 112]; KB = [88, 92]; VF = [96, 104]; T = 120
    e("s_cmp_ge_u32 s2, 256"); e("s_cbranch_scc1 K2_END")
    e("s_load_dwordx2 s[4:5], s[0:1], 80")
    e("v_lshrrev_b32 v1, 6, v0"); e("v_and_b32 v2, 63, v0"); e("s_nop 0")
    e("v_readfirstlane_b32 s20, v1")
    e("s_and_b32 s21, s2, 7"); e("s_lshl_b32 s21, s21, 2"); e("s_bfe_u32 s22, s2, 0x20003"); e("s_add_u32 s21, s21, s22")
    e("s_lshr_b32 s22, s2, 5")
    e("s_and_b32 s31, s20, 7"); e("s_lshr_b32 s32, s20, 3")
    e("s_waitcnt lgkmcnt(0)")
    srd(e, 8, 4, 5, 0x1000000); stamp(e, 0); tl_start(e, 2, 8, 120)
    e("v_and_b32 v7, 31, v2"); e("v_lshrrev_b32 v6, 5, v2")
    e("v_lshlrev_b32 v3, 5, v7"); e("v_lshl_add_u32 v3, v6, 4, v3")
    e("v_lshlrev_b32 v4, 4, v2")
    e("s_lshl_b32 s23, s21, 16"); e("s_lshl_b32 s24, s22, 13"); e("s_lshl_b32 s25, s31, 10")
    e("s_add_u32 s24, s24, s25"); e("s_add_u32 s24, s24, s23")
    e(f"buffer_load_dwordx4 {vr(Q,4)}, v3, s[8:11], s24 offen")
    e("s_lshl_b32 s33, s32, 15"); e("s_add_u32 s25, s25, s33")
    e(f"s_add_u32 s26, s23, s25"); e(f"s_add_u32 s26, s26, {WS_K:#x}")
    def dma(c):
        e(f"s_add_u32 s27, s26, {c*8192}"); e(f"s_add_u32 s28, s27, {WS_V-WS_K:#x}")
        e(f"s_add_u32 m0, s25, {c*8192}"); e("s_nop 0")
        e("buffer_load_dwordx4 v4, s[8:11], s27 offen lds")
        e(f"s_add_u32 m0, s25, {VB + c*8192}"); e("s_nop 0")
        e("buffer_load_dwordx4 v4, s[8:11], s28 offen lds")
    dma(0); dma(1)
    e(f"v_and_b32 v{T}, 1, v0")
    e(f"v_mov_b32 v{T+4}, 0x3f80"); e(f"v_mov_b32 v{T+5}, 0"); e(f"v_mov_b32 v{T+7}, 0")
    e(f"v_cmp_eq_u32 vcc, 0, v{T}"); e("s_nop 1")
    e(f"v_cndmask_b32 v{T+4}, 0, v{T+4}, vcc"); e(f"v_mov_b32 v{T+6}, v{T+4}")
    e(f"v_lshlrev_b32 v{T+1}, 4, v0"); e(f"v_add_u32 v{T+1}, {CB}, v{T+1}")
    e("s_cmp_ge_u32 s20, 9"); e("s_cbranch_scc1 K2_NOC")
    e(f"ds_write_b128 v{T+1}, {vr(T+4,4)}")
    e.lab("K2_NOC")
    e("v_add_u32 v3, s33, v3")
    e(f"v_bfe_u32 v{T}, v2, 2, 2"); e(f"v_and_b32 v{T+1}, 3, v2"); e(f"v_bfe_u32 v{T+2}, v2, 4, 1")
    e(f"v_lshl_add_u32 v{T+3}, v6, 2, v{T}")
    e(f"v_lshlrev_b32 v{T+3}, 5, v{T+3}"); e(f"v_lshl_add_u32 v{T+3}, v{T+1}, 3, v{T+3}")
    e(f"v_add_u32 v{T+3}, {VB}, v{T+3}"); e(f"v_add_u32 v{T+3}, s33, v{T+3}")
    e(f"v_lshlrev_b32 v{T+4}, 5, v{T}"); e(f"v_lshl_add_u32 v{T+4}, v{T+1}, 3, v{T+4}"); e(f"v_add_u32 v{T+4}, {CB}, v{T+4}")
    e(f"v_cmp_eq_u32 vcc, 0, v{T+2}"); e(f"v_mov_b32 v{T+5}, 0x2000"); e("s_nop 1")
    e(f"v_cndmask_b32 v5, v{T+4}, v{T+3}, vcc")
    e(f"v_cndmask_b32 v1, 0, v{T+5}, vcc")
    for r in range(16): e(f"v_mov_b32 v{O+r}, 0")
    for r in range(8): e(f"v_mov_b32 v{P2[1]+r}, 0"); e(f"v_mov_b32 v{VF[1]+r}, 0")
    e("s_waitcnt vmcnt(2) lgkmcnt(0)"); e("s_barrier"); stamp(e, 1)
    e(f"ds_read_b128 {vr(KB[0],4)}, v3")
    e("s_waitcnt lgkmcnt(0)")
    e(f"v_mfma_f32_32x32x16_bf16 {vr(S[0],16)}, {vr(KB[0],4)}, {vr(Q,4)}, 0")
    e(f"ds_read_b128 {vr(KB[1],4)}, v3 offset:1024")
    for j in range(2):
        for u in range(2):
            e(f"ds_read_b64_tr_b16 {vr(VF[0]+4*j+2*u,2)}, v5 offset:{j*512+u*256}")
    dma(2); dma(3)
    s0 = S[0]
    e(f"v_max3_f32 v{T}, v{s0}, v{s0+1}, v{s0+2}")
    for r in range(3, 15, 2): e(f"v_max3_f32 v{T}, v{T}, v{s0+r}, v{s0+r+1}")
    e(f"v_max_f32 v{T}, v{T}, v{s0+15}")
    e(f"v_mov_b32 v{T+1}, v{T}"); e("s_nop 1")
    e(f"v_permlane32_swap_b32 v{T}, v{T+1}"); e("s_nop 1")
    e(f"v_max_f32 v{T}, v{T}, v{T+1}")
    e(f"v_sub_f32 v{T}, 0, v{T}")
    for r in range(16): e(f"v_mov_b32 v{NM+r}, v{T}")
    e("s_nop 1")
    e(f"v_mfma_f32_32x32x16_bf16 {vr(S[0],16)}, {vr(KB[0],4)}, {vr(Q,4)}, {vr(NM,16)}")
    stamp(e, 2)
    e("s_mov_b32 s30, 0"); e.nop(10)
    e.lab("K2_LOOP")
    for i in range(8):
        cur = i & 1; nx = cur ^ 1; sc = S[cur]; Pc = P2[cur]; Pp = P2[nx]
        if i == 5:
            e("s_cmp_gt_u32 s30, 2"); e("s_cbranch_scc1 K2_NW")
            e("s_cmp_eq_u32 s30, 0"); e("s_cbranch_scc0 K2_W1")
            e("s_waitcnt vmcnt(4)"); e("s_branch K2_WB")
            e.lab("K2_W1"); e("s_cmp_eq_u32 s30, 1"); e("s_cbranch_scc0 K2_W2")
            e("s_waitcnt vmcnt(2)"); e("s_branch K2_WB")
            e.lab("K2_W2"); e("s_waitcnt vmcnt(0)")
            e("s_load_dwordx2 s[40:41], s[0:1], 16"); e("s_load_dwordx4 s[44:47], s[0:1], 40"); e("s_load_dwordx2 s[48:49], s[0:1], 56")
            e("s_lshl_b32 s42, s2, 4"); e("s_add_u32 s42, s42, s20")
            e("s_waitcnt lgkmcnt(0)")
            e("s_cmp_lt_u32 s42, 1792"); e("s_cselect_b32 s52, s44, s46"); e("s_cselect_b32 s53, s45, s47"); e("s_cselect_b32 s43, 0, 1792")
            e("s_cmp_lt_u32 s42, 3584"); e("s_cselect_b32 s52, s52, s48"); e("s_cselect_b32 s53, s53, s49"); e("s_cselect_b32 s43, s43, 3584")
            e("s_mov_b32 s54, 1835008"); e("s_mov_b32 s55, 0x00020000")
            e("s_sub_u32 s43, s42, s43"); e("s_lshl_b32 s43, s43, 10")
            e("buffer_load_dwordx4 v[12:15], v4, s[52:55], s43 offen")
            e("s_add_u32 s43, s42, 512"); e("s_sub_u32 s50, s42, 1280"); e("s_mov_b32 s51, 524288")
            e("s_cmp_lt_u32 s42, 1280"); e("s_cselect_b32 s56, s48, s40"); e("s_cselect_b32 s57, s49, s41"); e("s_cselect_b32 s58, s54, s51")
            e("s_cselect_b32 s43, s43, s50"); e("s_mov_b32 s59, 0x00020000"); e("s_lshl_b32 s43, s43, 10")
            e("buffer_load_dwordx4 v[12:15], v4, s[56:59], s43 offen")
            e.lab("K2_WB"); e("s_barrier")
            e.lab("K2_NW")
        ex = lambda r: e(f"v_exp_f32 v{sc+r}, v{sc+r}")
        cv = lambda p: e(f"v_cvt_pk_bf16_f32 v{Pc+p}, v{sc+2*p}, v{sc+2*p+1}")
        e("s_waitcnt lgkmcnt(4)")
        e(f"v_mfma_f32_32x32x16_bf16 {vr(S[nx],16)}, {vr(KB[nx],4)}, {vr(Q,4)}, {vr(NM,16)}")
        e(f"ds_read_b128 {vr(KB[cur],4)}, v3 offset:{(i+2)*1024}")
        ex(0); ex(1); ex(2); cv(0); ex(3); ex(4); cv(1)
        e(f"v_mfma_f32_32x32x16_bf16 {vr(O,16)}, {vr(VF[nx],4)}, {vr(Pp,4)}, {vr(O,16)}")
        ex(5); ex(6); cv(2); ex(7); ex(8); cv(3); ex(9); ex(10); cv(4)
        e(f"v_mfma_f32_32x32x16_bf16 {vr(O,16)}, {vr(VF[nx]+4,4)}, {vr(Pp+4,4)}, {vr(O,16)}")
        for j in range(2):
            for u in range(2):
                e(f"ds_read_b64_tr_b16 {vr(VF[nx]+4*j+2*u,2)}, v5 offset:{(i+1)*1024 + j*512+u*256}")
        ex(11); ex(12); cv(5); ex(13); ex(14); cv(6); ex(15); e("s_nop 0"); cv(7)
    e("v_add_u32 v3, 0x2000, v3"); e("v_add_u32 v5, v5, v1")
    e("s_add_u32 s30, s30, 1"); e("s_cmp_lt_u32 s30, 4"); e("s_cbranch_scc1 K2_LOOP")
    e("s_waitcnt lgkmcnt(0)")
    e(f"v_mfma_f32_32x32x16_bf16 {vr(O,16)}, {vr(VF[1],4)}, {vr(P2[1],4)}, {vr(O,16)}")
    e(f"v_mfma_f32_32x32x16_bf16 {vr(O,16)}, {vr(VF[1]+4,4)}, {vr(P2[1]+4,4)}, {vr(O,16)}")
    e.nop(16)
    stamp(e, 3)
    e(f"v_mov_b32 v{T}, 0x5d800000")
    e(f"v_cmp_nlt_f32 vcc, v{O+8}, v{T}"); e("s_nop 4")
    e("s_cbranch_vccnz K2_SLOW")
    e.lab("K2_OUT")
    e("s_mul_i32 s34, s31, 2560"); e(f"s_add_u32 s34, s34, {XB}")
    e(f"v_lshl_add_u32 v{T+1}, v2, 2, s34")
    e("s_cmp_eq_u32 s32, 0"); e("s_cbranch_scc1 K2_LOW")
    for r in range(9): e(f"ds_write_b32 v{T+1}, v{O+r} offset:{256*r}")
    e(f"ds_write_b32 v{T+1}, v{NM} offset:{256*9}")
    e("s_waitcnt lgkmcnt(0)"); e("s_barrier")
    if DIAG: stamp_out(e, 4, 2, 8, "s20")
    e("s_endpgm")
    e.lab("K2_LOW")
    e("s_barrier")
    for r in range(10): e(f"ds_read_b32 v{S[0]+r}, v{T+1} offset:{256*r}")
    e("s_waitcnt lgkmcnt(0)")
    e(f"v_min_f32 v{T}, v{NM}, v{S[0]+9}")
    e(f"v_sub_f32 v{T+2}, v{T}, v{NM}"); e(f"v_sub_f32 v{T+3}, v{T}, v{S[0]+9}")
    e(f"v_exp_f32 v{T+2}, v{T+2}"); e(f"v_exp_f32 v{T+3}, v{T+3}"); e("s_nop 0")
    for r in range(9):
        e(f"v_mul_f32 v{O+r}, v{O+r}, v{T+2}"); e(f"v_fmac_f32 v{O+r}, v{S[0]+r}, v{T+3}")
    e(f"v_rcp_f32 v{T}, v{O+8}"); e("s_nop 0")
    for r in range(8): e(f"v_mul_f32 v{O+r}, v{O+r}, v{T}")
    for r in range(4): e(f"v_cvt_pk_bf16_f32 v{P2[0]+r}, v{O+2*r}, v{O+2*r+1}")
    e("s_lshl_b32 s24, s22, 8"); e("s_lshl_b32 s25, s31, 5"); e("s_add_u32 s24, s24, s25")
    e(f"v_add_u32 v{T+1}, s24, v7"); e(f"v_lshlrev_b32 v{T+1}, 10, v{T+1}"); e(f"v_lshl_add_u32 v{T+1}, v6, 4, v{T+1}")
    e("s_lshl_b32 s25, s21, 5"); e(f"s_add_u32 s25, s25, {WS_O:#x}")
    e(f"buffer_store_dwordx4 {vr(P2[0],4)}, v{T+1}, s[8:11], s25 offen")
    if DIAG: stamp_out(e, 4, 2, 8, "s20")
    e("s_endpgm")
    e.lab("K2_SLOW")
    P = P2[0]
    e("v_subrev_u32 v3, 0x8000, v3")
    e(f"v_lshlrev_b32 v{T+5}, 2, v1"); e(f"v_sub_u32 v5, v5, v{T+5}")
    e(f"v_lshrrev_b32 v1, 3, v1")
    e(f"v_sub_f32 v{NM}, 0, v{NM}")
    for r in range(16): e(f"v_mov_b32 v{O+r}, 0")
    e("s_mov_b32 s30, 0")
    e.lab("K2_SL")
    e(f"ds_read_b128 {vr(KB[0],4)}, v3")
    for j in range(2):
        for u in range(2):
            e(f"ds_read_b64_tr_b16 {vr(VF[0]+4*j+2*u,2)}, v5 offset:{j*512+u*256}")
    e("s_waitcnt lgkmcnt(0)")
    e(f"v_mfma_f32_32x32x16_bf16 {vr(S[0],16)}, {vr(KB[0],4)}, {vr(Q,4)}, 0")
    e.nop(16)
    e(f"v_max3_f32 v{T}, v{s0}, v{s0+1}, v{s0+2}")
    for r in range(3, 15, 2): e(f"v_max3_f32 v{T}, v{T}, v{s0+r}, v{s0+r+1}")
    e(f"v_max3_f32 v{T}, v{T}, v{s0+15}, v{NM}")
    e(f"v_mov_b32 v{T+1}, v{T}"); e("s_nop 1")
    e(f"v_permlane32_swap_b32 v{T}, v{T+1}"); e("s_nop 1")
    e(f"v_max_f32 v{T}, v{T}, v{T+1}")
    e(f"v_sub_f32 v{T+1}, v{NM}, v{T}"); e(f"v_exp_f32 v{T+1}, v{T+1}"); e(f"v_mov_b32 v{NM}, v{T}")
    for r in range(16): e(f"v_mul_f32 v{O+r}, v{O+r}, v{T+1}")
    for r in range(16): e(f"v_sub_f32 v{s0+r}, v{s0+r}, v{T}")
    for r in range(16): e(f"v_exp_f32 v{s0+r}, v{s0+r}")
    e("s_nop 0")
    for p in range(8): e(f"v_cvt_pk_bf16_f32 v{P+p}, v{s0+2*p}, v{s0+2*p+1}")
    e("s_nop 1")
    e(f"v_mfma_f32_32x32x16_bf16 {vr(O,16)}, {vr(VF[0],4)}, {vr(P,4)}, {vr(O,16)}")
    e(f"v_mfma_f32_32x32x16_bf16 {vr(O,16)}, {vr(VF[0]+4,4)}, {vr(P+4,4)}, {vr(O,16)}")
    e("v_add_u32 v3, 0x400, v3"); e("v_add_u32 v5, v5, v1")
    e.nop(16)
    e("s_add_u32 s30, s30, 1"); e("s_cmp_lt_u32 s30, 32"); e("s_cbranch_scc1 K2_SL")
    e(f"v_sub_f32 v{NM}, 0, v{NM}")
    e("s_branch K2_OUT")
    e.lab("K2_END"); e("s_endpgm")
    return e.txt(), descr(name, 128, 64), f"; @launch kernel={name} grid=(256,1,1) block=(1024,1,1) lds=160768"

def k3():
    e = E(); name = "k3_kernel"; header(e, name)
    OB = 65536; AP = 1040
    e("s_cmp_ge_u32 s2, 256"); e("s_cbranch_scc1 K3_END")
    e("s_load_dwordx2 s[4:5], s[0:1], 0"); e("s_load_dwordx2 s[6:7], s[0:1], 16"); e("s_load_dwordx2 s[8:9], s[0:1], 80"); e("s_load_dwordx2 s[10:11], s[0:1], 32")
    e("v_lshrrev_b32 v1, 6, v0"); e("v_and_b32 v2, 63, v0"); e("s_nop 0")
    e("v_readfirstlane_b32 s20, v1")
    e("s_and_b32 s21, s2, 7"); e("s_lshl_b32 s21, s21, 2"); e("s_bfe_u32 s22, s2, 0x20003"); e("s_add_u32 s21, s21, s22"); e("s_lshr_b32 s22, s2, 5")
    e("s_and_b32 s39, s20, 1"); e("s_lshr_b32 s40, s20, 1")
    e("s_waitcnt lgkmcnt(0)")
    srd(e, 12, 4, 5, 2097152); srd(e, 16, 6, 7, 524288); srd(e, 24, 8, 9, 0x1000000); srd(e, 44, 10, 11, 1024); stamp(e, 0); tl_start(e, 3, 24, 90)
    e("v_lshrrev_b32 v4, 3, v2"); e("v_lshlrev_b32 v4, 10, v4")
    e("v_bfe_u32 v5, v2, 2, 1"); e("v_bfe_u32 v6, v2, 4, 1"); e("v_xor_b32 v5, v5, v6")
    e("v_lshl_add_u32 v4, v5, 6, v4"); e("v_and_b32 v5, 3, v2"); e("v_lshl_add_u32 v4, v5, 4, v4")
    e("s_lshl_b32 s31, s22, 7"); e("v_add_u32 v4, s31, v4")
    e("v_lshlrev_b32 v3, 4, v2")
    e("s_lshl_b32 s32, s20, 17")
    e("s_lshl_b32 s33, s20, 14")
    e("s_lshl_b32 s35, s21, 16"); e("s_lshl_b32 s36, s20, 14"); e("s_add_u32 s35, s35, s36"); e(f"s_add_u32 s35, s35, {WS_O:#x}")
    e(f"s_mul_i32 s36, s20, {16*AP}"); e(f"s_add_u32 s36, s36, {OB}")
    for i in range(16):
        e(f"s_add_u32 s34, s35, {i*1024}"); e(f"s_add_u32 m0, s36, {i*AP}"); e("s_nop 0")
        e("buffer_load_dwordx4 v3, s[24:27], s34 offen lds")
        e(f"s_add_u32 s34, s32, {i*8192}"); e(f"s_add_u32 m0, s33, {i*1024}"); e("s_nop 0")
        e("buffer_load_dwordx4 v4, s[16:19], s34 offen lds")
    e("v_and_b32 v19, 31, v2"); e("v_lshrrev_b32 v20, 5, v2")
    e("s_lshl_b32 s31, s21, 6"); e("s_lshl_b32 s35, s39, 5"); e("s_add_u32 s31, s31, s35")
    e("v_add_u32 v21, s31, v19")
    e("v_lshlrev_b32 v22, 10, v21")
    e("s_lshl_b32 s37, s22, 7"); e("s_lshl_b32 s38, s40, 6"); e("s_add_u32 s37, s37, s38")
    e("v_lshlrev_b32 v23, 3, v20"); e("v_add_u32 v23, s37, v23")
    e("v_add_u32 v24, v22, v23")
    for g in range(4):
        e(f"buffer_load_dwordx2 {vr(32+2*g,2)}, v24, s[12:15], 0 offen offset:{16*g}")
    for g in range(4):
        e(f"buffer_load_dwordx2 {vr(40+2*g,2)}, v23, s[44:47], 0 offen offset:{16*g}")
    e("v_add_u32 v26, s35, v19"); e(f"v_mul_u32_u24 v26, {AP}, v26"); e("v_lshl_add_u32 v26, v20, 4, v26"); e(f"v_add_u32 v26, {OB}, v26")
    e("v_bfe_u32 v5, v2, 2, 2"); e("v_and_b32 v6, 3, v2"); e("v_bfe_u32 v7, v2, 4, 1")
    e("v_lshl_add_u32 v25, v20, 3, v5"); e("v_lshlrev_b32 v25, 7, v25")
    e("v_lshl_add_u32 v25, v7, 5, v25"); e("v_lshl_add_u32 v25, v6, 3, v25")
    e("v_lshrrev_b32 v5, 1, v5"); e("v_xor_b32 v5, s40, v5"); e("v_lshl_add_u32 v25, v5, 6, v25")
    for r in range(16): e(f"v_mov_b32 v{48+r}, 0")
    e("s_waitcnt vmcnt(8)"); e("s_barrier"); stamp(e, 1)
    NB = 4
    WF = [64 + 8*i for i in range(NB)]; XF = [68 + 8*i for i in range(NB)]
    def rd(s):
        sel = s % NB
        e(f"ds_read_b128 {vr(XF[sel],4)}, v26 offset:{32*s}")
        for u in range(2):
            e(f"ds_read_b64_tr_b16 {vr(WF[sel]+2*u,2)}, v25 offset:{(16*s+4*u)*128}")
    for s in range(NB-1): rd(s)
    for s in range(32):
        sel = s % NB
        if s + NB - 1 < 32: rd(s + NB - 1)
        rem = min(31 - s, NB - 1)
        e(f"s_waitcnt lgkmcnt({3*rem})")
        e(f"v_mfma_f32_32x32x16_bf16 {vr(48,16)}, {vr(WF[sel],4)}, {vr(XF[sel],4)}, {vr(48,16)}")
    stamp(e, 2)
    e("s_mov_b32 s41, 0x3f803f80"); e("v_mov_b32 v8, s41")
    e("v_mov_b32 v9, 0"); e("v_mov_b32 v10, 0"); e("v_mov_b32 v11, 0")
    e("s_waitcnt vmcnt(0)")
    e.nop(12)
    for p in range(8):
        a = 48 + 2*p; x = 32 + p
        e(f"v_cvt_pk_bf16_f32 v12, v{a}, v{a+1}")
        e("v_lshlrev_b32 v13, 16, v12"); e("v_and_b32 v14, 0xffff0000, v12")
        e(f"v_lshlrev_b32 v15, 16, v{x}"); e(f"v_and_b32 v16, 0xffff0000, v{x}")
        e("v_add_f32 v13, v13, v15"); e("v_add_f32 v14, v14, v16")
        e(f"v_cvt_pk_bf16_f32 v{x}, v13, v14")
        e(f"v_dot2_f32_bf16 v9, v{x}, v8, v9")
        e(f"v_dot2_f32_bf16 v10, v{x}, v{x}, v10")
        e(f"v_dot2_f32_bf16 v11, v{x}, v{40+p}, v11")
    e(f"s_mov_b32 s36, {WS_H:#x}")
    for g in range(4):
        e(f"buffer_store_dwordx2 {vr(32+2*g,2)}, v24, s[24:27], s36 offen offset:{16*g}")
    e("s_nop 2")
    for q in range(3): e(f"v_mov_b32 v{12+q}, v{9+q}")
    e("s_nop 1")
    for q in range(3): e(f"v_permlane32_swap_b32 v{9+q}, v{12+q}")
    e("s_nop 1")
    for q in range(3): e(f"v_add_f32 v{9+q}, v{9+q}, v{12+q}")
    e("v_lshlrev_b32 v15, 2, v21")
    e("s_mov_b64 exec, 0xffffffff")
    for q in range(3):
        e(f"s_mov_b32 s36, {WS_ST + 8192*q:#x}")
        e(f"buffer_atomic_add_f32 v{9+q}, v15, s[24:27], s36 offen")
    if DIAG:
        e("s_waitcnt vmcnt(0)"); stamp(e, 3); stamp_out(e, 4, 3, 24)
    e.lab("K3_END"); e("s_endpgm")
    return e.txt(), descr(name, 96, 64), f"; @launch kernel={name} grid=(256,1,1) block=(256,1,1) lds=132096"

def ln2_elem(e, x, mb, rinv, t):
    e(f"v_lshlrev_b32 v{t}, 16, v{x}"); e(f"v_and_b32 v{t+1}, 0xffff0000, v{x}")
    e(f"v_sub_f32 v{t+2}, v{t}, v{mb}"); e(f"v_sub_f32 v{t+3}, v{t+1}, v{mb}")
    e(f"v_cvt_pk_bf16_f32 v{t+2}, v{t+2}, v{t+3}")
    e(f"v_and_b32 v{t+3}, 0xffff0000, v{t+2}"); e(f"v_lshlrev_b32 v{t+2}, 16, v{t+2}")
    e(f"v_mul_f32 v{t+2}, v{t+2}, v{rinv}"); e(f"v_mul_f32 v{t+3}, v{t+3}, v{rinv}")
    e(f"v_cvt_pk_bf16_f32 v{t+2}, v{t+2}, v{t+3}")

WS_Y = 0xA10000
def k4():
    e = E(); name = "k4_kernel"; header(e, name)
    NF = 56; NE = 32
    L_XS = 1024; L_H = 5120; L_G = 8192; L_S2 = 40960; L_ACT = 45056; L_D = 49152; L_FLAG = 8064
    e(f"s_cmp_ge_u32 s2, {NF+NE}"); e("s_cbranch_scc1 K4_END")
    e("s_load_dwordx2 s[4:5], s[0:1], 80"); e("s_load_dwordx4 s[8:11], s[0:1], 64")
    e("s_load_dwordx8 s[44:51], s[0:1], 32")
    e("v_lshrrev_b32 v1, 6, v0"); e("v_and_b32 v2, 63, v0"); e("s_nop 0")
    e("v_readfirstlane_b32 s20, v1")
    e("s_waitcnt lgkmcnt(0)")
    srd(e, 12, 4, 5, 0x1000000); srd(e, 16, 8, 9, 2097152); srd(e, 24, 44, 45, 1024)
    srd(e, 28, 46, 47, 1835008); srd(e, 32, 48, 49, 1835008); srd(e, 36, 50, 51, 1835008); srd(e, 40, 10, 11, 256)
    stamp(e, 0); tl_start(e, 4, 12, 108)
    e("v_lshlrev_b32 v7, 2, v0"); e("v_mov_b32 v3, 0"); e("v_mov_b32 v6, 0"); e("v_mov_b32 v11, 0")
    e(f"s_mov_b32 s52, {WS_ST:#x}"); e(f"s_mov_b32 s53, {WS_ST + 8192:#x}"); e(f"s_mov_b32 s54, {WS_H:#x}"); e(f"s_mov_b32 s67, {WS_ST + 16384:#x}")
    e("v_add_u32 v8, 4096, v7")
    for q, sq in enumerate(("s52", "s53", "s67")):
        e(f"buffer_load_dword v{64+q}, v7, s[12:15], {sq} offen")
        e(f"buffer_load_dword v{68+q}, v8, s[12:15], {sq} offen")
    e(f"s_mov_b32 s55, {WS_ST + 0x8000:#x}")
    e("s_load_dword s66, s[4:5], s55")
    e(f"s_cmp_lt_u32 s2, {NF}"); e("s_cbranch_scc1 K4_LF")
    e(f"s_sub_u32 s21, s2, {NF}"); e("s_lshl_b32 s21, s21, 6"); e("s_lshl_b32 s22, s20, 2"); e("s_add_u32 s21, s21, s22")
    e("v_lshrrev_b32 v4, 4, v2"); e("v_and_b32 v5, 15, v2")
    e("v_add_u32 v6, s21, v4")
    e("v_lshlrev_b32 v3, 10, v6"); e("v_lshl_add_u32 v3, v5, 4, v3")
    e("v_lshlrev_b32 v9, 2, v6")
    e("buffer_load_dword v72, v9, s[12:15], s52 offen"); e("buffer_load_dword v73, v9, s[12:15], s53 offen")
    for i in range(4):
        e(f"buffer_load_dwordx4 {vr(80+4*i,4)}, v3, s[12:15], s54 offen offset:{256*i}")
    e("s_waitcnt vmcnt(6) lgkmcnt(0)"); e("s_branch K4_TOP")
    e.lab("K4_LF")
    e("s_waitcnt vmcnt(0) lgkmcnt(0)")
    e.lab("K4_TOP"); stamp(e, 1)
    e("s_mov_b32 s56, 0xfffff800")
    for i in range(2):
        b = 64 + 4*i; t = 18 + 8*i
        e(f"v_mul_f32 v{t}, 0x3b000000, v{b}")
        e(f"v_mul_f32 v{t+1}, 0x3b000000, v{b+1}")
        e(f"v_fma_f32 v{t+1}, -v{t}, v{t}, v{t+1}")
        e(f"v_max_f32 v{t+1}, 0, v{t+1}")
        e(f"v_add_f32 v{t+1}, 0x3727c5ac, v{t+1}")
        e(f"v_rsq_f32 v{t+1}, v{t+1}")
        e(f"v_fma_f32 v{t+4}, -v{t}, s66, v{b+2}")
        e(f"v_sub_u32 v{t+5}, {2047 - 1024*i}, v0")
        e(f"v_mul_f32 v{t+4}, v{t+4}, v{t+1}")
        e(f"v_ashrrev_i32 v{t+2}, 31, v{t+4}")
        e(f"v_or_b32 v{t+2}, 0x80000000, v{t+2}")
        e(f"v_xor_b32 v{t+4}, v{t+4}, v{t+2}")
        e(f"v_and_or_b32 v{t+4}, v{t+4}, s56, v{t+5}")
    e("v_max_u32 v16, v22, v30"); e("v_min_u32 v17, v22, v30")
    def red16():
        for ror in (8, 4, 2, 1):
            e("s_nop 1")
            e(f"v_mov_b32_dpp v18, v16 row_ror:{ror} row_mask:0xf bank_mask:0xf")
            e(f"v_mov_b32_dpp v19, v17 row_ror:{ror} row_mask:0xf bank_mask:0xf")
            e("v_min_u32 v20, v16, v18"); e("v_max_u32 v16, v16, v18"); e("v_max3_u32 v17, v17, v19, v20")
    red16()
    e("v_lshrrev_b32 v18, 4, v0"); e("v_lshlrev_b32 v18, 3, v18")
    e("ds_write_b64 v18, v[16:17]")
    e("s_waitcnt lgkmcnt(0)"); e("s_barrier")
    e("v_lshlrev_b32 v18, 3, v2")
    e("ds_read_b64 v[16:17], v18")
    e("s_waitcnt lgkmcnt(0)")
    red16()
    e("s_nop 0")
    for q in range(4):
        e(f"v_readlane_b32 s{56+2*q}, v16, {16*q}"); e(f"v_readlane_b32 s{57+2*q}, v17, {16*q}")
    def smerge(d, a, b):
        e(f"s_min_u32 s64, s{a}, s{b}"); e(f"s_max_u32 s65, s{a+1}, s{b+1}"); e(f"s_max_u32 s{d}, s{a}, s{b}"); e(f"s_max_u32 s{d+1}, s64, s65")
    smerge(56, 56, 58); smerge(60, 60, 62); smerge(56, 56, 60)
    e("s_and_b32 s56, s56, 0x7ff"); e("s_and_b32 s57, s57, 0x7ff")
    e("s_sub_u32 s56, 2047, s56"); e("s_sub_u32 s57, 2047, s57")
    stamp(e, 2)
    e(f"s_cmp_lt_u32 s2, {NF}"); e("s_cbranch_scc1 K4_FFN")
    e("s_waitcnt vmcnt(0)")
    ln_scalars(e, 72, 73, 12, (14, 15), "0x3b000000")
    e("v_rcp_f32 v15, v15"); e("s_nop 0")
    for j in range(16):
        x = 80 + j
        ln2_elem(e, x, 14, 15, 32)
        e("v_and_b32 v35, 0xffff0000, v34"); e("v_lshlrev_b32 v34, 16, v34")
        e("v_add_f32 v34, v32, v34"); e("v_add_f32 v35, v33, v35")
        e(f"v_cvt_pk_bf16_f32 v{x}, v34, v35")
    e("v_cmp_ne_u32 vcc, s56, v6"); e("v_cmp_ne_u32 s[60:61], s57, v6"); e("s_nop 1")
    e("s_and_b64 s[60:61], s[60:61], vcc"); e("s_and_b64 exec, exec, s[60:61]")
    e("s_cbranch_execz K4_END")
    for i in range(4):
        e(f"buffer_store_dwordx4 {vr(80+4*i,4)}, v3, s[16:19], 0 offen offset:{256*i}")
    e("s_endpgm")
    e.lab("K4_FFN")
    e("s_cmp_ge_u32 s20, 8"); e("s_cbranch_scc1 K4_NOXL")
    e("s_cmp_lt_u32 s20, 4"); e("s_cselect_b32 s58, s56, s57")
    e("s_lshl_b32 s59, s58, 2"); e("s_add_u32 s61, s59, s53"); e("s_add_u32 s59, s59, s52")
    e("s_lshl_b32 s60, s58, 10"); e("s_add_u32 s60, s60, s54")
    e("v_and_b32 v19, 255, v0"); e("v_lshlrev_b32 v20, 2, v19"); e("v_mov_b32 v21, 0")
    e("buffer_load_dword v24, v21, s[12:15], s59 offen"); e("buffer_load_dword v25, v21, s[12:15], s61 offen")
    e("buffer_load_dword v28, v20, s[12:15], s60 offen")
    e("buffer_load_dword v30, v20, s[24:27], 0 offen")
    e("v_lshrrev_b32 v41, 8, v0")
    e.lab("K4_NOXL")
    e("s_barrier")
    e("v_lshrrev_b32 v4, 4, v0"); e("v_and_b32 v5, 15, v0")
    e("v_mul_u32_u24 v3, 3584, v4"); e("v_lshl_add_u32 v3, v5, 2, v3")
    e("s_lshl_b32 s21, s2, 6"); e("v_add_u32 v3, s21, v3")
    for i in range(8):
        e(f"s_mov_b32 s55, {i*64*3584}")
        e(f"buffer_load_dword v{80+i}, v3, s[28:31], s55 offen")
        e(f"buffer_load_dword v{88+i}, v3, s[32:35], s55 offen")
    e("v_lshrrev_b32 v6, 8, v0"); e("v_and_b32 v9, 255, v0")
    e("v_lshlrev_b32 v11, 13, v6"); e("v_lshl_add_u32 v11, v9, 2, v11")
    e("s_lshl_b32 s21, s2, 15"); e("s_add_u32 s22, s21, 4096")
    for i in range(8):
        e(f"buffer_load_dword v{96+i}, v11, s[36:39], {'s21' if i < 4 else 's22'} offen offset:{(i&3)*1024}")
    e("s_cmp_ge_u32 s20, 8"); e("s_cbranch_scc1 K4_NOXS")
    e("s_waitcnt vmcnt(24)")
    ln_scalars(e, 24, 25, 32, (34, 35), "0x3b000000")
    e("v_rcp_f32 v35, v35"); e("s_nop 0")
    ln2_elem(e, 28, 34, 35, 36)
    e("v_mov_b32 v40, 0"); e("v_dot2_f32_bf16 v40, v38, v30, v40")
    e("v_lshlrev_b32 v42, 2, v41"); e("v_lshl_add_u32 v42, v19, 4, v42")
    e("v_lshlrev_b32 v43, 16, v38"); e("v_and_b32 v44, 0xffff0000, v38")
    e(f"ds_write_b32 v42, v43 offset:{L_XS}"); e(f"ds_write_b32 v42, v44 offset:{L_XS+8}")
    e("v_lshlrev_b32 v45, 2, v0")
    e(f"ds_write_b32 v45, v28 offset:{L_H}")
    for ror in (8, 4, 2, 1):
        e("s_nop 1"); e(f"v_add_f32_dpp v40, v40, v40 row_ror:{ror} row_mask:0xf bank_mask:0xf")
    e("v_lshrrev_b32 v45, 4, v0"); e("v_lshlrev_b32 v45, 2, v45")
    e("ds_write_b32 v45, v40 offset:512")
    e.lab("K4_NOXS")
    e("s_waitcnt lgkmcnt(0)"); e("s_barrier"); stamp(e, 3)
    for r in range(104, 112): e(f"v_mov_b32 v{r}, 0")
    e("v_lshlrev_b32 v41, 3, v4")
    for i in range(8):
        e(f"ds_read_b64 {vr(48+2*i,2)}, v41 offset:{L_XS + i*512}")
    for i in range(8):
        e(f"s_waitcnt vmcnt({22-2*i}) lgkmcnt({7-i})")
        for m in range(2):
            w = 80 + 8*m + i; t = 44 + 2*m
            e(f"v_lshlrev_b32 v{t}, 16, v{w}"); e(f"v_and_b32 v{t+1}, 0xffff0000, v{w}")
            for tk in range(2):
                a = 104 + m*4 + tk*2
                e(f"v_fmac_f32 v{a}, v{t}, v{48+2*i+tk}"); e(f"v_fmac_f32 v{a+1}, v{t+1}, v{48+2*i+tk}")
    e("v_lshlrev_b32 v41, 5, v0")
    e(f"ds_write_b128 v41, v[104:107] offset:{L_G}"); e(f"ds_write_b128 v41, v[108:111] offset:{L_G+16}")
    e("s_waitcnt lgkmcnt(0)"); e("s_barrier")
    e("v_and_b32 v41, 127, v0"); e("v_lshrrev_b32 v42, 7, v0")
    e("v_lshlrev_b32 v43, 12, v42"); e("v_lshl_add_u32 v43, v41, 2, v43")
    for g in range(8): e(f"ds_read_b32 v{48+g}, v43 offset:{L_G + 512*g}")
    e("s_waitcnt lgkmcnt(0)")
    for g in range(1, 8): e(f"v_add_f32 v48, v48, v{48+g}")
    e("v_lshlrev_b32 v43, 2, v0")
    e(f"ds_write_b32 v43, v48 offset:{L_S2}")
    e("s_waitcnt lgkmcnt(0)"); e("s_barrier")
    e("s_cmp_lg_u32 s20, 0"); e("s_cbranch_scc1 K4_NS3")
    e("v_lshrrev_b32 v41, 5, v2"); e("v_and_b32 v42, 31, v2"); e("v_lshrrev_b32 v43, 1, v42"); e("v_and_b32 v44, 1, v42")
    e("v_lshlrev_b32 v45, 5, v43"); e("v_lshl_add_u32 v45, v41, 3, v45"); e("v_lshl_add_u32 v45, v44, 2, v45")
    for g in range(8):
        e(f"ds_read_b32 v{48+g}, v45 offset:{L_S2 + 512*g}")
        e(f"ds_read_b32 v{56+g}, v45 offset:{L_S2 + 512*g + 16}")
    e("s_waitcnt lgkmcnt(0)")
    for g in range(1, 8):
        e(f"v_add_f32 v48, v48, v{48+g}"); e(f"v_add_f32 v56, v56, v{56+g}")
    rnd_bf16(e, 48, 48); rnd_bf16(e, 56, 56)
    e("v_mul_f32 v49, 0xbfb8aa3b, v48"); e("v_exp_f32 v49, v49"); e("s_nop 0")
    e("v_add_f32 v49, 1.0, v49"); e("v_rcp_f32 v49, v49"); e("s_nop 0")
    e("v_mul_f32 v49, v48, v49"); rnd_bf16(e, 49, 49)
    e("v_mul_f32 v49, v49, v56"); rnd_bf16(e, 49, 49)
    e("v_lshlrev_b32 v50, 3, v42"); e("v_lshl_add_u32 v50, v41, 2, v50")
    e(f"ds_write_b32 v50, v49 offset:{L_ACT}")
    e("s_waitcnt lgkmcnt(0)")
    e.lab("K4_NS3")
    e("s_barrier"); stamp(e, 4)
    e("v_lshlrev_b32 v41, 6, v6")
    for i in range(8): e(f"ds_read_b64 {vr(48+2*i,2)}, v41 offset:{L_ACT + 8*i}")
    for r in range(104, 108): e(f"v_mov_b32 v{r}, 0")
    for i in range(8):
        e(f"s_waitcnt vmcnt({7-i}) lgkmcnt({7-i})")
        w = 96 + i; t = 44 + 2*(i & 1)
        e(f"v_lshlrev_b32 v{t}, 16, v{w}"); e(f"v_and_b32 v{t+1}, 0xffff0000, v{w}")
        for tk in range(2):
            a = 104 + tk*2
            e(f"v_fmac_f32 v{a}, v{t}, v{48+2*i+tk}"); e(f"v_fmac_f32 v{a+1}, v{t+1}, v{48+2*i+tk}")
    e("v_lshlrev_b32 v41, 4, v0")
    e(f"ds_write_b128 v41, v[104:107] offset:{L_D}")
    e("s_waitcnt lgkmcnt(0)"); e("s_barrier")
    e("v_lshrrev_b32 v41, 9, v0"); e("v_and_b32 v42, 511, v0"); e("v_lshrrev_b32 v43, 1, v42"); e("v_and_b32 v44, 1, v42")
    e("v_lshlrev_b32 v45, 4, v43"); e("v_lshl_add_u32 v45, v41, 3, v45"); e("v_lshl_add_u32 v45, v44, 2, v45")
    for g in range(4): e(f"ds_read_b32 v{48+g}, v45 offset:{L_D + 4096*g}")
    e("s_waitcnt lgkmcnt(0)")
    e("v_add_f32 v48, v48, v49"); e("v_add_f32 v50, v50, v51"); e("v_add_f32 v48, v48, v50")
    e("v_lshlrev_b32 v46, 2, v0"); e(f"s_mov_b32 s58, {WS_Y:#x}")
    e("buffer_atomic_add_f32 v48, v46, s[12:15], s58 offen")
    e("s_waitcnt vmcnt(0)"); e("s_barrier"); stamp(e, 5)
    e("s_cmp_lg_u32 s20, 0"); e("s_cbranch_scc1 K4_NCNT")
    e("v_mov_b32 v48, 1"); e("v_mov_b32 v49, 0"); e(f"v_mov_b32 v50, {L_FLAG}")
    e("s_mov_b64 exec, 1")
    e("buffer_atomic_add v48, v49, s[40:43], 0 offen sc0")
    e("s_waitcnt vmcnt(0)")
    e("ds_write_b32 v50, v48")
    e("s_mov_b64 exec, -1")
    e("s_waitcnt lgkmcnt(0)")
    e.lab("K4_NCNT")
    e("s_barrier")
    e(f"v_mov_b32 v50, {L_FLAG}"); e("ds_read_b32 v48, v50"); e("s_waitcnt lgkmcnt(0)")
    e("v_readfirstlane_b32 s59, v48")
    if DIAG:
        stamp(e, 6); stamp_out(e, 7, 4, 12)
    e(f"s_cmp_lg_u32 s59, {NF-1}"); e("s_cbranch_scc1 K4_END")
    e("v_mov_b32 v48, 0")
    e("buffer_atomic_add_f32 v48, v46, s[12:15], s58 offen sc0")
    e("v_lshlrev_b32 v47, 6, v41")
    for q in range(4): e(f"ds_read_b128 {vr(52+4*q,4)}, v47 offset:{512 + 16*q}")
    e("v_lshlrev_b32 v47, 3, v42"); e("v_lshl_add_u32 v47, v41, 2, v47")
    e(f"ds_read_b32 v49, v47 offset:{L_XS}")
    e("v_lshlrev_b32 v47, 1, v0")
    e(f"ds_read_u16 v50, v47 offset:{L_H}")
    e("s_waitcnt lgkmcnt(0)")
    for q in range(1, 16): e(f"v_add_f32 v52, v52, v{52+q}")
    rnd_bf16(e, 52, 52)
    e("v_mul_f32 v52, 0xbfb8aa3b, v52"); e("v_exp_f32 v52, v52"); e("s_nop 0")
    e("v_add_f32 v52, 1.0, v52"); e("v_rcp_f32 v52, v52"); e("s_nop 0")
    rnd_bf16(e, 52, 52)
    e("v_lshlrev_b32 v50, 16, v50")
    e("s_cmp_lt_u32 s20, 8"); e("s_cselect_b32 s60, s56, s57"); e("s_lshl_b32 s60, s60, 10")
    e("v_lshlrev_b32 v51, 1, v42")
    e("s_waitcnt vmcnt(0)")
    rnd_bf16(e, 48, 48)
    e("v_mul_f32 v48, v48, v52"); rnd_bf16(e, 48, 48)
    e("v_add_f32 v48, v49, v48"); rnd_bf16(e, 48, 48)
    e("v_add_f32 v48, v50, v48"); e("v_cvt_pk_bf16_f32 v48, v48, v48")
    e("buffer_store_short v48, v51, s[16:19], s60 offen")
    if TL:
        e("s_cmp_lg_u32 s20, 0"); e("s_cbranch_scc1 K4_END")
        e("s_waitcnt vmcnt(0)")
        e("s_memrealtime s[60:61]"); e("s_waitcnt lgkmcnt(0)")
        e("v_lshlrev_b32 v50, 2, v2"); e(f"s_mov_b32 s62, {0xB00000:#x}")
        e("buffer_load_dword v51, v50, s[12:15], s62 offen sc1")
        e("s_waitcnt vmcnt(0)")
        e("v_mov_b32 v52, s60"); e("v_cmp_eq_u32 vcc, 5, v2"); e("s_nop 1"); e("v_cndmask_b32 v51, v51, v52, vcc")
        e("v_cmp_gt_u32 vcc, 6, v2"); e("v_cmp_lt_u32 s[60:61], 0, v2"); e("s_nop 1"); e("s_and_b64 exec, vcc, s[60:61]")
        e("buffer_store_dword v51, v50, s[40:43], 0 offen")
    e.lab("K4_END"); e("s_endpgm")
    return e.txt(), descr(name, 112, 96), f"; @launch kernel={name} grid=({NF+NE},1,1) block=(1024,1,1) lds=65536"

def main(out):
    ks = [k1(), k2(), k3(), k4()]
    s = "; generated 5-kernel pipeline: LN1+QKV | attention | out-proj+stats | LN2 out + top2 + gate/up | down + final rows\n"
    for k in ks: s += k[2] + "\n"
    s += '.amdgcn_target "amdgcn-amd-amdhsa--gfx950"\n.text\n'
    for k in ks: s += k[0]
    s += '.section .rodata,"a"\n'
    for k in ks: s += k[1]
    open(out, "w").write(s)

if __name__ == "__main__":
    if len(sys.argv) > 2 and sys.argv[2] == "diag": DIAG = True
    if len(sys.argv) > 2 and sys.argv[2] == "codepf": CODEPF = True
    if len(sys.argv) > 2 and "tl" in sys.argv[2:]: TL = True
    if len(sys.argv) > 2 and "wpf" in sys.argv[2:]: WPF = True
    for q in range(1536): assert (q * 2731) >> 16 == q // 24
    main(sys.argv[1] if len(sys.argv) > 1 else "sequential_preLN__softmax_full_mha__moe_arch_mod__prompt.s")
```

```python
import sys, math

WS_Q = 0x000000; WS_K = 0x200000; WS_V = 0x400000; WS_O = 0x600000; WS_H = 0x800000
WS_ST = 0xA00000; WS_ACT = 0xA10000; WS_SEL = 0xA20000
C_SCALE = 0.25 * math.log2(math.e)
import struct
def f32bits(x): return struct.unpack("<I", struct.pack("<f", x))[0]

class E:
    def __init__(self): self.l = []
    def __call__(self, s): self.l.append("    " + s)
    def lab(self, s): self.l.append(s + ":")
    def c(self, s): self.l.append("    ; " + s)
    def nop(self, n):
        while n > 0:
            k = min(n, 16); self(f"s_nop {k-1}"); n -= k
    def txt(self): return "\n".join(self.l) + "\n"

def vr(a, n): return f"v[{a}:{a+n-1}]"
def sr(a, n): return f"s[{a}:{a+n-1}]"

def srd(e, d, lo, hi, size):
    e(f"s_mov_b32 s{d}, s{lo}"); e(f"s_mov_b32 s{d+1}, s{hi}"); e(f"s_mov_b32 s{d+2}, {size:#x}"); e(f"s_mov_b32 s{d+3}, 0x00020000")

def header(e, name):
    e.l.append(f".globl {name}"); e.l.append(".p2align 8"); e.l.append(f".type {name},@function"); e.lab(name)

def descr(name, vg, sg=64):
    if DIAG: vg = max(vg, 128); sg = 102
    vg4 = (vg + 3) // 4 * 4
    return f""".p2align 6
.amdhsa_kernel {name}
  .amdhsa_next_free_vgpr {vg}
  .amdhsa_next_free_sgpr {sg}
  .amdhsa_accum_offset {vg4}
  .amdhsa_group_segment_fixed_size 0
  .amdhsa_kernarg_size 88
  .amdhsa_user_sgpr_count 2
  .amdhsa_user_sgpr_kernarg_segment_ptr 1
  .amdhsa_system_sgpr_workgroup_id_x 1
.end_amdhsa_kernel
"""

DIAG = False
CODEPF = False
TL = False
WPF = False
def tl_start(e, k, srdb, vt):
    if not TL: return
    e("s_cmp_lg_u32 s2, 0"); e(f"s_cbranch_scc1 TL{k}"); e("s_cmp_lg_u32 s20, 0"); e(f"s_cbranch_scc1 TL{k}")
    e("s_memrealtime s[60:61]"); e("s_waitcnt lgkmcnt(0)")
    e(f"v_mov_b32 v{vt}, s60"); e(f"v_mov_b32 v{vt+1}, 0"); e(f"s_mov_b32 s62, {0xB00000 + 4*k:#x}")
    e(f"buffer_store_dword v{vt}, v{vt+1}, s[{srdb}:{srdb+3}], s62 offen")
    e("s_waitcnt vmcnt(0)")
    e.lab(f"TL{k}")
WS_DIAG = 0xB00000
def stamp(e, idx):
    if not DIAG: return
    b = 70 + 4*idx
    e(f"s_memtime s[{b}:{b+1}]"); e(f"s_memrealtime s[{b+2}:{b+3}]"); e("s_waitcnt lgkmcnt(0)")
def stamp_out(e, n, kid, srdbase, wavesreg="s20"):
    if not DIAG: return
    e("s_mov_b64 exec, 1")
    e(f"s_lshl_b32 s68, s2, 4"); e(f"s_add_u32 s68, s68, {wavesreg}"); e("s_lshl_b32 s68, s68, 7"); e(f"s_add_u32 s68, s68, {WS_DIAG + kid*0x80000:#x}")
    e("v_mov_b32 v122, 0")
    for i in range(n):
        b = 70 + 4*i
        e(f"v_mov_b32 v124, s{b}"); e(f"v_mov_b32 v125, s{b+1}"); e(f"v_mov_b32 v126, s{b+2}"); e(f"v_mov_b32 v127, s{b+3}")
        e(f"buffer_store_dwordx4 v[124:127], v122, s[{srdbase}:{srdbase+3}], s68 offen offset:{16*i}")
        e("s_nop 1")
    e("s_mov_b64 exec, -1")

def rnd_bf16(e, d, s):
    e(f"v_cvt_pk_bf16_f32 v{d}, v{s}, v{s}")
    e(f"v_lshlrev_b32 v{d}, 16, v{d}")

def ln_scalars(e, sm, sq, t, outs, inv_n):
    mb, sb = outs
    e(f"v_mul_f32 v{t}, {inv_n}, v{sm}")
    e(f"v_mul_f32 v{t+1}, {inv_n}, v{sq}")
    e(f"v_fma_f32 v{t+1}, -v{t}, v{t}, v{t+1}")
    e(f"v_max_f32 v{t+1}, 0, v{t+1}")
    rnd_bf16(e, mb, t)
    rnd_bf16(e, t+1, t+1)
    e(f"v_add_f32 v{t+1}, 0x3727c5ac, v{t+1}")
    rnd_bf16(e, t+1, t+1)
    e(f"v_sqrt_f32 v{t+1}, v{t+1}")
    e("s_nop 0")
    rnd_bf16(e, sb, t+1)

def k1():
    e = E(); name = "k1_kernel"; header(e, name)
    A_BASE = 73728; AP = 1040
    e("s_cmp_ge_u32 s2, 256"); e("s_cbranch_scc1 K1_END")
    e("s_load_dwordx4 s[4:7], s[0:1], 0"); e("s_load_dwordx2 s[8:9], s[0:1], 80")
    e("v_lshrrev_b32 v1, 6, v0"); e("v_and_b32 v2, 63, v0"); e("s_nop 0")
    e("v_readfirstlane_b32 s20, v1")
    e("s_bfe_u32 s21, s2, 0x20001"); e("s_lshl_b32 s21, s21, 3"); e("s_bfe_u32 s22, s2, 0x30003"); e("s_add_u32 s21, s21, s22")
    e("s_and_b32 s22, s2, 1"); e("s_lshl_b32 s22, s22, 2"); e("s_lshr_b32 s23, s2, 6"); e("s_add_u32 s22, s22, s23")
    e("s_waitcnt lgkmcnt(0)")
    srd(e, 12, 4, 5, 2097152); srd(e, 16, 6, 7, 1572864); srd(e, 24, 8, 9, 0x1000000); stamp(e, 0); tl_start(e, 1, 24, 120)
    e("v_lshrrev_b32 v4, 3, v2"); e("v_and_b32 v5, 7, v2")
    e("s_cmp_ge_u32 s20, 8"); e("s_cbranch_scc1 K1_NOX")
    e("s_lshl_b32 s23, s21, 6"); e("s_lshl_b32 s31, s20, 3"); e("s_add_u32 s23, s23, s31")
    e("v_add_u32 v3, s23, v4"); e("v_lshlrev_b32 v3, 10, v3"); e("v_lshl_add_u32 v3, v5, 4, v3")
    for i in range(8):
        e(f"buffer_load_dwordx4 {vr(64+4*i,4)}, v3, s[12:15], 0 offen offset:{i*128}")
    e.lab("K1_NOX")
    e("s_lshl_b32 s31, s20, 7")
    e("s_movk_i32 s33, 2731")
    e("s_mul_i32 s34, s22, 384")
    for i in range(2):
        e(f"v_add_u32 v6, s31, v2")
        if i: e(f"v_add_u32 v6, {i*64}, v6")
        e("v_mul_lo_u32 v7, v6, s33"); e("v_lshrrev_b32 v7, 16, v7")
        e("v_mul_u32_u24 v8, 24, v7"); e("v_sub_u32 v8, v6, v8")
        e("v_lshrrev_b32 v9, 2, v8")
        e("v_bfe_u32 v16, v7, 1, 1"); e("v_xor_b32 v9, v9, v16")
        e("v_and_b32 v8, 3, v8")
        e("v_mul_u32_u24 v7, 3072, v7")
        e("v_lshl_add_u32 v7, v9, 6, v7"); e("v_lshl_add_u32 v7, v8, 4, v7")
        e(f"v_add_u32 v{10+i}, s34, v7")
    e("s_lshl_b32 s35, s20, 11")
    def dma_chunk(c):
        buf = c % 3
        e(f"s_mov_b32 s36, {c*196608}")
        for i in range(2):
            e(f"s_add_u32 m0, s35, {buf*24576 + i*1024}")
            e("s_nop 0")
            e(f"buffer_load_dwordx4 v{10+i}, s[16:19], s36 offen lds")
    for c in range(3): dma_chunk(c)
    e("s_cmp_ge_u32 s20, 8"); e("s_cbranch_scc1 K1_IDLE")
    e("s_mov_b32 s38, 0x3f803f80")
    e("v_mov_b32 v17, s38")
    for p in range(4): e(f"v_mov_b32 v{32+p}, 0")
    e("s_lshl_b32 s31, s20, 3")
    e("v_add_u32 v18, s31, v4"); e(f"v_mul_u32_u24 v18, {AP}, v18"); e("v_lshl_add_u32 v18, v5, 4, v18")
    e(f"v_add_u32 v18, {A_BASE}, v18")
    e("s_waitcnt vmcnt(6)"); stamp(e, 1)
    for j in range(32):
        r = 64 + j
        e(f"v_dot2_f32_bf16 v{32+(j&1)}, v{r}, v17, v{32+(j&1)}")
        e(f"v_dot2_f32_bf16 v{34+(j&1)}, v{r}, v{r}, v{34+(j&1)}")
    e("s_nop 2")
    e("v_add_f32 v32, v32, v33"); e("v_add_f32 v34, v34, v35"); e("s_nop 1")
    for m in ("quad_perm:[1,0,3,2]", "quad_perm:[2,3,0,1]", "row_half_mirror"):
        e(f"v_add_f32_dpp v32, v32, v32 {m} row_mask:0xf bank_mask:0xf")
        e(f"v_add_f32_dpp v34, v34, v34 {m} row_mask:0xf bank_mask:0xf")
        e("s_nop 0")
    ln_scalars(e, 32, 34, 48, (50, 51), "0x3b000000")
    e(f"v_rcp_f32 v40, v51"); e("s_nop 0")
    e(f"v_mul_f32 v44, v50, v40"); e(f"v_sub_f32 v44, 0, v44")
    for j in range(32):
        r = 64 + j; t = 52 + 2*(j & 1)
        e(f"v_lshlrev_b32 v{t}, 16, v{r}"); e(f"v_and_b32 v{t+1}, 0xffff0000, v{r}")
        e(f"v_fma_f32 v{t}, v{t}, v40, v44"); e(f"v_fma_f32 v{t+1}, v{t+1}, v40, v44")
        e(f"v_cvt_pk_bf16_f32 v{r}, v{t}, v{t+1}")
        if j % 4 == 3:
            e(f"ds_write_b128 v18, {vr(r-3,4)} offset:{(j//4)*128}")
    e("s_branch K1_NOLN")
    e.lab("K1_IDLE")
    e("s_cmp_lg_u32 s2, 9"); e("s_cbranch_scc1 K1_NOLN"); e("s_cmp_lg_u32 s20, 11"); e("s_cbranch_scc1 K1_NOLN")
    e("s_load_dwordx2 s[4:5], s[0:1], 32"); e("s_waitcnt lgkmcnt(0)")
    srd(e, 52, 4, 5, 1024)
    e("v_lshlrev_b32 v8, 4, v2")
    e("buffer_load_dwordx4 v[12:15], v8, s[52:55], 0 offen")
    e("s_mov_b32 s56, 0x3f803f80"); e("v_mov_b32 v18, s56"); e("v_mov_b32 v28, 0")
    e("s_waitcnt vmcnt(0)")
    for q in range(4): e(f"v_dot2_f32_bf16 v28, v{12+q}, v18, v28")
    e("s_nop 2")
    for ror in (8, 4, 2, 1):
        e(f"v_add_f32_dpp v28, v28, v28 row_ror:{ror} row_mask:0xf bank_mask:0xf"); e("s_nop 1")
    for q in range(4): e(f"v_readlane_b32 s{56+q}, v28, {16*q}")
    e("s_nop 1")
    e("v_mov_b32 v28, s56"); e("v_add_f32 v28, s57, v28"); e("v_add_f32 v28, s58, v28"); e("v_add_f32 v28, s59, v28")
    e("v_mov_b32 v8, 0"); e(f"s_mov_b32 s37, {WS_ST + 0x8000:#x}")
    e("buffer_store_dword v28, v8, s[24:27], s37 offen")
    e.lab("K1_NOLN")
    e("s_and_b32 s39, s20, 1"); e("s_lshr_b32 s40, s20, 1")
    e("v_and_b32 v19, 31, v2"); e("v_lshrrev_b32 v20, 5, v2")
    e("s_lshl_b32 s31, s39, 5")
    e("v_add_u32 v21, s31, v19"); e(f"v_mul_u32_u24 v21, {AP}, v21"); e("v_lshl_add_u32 v21, v20, 4, v21")
    e(f"v_add_u32 v21, {A_BASE}, v21")
    e("v_bfe_u32 v22, v2, 2, 2")
    e("v_and_b32 v23, 3, v2")
    e("v_bfe_u32 v24, v2, 4, 1")
    e("v_lshl_add_u32 v25, v20, 3, v22")
    e("v_mul_u32_u24 v25, 384, v25")
    e("v_lshl_add_u32 v25, v24, 5, v25"); e("v_lshl_add_u32 v25, v23, 3, v25")
    e("v_lshrrev_b32 v26, 1, v22")
    e("v_xor_b32 v27, s40, v26")
    e("v_lshl_add_u32 v54, v27, 6, v25")
    e("v_add_u32 v55, 49152, v54")
    for r in range(96, 112): e(f"v_mov_b32 v{r}, 0")
    e("s_waitcnt lgkmcnt(0)")
    stamp(e, 2)
    XF = [112, 116]; WF = [120, 124]
    def reads(c, ks, sel):
        buf = c % 3; s = c*4 + ks
        e(f"ds_read_b128 {vr(XF[sel],4)}, v21 offset:{32*s}")
        base = 55 if buf == 2 else 54
        bo = 0 if buf == 2 else buf*24576
        for u in range(2):
            e(f"ds_read_b64_tr_b16 {vr(WF[sel]+2*u,2)}, v{base} offset:{bo + (16*ks+4*u)*384}")
    for c in range(8):
        n = 4 if c == 0 else (0 if c == 7 else 2)
        e(f"s_waitcnt vmcnt({n})"); e("s_barrier")
        reads(c, 0, 0)
        if 1 <= c <= 5: dma_chunk(c+2)
        for ks in range(4):
            sel = ks & 1
            if ks < 3:
                reads(c, ks+1, sel ^ 1); e("s_waitcnt lgkmcnt(3)")
            else:
                e("s_waitcnt lgkmcnt(0)")
            e(f"v_mfma_f32_32x32x16_bf16 {vr(96,16)}, {vr(WF[sel],4)}, {vr(XF[sel],4)}, {vr(96,16)}")
    stamp(e, 3)
    e("s_lshl_b32 s31, s21, 6"); e("s_lshl_b32 s42, s39, 5"); e("s_add_u32 s31, s31, s42")
    e("v_add_u32 v22, s31, v19"); e("v_lshlrev_b32 v22, 5, v22"); e("v_lshl_add_u32 v22, v20, 4, v22")
    e("s_mul_i32 s44, s22, 6"); e("s_add_u32 s44, s44, s40")
    e("s_lshr_b32 s45, s44, 4")
    e("s_and_b32 s46, s44, 15")
    e("s_lshl_b32 s47, s45, 21"); e("s_lshl_b32 s46, s46, 17"); e("s_add_u32 s47, s47, s46")
    e("s_add_u32 s48, s47, 0x10000")
    e("s_cmp_eq_u32 s45, 0"); e(f"s_cselect_b32 s49, {f32bits(C_SCALE):#x}, 1.0")
    e.nop(8)
    a = 96
    for r in range(16): e(f"v_mul_f32 v{a+r}, s49, v{a+r}")
    for r in range(8): e(f"v_cvt_pk_bf16_f32 v{a+r}, v{a+2*r}, v{a+2*r+1}")
    e(f"buffer_store_dwordx4 {vr(a,4)}, v22, s[24:27], s47 offen")
    e(f"buffer_store_dwordx4 {vr(a+4,4)}, v22, s[24:27], s48 offen")
    e("s_cmp_ge_u32 s2, 9"); e("s_cbranch_scc1 K1_NOZ"); e("s_cmp_ge_u32 s20, 4"); e("s_cbranch_scc1 K1_NOZ")
    e("v_mov_b32 v20, 0"); e("v_mov_b32 v21, 0"); e("v_mov_b32 v22, 0"); e("v_mov_b32 v23, 0")
    e("s_lshl_b32 s37, s2, 12"); e("s_cmp_eq_u32 s2, 8"); e("s_cselect_b32 s37, 0x10000, s37"); e(f"s_add_u32 s37, s37, {WS_ST:#x}")
    e("v_lshlrev_b32 v24, 4, v0")
    e("buffer_store_dwordx4 v[20:23], v24, s[24:27], s37 offen")
    e.lab("K1_NOZ")
    if CODEPF:
        e("s_cmp_lt_u32 s2, 16"); e("s_cbranch_scc1 K1_NOPF"); e("s_cmp_ge_u32 s2, 29"); e("s_cbranch_scc1 K1_NOPF"); e("s_cmp_lg_u32 s20, 11"); e("s_cbranch_scc1 K1_NOPF")
        e("s_getpc_b64 s[56:57]")
        e("s_sub_u32 s58, s2, 16"); e("s_lshl_b32 s58, s58, 10")
        e("v_lshlrev_b32 v8, 4, v2"); e("v_add_u32 v8, s58, v8")
        e("global_load_dwordx4 v[12:15], v8, s[56:57]")
        e.lab("K1_NOPF")
    if DIAG:
        e("s_waitcnt vmcnt(0)"); stamp(e, 4)
        e("s_cmp_ge_u32 s20, 8"); e("s_cbranch_scc1 K1_END")
        stamp_out(e, 5, 1, 24)
    e.lab("K1_END"); e("s_endpgm")
    return e.txt(), descr(name, 128, 64), f"; @launch kernel={name} grid=(256,1,1) block=(768,1,1) lds=140288"

def k2():
    e = E(); name = "k2_kernel"; header(e, name)
    VB = 65536; CB = 131072; XB = 140288
    Q = 8; NM = 16; S = [32, 48]; O = 64; P2 = [80, 112]; KB = [88, 92]; VF = [96, 104]; T = 120
    e("s_cmp_ge_u32 s2, 256"); e("s_cbranch_scc1 K2_END")
    e("s_load_dwordx2 s[4:5], s[0:1], 80")
    e("v_lshrrev_b32 v1, 6, v0"); e("v_and_b32 v2, 63, v0"); e("s_nop 0")
    e("v_readfirstlane_b32 s20, v1")
    e("s_and_b32 s21, s2, 7"); e("s_lshl_b32 s21, s21, 2"); e("s_bfe_u32 s22, s2, 0x20003"); e("s_add_u32 s21, s21, s22")
    e("s_lshr_b32 s22, s2, 5")
    e("s_and_b32 s31, s20, 7"); e("s_lshr_b32 s32, s20, 3")
    e("s_waitcnt lgkmcnt(0)")
    srd(e, 8, 4, 5, 0x1000000); stamp(e, 0); tl_start(e, 2, 8, 120)
    e("v_and_b32 v7, 31, v2"); e("v_lshrrev_b32 v6, 5, v2")
    e("v_lshlrev_b32 v3, 5, v7"); e("v_lshl_add_u32 v3, v6, 4, v3")
    e("v_lshlrev_b32 v4, 4, v2")
    e("s_lshl_b32 s23, s21, 16"); e("s_lshl_b32 s24, s22, 13"); e("s_lshl_b32 s25, s31, 10")
    e("s_add_u32 s24, s24, s25"); e("s_add_u32 s24, s24, s23")
    e(f"buffer_load_dwordx4 {vr(Q,4)}, v3, s[8:11], s24 offen")
    e("s_lshl_b32 s33, s32, 15"); e("s_add_u32 s25, s25, s33")
    e(f"s_add_u32 s26, s23, s25"); e(f"s_add_u32 s26, s26, {WS_K:#x}")
    def dma(c):
        e(f"s_add_u32 s27, s26, {c*8192}"); e(f"s_add_u32 s28, s27, {WS_V-WS_K:#x}")
        e(f"s_add_u32 m0, s25, {c*8192}"); e("s_nop 0")
        e("buffer_load_dwordx4 v4, s[8:11], s27 offen lds")
        e(f"s_add_u32 m0, s25, {VB + c*8192}"); e("s_nop 0")
        e("buffer_load_dwordx4 v4, s[8:11], s28 offen lds")
    dma(0); dma(1)
    e(f"v_and_b32 v{T}, 1, v0")
    e(f"v_mov_b32 v{T+4}, 0x3f80"); e(f"v_mov_b32 v{T+5}, 0"); e(f"v_mov_b32 v{T+7}, 0")
    e(f"v_cmp_eq_u32 vcc, 0, v{T}"); e("s_nop 1")
    e(f"v_cndmask_b32 v{T+4}, 0, v{T+4}, vcc"); e(f"v_mov_b32 v{T+6}, v{T+4}")
    e(f"v_lshlrev_b32 v{T+1}, 4, v0"); e(f"v_add_u32 v{T+1}, {CB}, v{T+1}")
    e("s_cmp_ge_u32 s20, 9"); e("s_cbranch_scc1 K2_NOC")
    e(f"ds_write_b128 v{T+1}, {vr(T+4,4)}")
    e.lab("K2_NOC")
    e("v_add_u32 v3, s33, v3")
    e(f"v_bfe_u32 v{T}, v2, 2, 2"); e(f"v_and_b32 v{T+1}, 3, v2"); e(f"v_bfe_u32 v{T+2}, v2, 4, 1")
    e(f"v_lshl_add_u32 v{T+3}, v6, 2, v{T}")
    e(f"v_lshlrev_b32 v{T+3}, 5, v{T+3}"); e(f"v_lshl_add_u32 v{T+3}, v{T+1}, 3, v{T+3}")
    e(f"v_add_u32 v{T+3}, {VB}, v{T+3}"); e(f"v_add_u32 v{T+3}, s33, v{T+3}")
    e(f"v_lshlrev_b32 v{T+4}, 5, v{T}"); e(f"v_lshl_add_u32 v{T+4}, v{T+1}, 3, v{T+4}"); e(f"v_add_u32 v{T+4}, {CB}, v{T+4}")
    e(f"v_cmp_eq_u32 vcc, 0, v{T+2}"); e(f"v_mov_b32 v{T+5}, 0x2000"); e("s_nop 1")
    e(f"v_cndmask_b32 v5, v{T+4}, v{T+3}, vcc")
    e(f"v_cndmask_b32 v1, 0, v{T+5}, vcc")
    for r in range(16): e(f"v_mov_b32 v{O+r}, 0")
    for r in range(8): e(f"v_mov_b32 v{P2[1]+r}, 0"); e(f"v_mov_b32 v{VF[1]+r}, 0")
    e("s_waitcnt vmcnt(2) lgkmcnt(0)"); e("s_barrier"); stamp(e, 1)
    e(f"ds_read_b128 {vr(KB[0],4)}, v3")
    e("s_waitcnt lgkmcnt(0)")
    e(f"v_mfma_f32_32x32x16_bf16 {vr(S[0],16)}, {vr(KB[0],4)}, {vr(Q,4)}, 0")
    e(f"ds_read_b128 {vr(KB[1],4)}, v3 offset:1024")
    for j in range(2):
        for u in range(2):
            e(f"ds_read_b64_tr_b16 {vr(VF[0]+4*j+2*u,2)}, v5 offset:{j*512+u*256}")
    dma(2); dma(3)
    s0 = S[0]
    e(f"v_max3_f32 v{T}, v{s0}, v{s0+1}, v{s0+2}")
    for r in range(3, 15, 2): e(f"v_max3_f32 v{T}, v{T}, v{s0+r}, v{s0+r+1}")
    e(f"v_max_f32 v{T}, v{T}, v{s0+15}")
    e(f"v_mov_b32 v{T+1}, v{T}"); e("s_nop 1")
    e(f"v_permlane32_swap_b32 v{T}, v{T+1}"); e("s_nop 1")
    e(f"v_max_f32 v{T}, v{T}, v{T+1}")
    e(f"v_sub_f32 v{T}, 0, v{T}")
    for r in range(16): e(f"v_mov_b32 v{NM+r}, v{T}")
    e("s_nop 1")
    e(f"v_mfma_f32_32x32x16_bf16 {vr(S[0],16)}, {vr(KB[0],4)}, {vr(Q,4)}, {vr(NM,16)}")
    stamp(e, 2)
    e("s_mov_b32 s30, 0"); e.nop(10)
    e.lab("K2_LOOP")
    for i in range(8):
        cur = i & 1; nx = cur ^ 1; sc = S[cur]; Pc = P2[cur]; Pp = P2[nx]
        if i == 5:
            e("s_cmp_gt_u32 s30, 2"); e("s_cbranch_scc1 K2_NW")
            e("s_cmp_eq_u32 s30, 0"); e("s_cbranch_scc0 K2_W1")
            e("s_waitcnt vmcnt(4)"); e("s_branch K2_WB")
            e.lab("K2_W1"); e("s_cmp_eq_u32 s30, 1"); e("s_cbranch_scc0 K2_W2")
            e("s_waitcnt vmcnt(2)"); e("s_branch K2_WB")
            e.lab("K2_W2"); e("s_waitcnt vmcnt(0)")
            e("s_load_dwordx2 s[40:41], s[0:1], 16"); e("s_load_dwordx4 s[44:47], s[0:1], 40"); e("s_load_dwordx2 s[48:49], s[0:1], 56")
            e("s_lshl_b32 s42, s2, 4"); e("s_add_u32 s42, s42, s20")
            e("s_waitcnt lgkmcnt(0)")
            e("s_cmp_lt_u32 s42, 1792"); e("s_cselect_b32 s52, s44, s46"); e("s_cselect_b32 s53, s45, s47"); e("s_cselect_b32 s43, 0, 1792")
            e("s_cmp_lt_u32 s42, 3584"); e("s_cselect_b32 s52, s52, s48"); e("s_cselect_b32 s53, s53, s49"); e("s_cselect_b32 s43, s43, 3584")
            e("s_mov_b32 s54, 1835008"); e("s_mov_b32 s55, 0x00020000")
            e("s_sub_u32 s43, s42, s43"); e("s_lshl_b32 s43, s43, 10")
            e("buffer_load_dwordx4 v[12:15], v4, s[52:55], s43 offen")
            e("s_add_u32 s43, s42, 512"); e("s_sub_u32 s50, s42, 1280"); e("s_mov_b32 s51, 524288")
            e("s_cmp_lt_u32 s42, 1280"); e("s_cselect_b32 s56, s48, s40"); e("s_cselect_b32 s57, s49, s41"); e("s_cselect_b32 s58, s54, s51")
            e("s_cselect_b32 s43, s43, s50"); e("s_mov_b32 s59, 0x00020000"); e("s_lshl_b32 s43, s43, 10")
            e("buffer_load_dwordx4 v[12:15], v4, s[56:59], s43 offen")
            e.lab("K2_WB"); e("s_barrier")
            e.lab("K2_NW")
        ex = lambda r: e(f"v_exp_f32 v{sc+r}, v{sc+r}")
        cv = lambda p: e(f"v_cvt_pk_bf16_f32 v{Pc+p}, v{sc+2*p}, v{sc+2*p+1}")
        e("s_waitcnt lgkmcnt(4)")
        e(f"v_mfma_f32_32x32x16_bf16 {vr(S[nx],16)}, {vr(KB[nx],4)}, {vr(Q,4)}, {vr(NM,16)}")
        e(f"ds_read_b128 {vr(KB[cur],4)}, v3 offset:{(i+2)*1024}")
        ex(0); ex(1); ex(2); cv(0); ex(3); ex(4); cv(1)
        e(f"v_mfma_f32_32x32x16_bf16 {vr(O,16)}, {vr(VF[nx],4)}, {vr(Pp,4)}, {vr(O,16)}")
        ex(5); ex(6); cv(2); ex(7); ex(8); cv(3); ex(9); ex(10); cv(4)
        e(f"v_mfma_f32_32x32x16_bf16 {vr(O,16)}, {vr(VF[nx]+4,4)}, {vr(Pp+4,4)}, {vr(O,16)}")
        for j in range(2):
            for u in range(2):
                e(f"ds_read_b64_tr_b16 {vr(VF[nx]+4*j+2*u,2)}, v5 offset:{(i+1)*1024 + j*512+u*256}")
        ex(11); ex(12); cv(5); ex(13); ex(14); cv(6); ex(15); e("s_nop 0"); cv(7)
    e("v_add_u32 v3, 0x2000, v3"); e("v_add_u32 v5, v5, v1")
    e("s_add_u32 s30, s30, 1"); e("s_cmp_lt_u32 s30, 4"); e("s_cbranch_scc1 K2_LOOP")
    e("s_waitcnt lgkmcnt(0)")
    e(f"v_mfma_f32_32x32x16_bf16 {vr(O,16)}, {vr(VF[1],4)}, {vr(P2[1],4)}, {vr(O,16)}")
    e(f"v_mfma_f32_32x32x16_bf16 {vr(O,16)}, {vr(VF[1]+4,4)}, {vr(P2[1]+4,4)}, {vr(O,16)}")
    e.nop(16)
    stamp(e, 3)
    e(f"v_mov_b32 v{T}, 0x5d800000")
    e(f"v_cmp_nlt_f32 vcc, v{O+8}, v{T}"); e("s_nop 4")
    e("s_cbranch_vccnz K2_SLOW")
    e.lab("K2_OUT")
    e("s_mul_i32 s34, s31, 2560"); e(f"s_add_u32 s34, s34, {XB}")
    e(f"v_lshl_add_u32 v{T+1}, v2, 2, s34")
    e("s_cmp_eq_u32 s32, 0"); e("s_cbranch_scc1 K2_LOW")
    for r in range(9): e(f"ds_write_b32 v{T+1}, v{O+r} offset:{256*r}")
    e(f"ds_write_b32 v{T+1}, v{NM} offset:{256*9}")
    e("s_waitcnt lgkmcnt(0)"); e("s_barrier")
    if DIAG: stamp_out(e, 4, 2, 8, "s20")
    e("s_endpgm")
    e.lab("K2_LOW")
    e("s_barrier")
    for r in range(10): e(f"ds_read_b32 v{S[0]+r}, v{T+1} offset:{256*r}")
    e("s_waitcnt lgkmcnt(0)")
    e(f"v_min_f32 v{T}, v{NM}, v{S[0]+9}")
    e(f"v_sub_f32 v{T+2}, v{T}, v{NM}"); e(f"v_sub_f32 v{T+3}, v{T}, v{S[0]+9}")
    e(f"v_exp_f32 v{T+2}, v{T+2}"); e(f"v_exp_f32 v{T+3}, v{T+3}"); e("s_nop 0")
    for r in range(9):
        e(f"v_mul_f32 v{O+r}, v{O+r}, v{T+2}"); e(f"v_fmac_f32 v{O+r}, v{S[0]+r}, v{T+3}")
    e(f"v_rcp_f32 v{T}, v{O+8}"); e("s_nop 0")
    for r in range(8): e(f"v_mul_f32 v{O+r}, v{O+r}, v{T}")
    for r in range(4): e(f"v_cvt_pk_bf16_f32 v{P2[0]+r}, v{O+2*r}, v{O+2*r+1}")
    e("s_lshl_b32 s24, s22, 8"); e("s_lshl_b32 s25, s31, 5"); e("s_add_u32 s24, s24, s25")
    e(f"v_add_u32 v{T+1}, s24, v7"); e(f"v_lshlrev_b32 v{T+1}, 10, v{T+1}"); e(f"v_lshl_add_u32 v{T+1}, v6, 4, v{T+1}")
    e("s_lshl_b32 s25, s21, 5"); e(f"s_add_u32 s25, s25, {WS_O:#x}")
    e(f"buffer_store_dwordx4 {vr(P2[0],4)}, v{T+1}, s[8:11], s25 offen")
    if DIAG: stamp_out(e, 4, 2, 8, "s20")
    e("s_endpgm")
    e.lab("K2_SLOW")
    P = P2[0]
    e("v_subrev_u32 v3, 0x8000, v3")
    e(f"v_lshlrev_b32 v{T+5}, 2, v1"); e(f"v_sub_u32 v5, v5, v{T+5}")
    e(f"v_lshrrev_b32 v1, 3, v1")
    e(f"v_sub_f32 v{NM}, 0, v{NM}")
    for r in range(16): e(f"v_mov_b32 v{O+r}, 0")
    e("s_mov_b32 s30, 0")
    e.lab("K2_SL")
    e(f"ds_read_b128 {vr(KB[0],4)}, v3")
    for j in range(2):
        for u in range(2):
            e(f"ds_read_b64_tr_b16 {vr(VF[0]+4*j+2*u,2)}, v5 offset:{j*512+u*256}")
    e("s_waitcnt lgkmcnt(0)")
    e(f"v_mfma_f32_32x32x16_bf16 {vr(S[0],16)}, {vr(KB[0],4)}, {vr(Q,4)}, 0")
    e.nop(16)
    e(f"v_max3_f32 v{T}, v{s0}, v{s0+1}, v{s0+2}")
    for r in range(3, 15, 2): e(f"v_max3_f32 v{T}, v{T}, v{s0+r}, v{s0+r+1}")
    e(f"v_max3_f32 v{T}, v{T}, v{s0+15}, v{NM}")
    e(f"v_mov_b32 v{T+1}, v{T}"); e("s_nop 1")
    e(f"v_permlane32_swap_b32 v{T}, v{T+1}"); e("s_nop 1")
    e(f"v_max_f32 v{T}, v{T}, v{T+1}")
    e(f"v_sub_f32 v{T+1}, v{NM}, v{T}"); e(f"v_exp_f32 v{T+1}, v{T+1}"); e(f"v_mov_b32 v{NM}, v{T}")
    for r in range(16): e(f"v_mul_f32 v{O+r}, v{O+r}, v{T+1}")
    for r in range(16): e(f"v_sub_f32 v{s0+r}, v{s0+r}, v{T}")
    for r in range(16): e(f"v_exp_f32 v{s0+r}, v{s0+r}")
    e("s_nop 0")
    for p in range(8): e(f"v_cvt_pk_bf16_f32 v{P+p}, v{s0+2*p}, v{s0+2*p+1}")
    e("s_nop 1")
    e(f"v_mfma_f32_32x32x16_bf16 {vr(O,16)}, {vr(VF[0],4)}, {vr(P,4)}, {vr(O,16)}")
    e(f"v_mfma_f32_32x32x16_bf16 {vr(O,16)}, {vr(VF[0]+4,4)}, {vr(P+4,4)}, {vr(O,16)}")
    e("v_add_u32 v3, 0x400, v3"); e("v_add_u32 v5, v5, v1")
    e.nop(16)
    e("s_add_u32 s30, s30, 1"); e("s_cmp_lt_u32 s30, 32"); e("s_cbranch_scc1 K2_SL")
    e(f"v_sub_f32 v{NM}, 0, v{NM}")
    e("s_branch K2_OUT")
    e.lab("K2_END"); e("s_endpgm")
    return e.txt(), descr(name, 128, 64), f"; @launch kernel={name} grid=(256,1,1) block=(1024,1,1) lds=160768"

def k3():
    e = E(); name = "k3_kernel"; header(e, name)
    OB = 65536; AP = 1040
    e("s_cmp_ge_u32 s2, 256"); e("s_cbranch_scc1 K3_END")
    e("s_load_dwordx2 s[4:5], s[0:1], 0"); e("s_load_dwordx2 s[6:7], s[0:1], 16"); e("s_load_dwordx2 s[8:9], s[0:1], 80"); e("s_load_dwordx2 s[10:11], s[0:1], 32")
    e("v_lshrrev_b32 v1, 6, v0"); e("v_and_b32 v2, 63, v0"); e("s_nop 0")
    e("v_readfirstlane_b32 s20, v1")
    e("s_and_b32 s21, s2, 7"); e("s_lshl_b32 s21, s21, 2"); e("s_bfe_u32 s22, s2, 0x20003"); e("s_add_u32 s21, s21, s22"); e("s_lshr_b32 s22, s2, 5")
    e("s_and_b32 s39, s20, 1"); e("s_lshr_b32 s40, s20, 1")
    e("s_waitcnt lgkmcnt(0)")
    srd(e, 12, 4, 5, 2097152); srd(e, 16, 6, 7, 524288); srd(e, 24, 8, 9, 0x1000000); srd(e, 44, 10, 11, 1024); stamp(e, 0); tl_start(e, 3, 24, 90)
    e("v_lshrrev_b32 v4, 3, v2"); e("v_lshlrev_b32 v4, 10, v4")
    e("v_bfe_u32 v5, v2, 2, 1"); e("v_bfe_u32 v6, v2, 4, 1"); e("v_xor_b32 v5, v5, v6")
    e("v_lshl_add_u32 v4, v5, 6, v4"); e("v_and_b32 v5, 3, v2"); e("v_lshl_add_u32 v4, v5, 4, v4")
    e("s_lshl_b32 s31, s22, 7"); e("v_add_u32 v4, s31, v4")
    e("v_lshlrev_b32 v3, 4, v2")
    e("s_lshl_b32 s32, s20, 17")
    e("s_lshl_b32 s33, s20, 14")
    e("s_lshl_b32 s35, s21, 16"); e("s_lshl_b32 s36, s20, 14"); e("s_add_u32 s35, s35, s36"); e(f"s_add_u32 s35, s35, {WS_O:#x}")
    e(f"s_mul_i32 s36, s20, {16*AP}"); e(f"s_add_u32 s36, s36, {OB}")
    for i in range(16):
        e(f"s_add_u32 s34, s35, {i*1024}"); e(f"s_add_u32 m0, s36, {i*AP}"); e("s_nop 0")
        e("buffer_load_dwordx4 v3, s[24:27], s34 offen lds")
        e(f"s_add_u32 s34, s32, {i*8192}"); e(f"s_add_u32 m0, s33, {i*1024}"); e("s_nop 0")
        e("buffer_load_dwordx4 v4, s[16:19], s34 offen lds")
    e("v_and_b32 v19, 31, v2"); e("v_lshrrev_b32 v20, 5, v2")
    e("s_lshl_b32 s31, s21, 6"); e("s_lshl_b32 s35, s39, 5"); e("s_add_u32 s31, s31, s35")
    e("v_add_u32 v21, s31, v19")
    e("v_lshlrev_b32 v22, 10, v21")
    e("s_lshl_b32 s37, s22, 7"); e("s_lshl_b32 s38, s40, 6"); e("s_add_u32 s37, s37, s38")
    e("v_lshlrev_b32 v23, 3, v20"); e("v_add_u32 v23, s37, v23")
    e("v_add_u32 v24, v22, v23")
    e("v_lshl_add_u32 v24, v20, 3, v24")
    for g in (0, 2):
        e(f"buffer_load_dwordx4 {vr(32+2*g,4)}, v24, s[12:15], 0 offen offset:{16*g}")
    for g in range(4):
        e(f"buffer_load_dwordx2 {vr(40+2*g,2)}, v23, s[44:47], 0 offen offset:{16*g}")
    e("v_add_u32 v26, s35, v19"); e(f"v_mul_u32_u24 v26, {AP}, v26"); e("v_lshl_add_u32 v26, v20, 4, v26"); e(f"v_add_u32 v26, {OB}, v26")
    e("v_bfe_u32 v5, v2, 2, 2"); e("v_and_b32 v6, 3, v2"); e("v_bfe_u32 v7, v2, 4, 1")
    e("v_lshl_add_u32 v25, v20, 3, v5"); e("v_lshlrev_b32 v25, 7, v25")
    e("v_lshl_add_u32 v25, v7, 5, v25"); e("v_lshl_add_u32 v25, v6, 3, v25")
    e("v_lshrrev_b32 v5, 1, v5"); e("v_xor_b32 v5, s40, v5"); e("v_lshl_add_u32 v25, v5, 6, v25")
    for r in range(16): e(f"v_mov_b32 v{48+r}, 0")
    e("s_waitcnt vmcnt(6)"); e("s_barrier"); stamp(e, 1)
    NB = 4
    WF = [64 + 8*i for i in range(NB)]; XF = [68 + 8*i for i in range(NB)]
    def rd(s):
        sel = s % NB
        e(f"ds_read_b128 {vr(XF[sel],4)}, v26 offset:{32*s}")
        for u in range(2):
            e(f"ds_read_b64_tr_b16 {vr(WF[sel]+2*u,2)}, v25 offset:{(16*s+4*u)*128}")
    for s in range(NB-1): rd(s)
    for s in range(32):
        sel = s % NB
        if s + NB - 1 < 32: rd(s + NB - 1)
        rem = min(31 - s, NB - 1)
        e(f"s_waitcnt lgkmcnt({3*rem})")
        e(f"v_mfma_f32_32x32x16_bf16 {vr(48,16)}, {vr(WF[sel],4)}, {vr(XF[sel],4)}, {vr(48,16)}")
    stamp(e, 2)
    e("s_mov_b32 s41, 0x3f803f80"); e("v_mov_b32 v8, s41")
    e("v_mov_b32 v9, 0"); e("v_mov_b32 v10, 0"); e("v_mov_b32 v11, 0")
    e("s_waitcnt vmcnt(0)")
    for g in (0, 2):
        e(f"v_permlane32_swap_b32 v{32+2*g}, v{34+2*g}"); e(f"v_permlane32_swap_b32 v{33+2*g}, v{35+2*g}")
    e.nop(8)
    for p in range(8):
        a = 48 + 2*p; x = 32 + p
        e(f"v_cvt_pk_bf16_f32 v12, v{a}, v{a+1}")
        e("v_lshlrev_b32 v13, 16, v12"); e("v_and_b32 v14, 0xffff0000, v12")
        e(f"v_lshlrev_b32 v15, 16, v{x}"); e(f"v_and_b32 v16, 0xffff0000, v{x}")
        e("v_add_f32 v13, v13, v15"); e("v_add_f32 v14, v14, v16")
        e(f"v_cvt_pk_bf16_f32 v{x}, v13, v14")
        e(f"v_dot2_f32_bf16 v9, v{x}, v8, v9")
        e(f"v_dot2_f32_bf16 v10, v{x}, v{x}, v10")
        e(f"v_dot2_f32_bf16 v11, v{x}, v{40+p}, v11")
    e(f"s_mov_b32 s36, {WS_H:#x}")
    e("s_nop 1")
    for g in (0, 2):
        e(f"v_permlane32_swap_b32 v{32+2*g}, v{34+2*g}"); e(f"v_permlane32_swap_b32 v{33+2*g}, v{35+2*g}")
    for g in (0, 2):
        e(f"buffer_store_dwordx4 {vr(32+2*g,4)}, v24, s[24:27], s36 offen offset:{16*g}")
    for q in range(3): e(f"v_mov_b32 v{12+q}, v{9+q}")
    e("s_nop 1")
    for q in range(3): e(f"v_permlane32_swap_b32 v{9+q}, v{12+q}")
    e("s_nop 1")
    for q in range(3): e(f"v_add_f32 v{9+q}, v{9+q}, v{12+q}")
    e("v_lshlrev_b32 v15, 2, v21")
    e("s_mov_b64 exec, 0xffffffff")
    for q in range(3):
        e(f"s_mov_b32 s36, {WS_ST + 8192*q:#x}")
        e(f"buffer_atomic_add_f32 v{9+q}, v15, s[24:27], s36 offen")
    if DIAG:
        e("s_waitcnt vmcnt(0)"); stamp(e, 3); stamp_out(e, 4, 3, 24)
    e.lab("K3_END"); e("s_endpgm")
    return e.txt(), descr(name, 96, 64), f"; @launch kernel={name} grid=(256,1,1) block=(256,1,1) lds=132096"

def ln2_elem(e, x, mb, rinv, t):
    e(f"v_lshlrev_b32 v{t}, 16, v{x}"); e(f"v_and_b32 v{t+1}, 0xffff0000, v{x}")
    e(f"v_sub_f32 v{t+2}, v{t}, v{mb}"); e(f"v_sub_f32 v{t+3}, v{t+1}, v{mb}")
    e(f"v_cvt_pk_bf16_f32 v{t+2}, v{t+2}, v{t+3}")
    e(f"v_and_b32 v{t+3}, 0xffff0000, v{t+2}"); e(f"v_lshlrev_b32 v{t+2}, 16, v{t+2}")
    e(f"v_mul_f32 v{t+2}, v{t+2}, v{rinv}"); e(f"v_mul_f32 v{t+3}, v{t+3}, v{rinv}")
    e(f"v_cvt_pk_bf16_f32 v{t+2}, v{t+2}, v{t+3}")

WS_Y = 0xA10000
def k4():
    e = E(); name = "k4_kernel"; header(e, name)
    NF = 56; NE = 32
    L_XS = 1024; L_H = 5120; L_G = 8192; L_S2 = 40960; L_ACT = 45056; L_D = 49152; L_FLAG = 8064
    e(f"s_cmp_ge_u32 s2, {NF+NE}"); e("s_cbranch_scc1 K4_END")
    e("s_load_dwordx2 s[4:5], s[0:1], 80"); e("s_load_dwordx4 s[8:11], s[0:1], 64")
    e("s_load_dwordx8 s[44:51], s[0:1], 32")
    e("v_lshrrev_b32 v1, 6, v0"); e("v_and_b32 v2, 63, v0"); e("s_nop 0")
    e("v_readfirstlane_b32 s20, v1")
    e("s_waitcnt lgkmcnt(0)")
    srd(e, 12, 4, 5, 0x1000000); srd(e, 16, 8, 9, 2097152); srd(e, 24, 44, 45, 1024)
    srd(e, 28, 46, 47, 1835008); srd(e, 32, 48, 49, 1835008); srd(e, 36, 50, 51, 1835008); srd(e, 40, 10, 11, 256)
    stamp(e, 0); tl_start(e, 4, 12, 108)
    e("v_lshlrev_b32 v7, 2, v0"); e("v_mov_b32 v3, 0"); e("v_mov_b32 v6, 0"); e("v_mov_b32 v11, 0")
    e(f"s_mov_b32 s52, {WS_ST:#x}"); e(f"s_mov_b32 s53, {WS_ST + 8192:#x}"); e(f"s_mov_b32 s54, {WS_H:#x}"); e(f"s_mov_b32 s67, {WS_ST + 16384:#x}")
    e("v_add_u32 v8, 4096, v7")
    for q, sq in enumerate(("s52", "s53", "s67")):
        e(f"buffer_load_dword v{64+q}, v7, s[12:15], {sq} offen")
        e(f"buffer_load_dword v{68+q}, v8, s[12:15], {sq} offen")
    e(f"s_mov_b32 s55, {WS_ST + 0x8000:#x}")
    e("s_load_dword s66, s[4:5], s55")
    e(f"s_cmp_lt_u32 s2, {NF}"); e("s_cbranch_scc1 K4_LF")
    e(f"s_sub_u32 s21, s2, {NF}"); e("s_lshl_b32 s21, s21, 6"); e("s_lshl_b32 s22, s20, 2"); e("s_add_u32 s21, s21, s22")
    e("v_lshrrev_b32 v4, 4, v2"); e("v_and_b32 v5, 15, v2")
    e("v_add_u32 v6, s21, v4")
    e("v_lshlrev_b32 v3, 10, v6"); e("v_lshl_add_u32 v3, v5, 4, v3")
    e("v_lshlrev_b32 v9, 2, v6")
    e("buffer_load_dword v72, v9, s[12:15], s52 offen"); e("buffer_load_dword v73, v9, s[12:15], s53 offen")
    for i in range(4):
        e(f"buffer_load_dwordx4 {vr(80+4*i,4)}, v3, s[12:15], s54 offen offset:{256*i}")
    e("s_waitcnt vmcnt(6) lgkmcnt(0)"); e("s_branch K4_TOP")
    e.lab("K4_LF")
    e("s_waitcnt vmcnt(0) lgkmcnt(0)")
    e.lab("K4_TOP"); stamp(e, 1)
    e("s_mov_b32 s56, 0xfffff800")
    for i in range(2):
        b = 64 + 4*i; t = 18 + 8*i
        e(f"v_mul_f32 v{t}, 0x3b000000, v{b}")
        e(f"v_mul_f32 v{t+1}, 0x3b000000, v{b+1}")
        e(f"v_fma_f32 v{t+1}, -v{t}, v{t}, v{t+1}")
        e(f"v_max_f32 v{t+1}, 0, v{t+1}")
        e(f"v_add_f32 v{t+1}, 0x3727c5ac, v{t+1}")
        e(f"v_rsq_f32 v{t+1}, v{t+1}")
        e(f"v_fma_f32 v{t+4}, -v{t}, s66, v{b+2}")
        e(f"v_sub_u32 v{t+5}, {2047 - 1024*i}, v0")
        e(f"v_mul_f32 v{t+4}, v{t+4}, v{t+1}")
        e(f"v_ashrrev_i32 v{t+2}, 31, v{t+4}")
        e(f"v_or_b32 v{t+2}, 0x80000000, v{t+2}")
        e(f"v_xor_b32 v{t+4}, v{t+4}, v{t+2}")
        e(f"v_and_or_b32 v{t+4}, v{t+4}, s56, v{t+5}")
    e("v_max_u32 v16, v22, v30"); e("v_min_u32 v17, v22, v30")
    def red16():
        for ror in (8, 4, 2, 1):
            e("s_nop 1")
            e(f"v_mov_b32_dpp v18, v16 row_ror:{ror} row_mask:0xf bank_mask:0xf")
            e(f"v_mov_b32_dpp v19, v17 row_ror:{ror} row_mask:0xf bank_mask:0xf")
            e("v_min_u32 v20, v16, v18"); e("v_max_u32 v16, v16, v18"); e("v_max3_u32 v17, v17, v19, v20")
    red16()
    e("v_lshrrev_b32 v18, 4, v0"); e("v_lshlrev_b32 v18, 3, v18")
    e("ds_write_b64 v18, v[16:17]")
    e("s_waitcnt lgkmcnt(0)"); e("s_barrier")
    e("v_lshlrev_b32 v18, 3, v2")
    e("ds_read_b64 v[16:17], v18")
    e("s_waitcnt lgkmcnt(0)")
    red16()
    e("s_nop 0")
    for q in range(4):
        e(f"v_readlane_b32 s{56+2*q}, v16, {16*q}"); e(f"v_readlane_b32 s{57+2*q}, v17, {16*q}")
    def smerge(d, a, b):
        e(f"s_min_u32 s64, s{a}, s{b}"); e(f"s_max_u32 s65, s{a+1}, s{b+1}"); e(f"s_max_u32 s{d}, s{a}, s{b}"); e(f"s_max_u32 s{d+1}, s64, s65")
    smerge(56, 56, 58); smerge(60, 60, 62); smerge(56, 56, 60)
    e("s_and_b32 s56, s56, 0x7ff"); e("s_and_b32 s57, s57, 0x7ff")
    e("s_sub_u32 s56, 2047, s56"); e("s_sub_u32 s57, 2047, s57")
    stamp(e, 2)
    e(f"s_cmp_lt_u32 s2, {NF}"); e("s_cbranch_scc1 K4_FFN")
    e("s_waitcnt vmcnt(0)")
    ln_scalars(e, 72, 73, 12, (14, 15), "0x3b000000")
    e("v_rcp_f32 v15, v15"); e("s_nop 0")
    for j in range(16):
        x = 80 + j
        ln2_elem(e, x, 14, 15, 32)
        e("v_and_b32 v35, 0xffff0000, v34"); e("v_lshlrev_b32 v34, 16, v34")
        e("v_add_f32 v34, v32, v34"); e("v_add_f32 v35, v33, v35")
        e(f"v_cvt_pk_bf16_f32 v{x}, v34, v35")
    e("v_cmp_ne_u32 vcc, s56, v6"); e("v_cmp_ne_u32 s[60:61], s57, v6"); e("s_nop 1")
    e("s_and_b64 s[60:61], s[60:61], vcc"); e("s_and_b64 exec, exec, s[60:61]")
    e("s_cbranch_execz K4_END")
    for i in range(4):
        e(f"buffer_store_dwordx4 {vr(80+4*i,4)}, v3, s[16:19], 0 offen offset:{256*i}")
    e("s_endpgm")
    e.lab("K4_FFN")
    e("s_cmp_ge_u32 s20, 8"); e("s_cbranch_scc1 K4_NOXL")
    e("s_cmp_lt_u32 s20, 4"); e("s_cselect_b32 s58, s56, s57")
    e("s_lshl_b32 s59, s58, 2"); e("s_add_u32 s61, s59, s53"); e("s_add_u32 s59, s59, s52")
    e("s_lshl_b32 s60, s58, 10"); e("s_add_u32 s60, s60, s54")
    e("v_and_b32 v19, 255, v0"); e("v_lshlrev_b32 v20, 2, v19"); e("v_mov_b32 v21, 0")
    e("buffer_load_dword v24, v21, s[12:15], s59 offen"); e("buffer_load_dword v25, v21, s[12:15], s61 offen")
    e("buffer_load_dword v28, v20, s[12:15], s60 offen")
    e("buffer_load_dword v30, v20, s[24:27], 0 offen")
    e("v_lshrrev_b32 v41, 8, v0")
    e.lab("K4_NOXL")
    e("s_barrier")
    e("v_lshrrev_b32 v4, 4, v0"); e("v_and_b32 v5, 15, v0")
    e("v_mul_u32_u24 v3, 3584, v4"); e("v_lshl_add_u32 v3, v5, 2, v3")
    e("s_lshl_b32 s21, s2, 6"); e("v_add_u32 v3, s21, v3")
    for i in range(8):
        e(f"s_mov_b32 s55, {i*64*3584}")
        e(f"buffer_load_dword v{80+i}, v3, s[28:31], s55 offen")
        e(f"buffer_load_dword v{88+i}, v3, s[32:35], s55 offen")
    e("v_lshrrev_b32 v6, 8, v0"); e("v_and_b32 v9, 255, v0")
    e("v_lshlrev_b32 v11, 13, v6"); e("v_lshl_add_u32 v11, v9, 2, v11")
    e("s_lshl_b32 s21, s2, 15"); e("s_add_u32 s22, s21, 4096")
    for i in range(8):
        e(f"buffer_load_dword v{96+i}, v11, s[36:39], {'s21' if i < 4 else 's22'} offen offset:{(i&3)*1024}")
    e("s_cmp_ge_u32 s20, 8"); e("s_cbranch_scc1 K4_NOXS")
    e("s_waitcnt vmcnt(24)")
    ln_scalars(e, 24, 25, 32, (34, 35), "0x3b000000")
    e("v_rcp_f32 v35, v35"); e("s_nop 0")
    ln2_elem(e, 28, 34, 35, 36)
    e("v_mov_b32 v40, 0"); e("v_dot2_f32_bf16 v40, v38, v30, v40")
    e("v_lshlrev_b32 v42, 2, v41"); e("v_lshl_add_u32 v42, v19, 4, v42")
    e("v_lshlrev_b32 v43, 16, v38"); e("v_and_b32 v44, 0xffff0000, v38")
    e(f"ds_write_b32 v42, v43 offset:{L_XS}"); e(f"ds_write_b32 v42, v44 offset:{L_XS+8}")
    e("v_lshlrev_b32 v45, 2, v0")
    e(f"ds_write_b32 v45, v28 offset:{L_H}")
    for ror in (8, 4, 2, 1):
        e("s_nop 1"); e(f"v_add_f32_dpp v40, v40, v40 row_ror:{ror} row_mask:0xf bank_mask:0xf")
    e("v_lshrrev_b32 v45, 4, v0"); e("v_lshlrev_b32 v45, 2, v45")
    e("ds_write_b32 v45, v40 offset:512")
    e.lab("K4_NOXS")
    e("s_waitcnt lgkmcnt(0)"); e("s_barrier"); stamp(e, 3)
    for r in range(104, 112): e(f"v_mov_b32 v{r}, 0")
    e("v_lshlrev_b32 v41, 3, v4")
    for i in range(8):
        e(f"ds_read_b64 {vr(48+2*i,2)}, v41 offset:{L_XS + i*512}")
    for i in range(8):
        e(f"s_waitcnt vmcnt({22-2*i}) lgkmcnt({7-i})")
        for m in range(2):
            w = 80 + 8*m + i; t = 44 + 2*m
            e(f"v_lshlrev_b32 v{t}, 16, v{w}"); e(f"v_and_b32 v{t+1}, 0xffff0000, v{w}")
            for tk in range(2):
                a = 104 + m*4 + tk*2
                e(f"v_fmac_f32 v{a}, v{t}, v{48+2*i+tk}"); e(f"v_fmac_f32 v{a+1}, v{t+1}, v{48+2*i+tk}")
    e("v_lshlrev_b32 v41, 5, v0")
    e(f"ds_write_b128 v41, v[104:107] offset:{L_G}"); e(f"ds_write_b128 v41, v[108:111] offset:{L_G+16}")
    e("s_waitcnt lgkmcnt(0)"); e("s_barrier")
    e("v_and_b32 v41, 127, v0"); e("v_lshrrev_b32 v42, 7, v0")
    e("v_lshlrev_b32 v43, 12, v42"); e("v_lshl_add_u32 v43, v41, 2, v43")
    for g in range(8): e(f"ds_read_b32 v{48+g}, v43 offset:{L_G + 512*g}")
    e("s_waitcnt lgkmcnt(0)")
    for g in range(1, 8): e(f"v_add_f32 v48, v48, v{48+g}")
    e("v_lshlrev_b32 v43, 2, v0")
    e(f"ds_write_b32 v43, v48 offset:{L_S2}")
    e("s_waitcnt lgkmcnt(0)"); e("s_barrier")
    e("s_cmp_lg_u32 s20, 0"); e("s_cbranch_scc1 K4_NS3")
    e("v_lshrrev_b32 v41, 5, v2"); e("v_and_b32 v42, 31, v2"); e("v_lshrrev_b32 v43, 1, v42"); e("v_and_b32 v44, 1, v42")
    e("v_lshlrev_b32 v45, 5, v43"); e("v_lshl_add_u32 v45, v41, 3, v45"); e("v_lshl_add_u32 v45, v44, 2, v45")
    for g in range(8):
        e(f"ds_read_b32 v{48+g}, v45 offset:{L_S2 + 512*g}")
        e(f"ds_read_b32 v{56+g}, v45 offset:{L_S2 + 512*g + 16}")
    e("s_waitcnt lgkmcnt(0)")
    for g in range(1, 8):
        e(f"v_add_f32 v48, v48, v{48+g}"); e(f"v_add_f32 v56, v56, v{56+g}")
    rnd_bf16(e, 48, 48); rnd_bf16(e, 56, 56)
    e("v_mul_f32 v49, 0xbfb8aa3b, v48"); e("v_exp_f32 v49, v49"); e("s_nop 0")
    e("v_add_f32 v49, 1.0, v49"); e("v_rcp_f32 v49, v49"); e("s_nop 0")
    e("v_mul_f32 v49, v48, v49"); rnd_bf16(e, 49, 49)
    e("v_mul_f32 v49, v49, v56"); rnd_bf16(e, 49, 49)
    e("v_lshlrev_b32 v50, 3, v42"); e("v_lshl_add_u32 v50, v41, 2, v50")
    e(f"ds_write_b32 v50, v49 offset:{L_ACT}")
    e("s_waitcnt lgkmcnt(0)")
    e.lab("K4_NS3")
    e("s_barrier"); stamp(e, 4)
    e("v_lshlrev_b32 v41, 6, v6")
    for i in range(8): e(f"ds_read_b64 {vr(48+2*i,2)}, v41 offset:{L_ACT + 8*i}")
    for r in range(104, 108): e(f"v_mov_b32 v{r}, 0")
    for i in range(8):
        e(f"s_waitcnt vmcnt({7-i}) lgkmcnt({7-i})")
        w = 96 + i; t = 44 + 2*(i & 1)
        e(f"v_lshlrev_b32 v{t}, 16, v{w}"); e(f"v_and_b32 v{t+1}, 0xffff0000, v{w}")
        for tk in range(2):
            a = 104 + tk*2
            e(f"v_fmac_f32 v{a}, v{t}, v{48+2*i+tk}"); e(f"v_fmac_f32 v{a+1}, v{t+1}, v{48+2*i+tk}")
    e("v_lshlrev_b32 v41, 4, v0")
    e(f"ds_write_b128 v41, v[104:107] offset:{L_D}")
    e("s_waitcnt lgkmcnt(0)"); e("s_barrier")
    e("v_lshrrev_b32 v41, 9, v0"); e("v_and_b32 v42, 511, v0"); e("v_lshrrev_b32 v43, 1, v42"); e("v_and_b32 v44, 1, v42")
    e("v_lshlrev_b32 v45, 4, v43"); e("v_lshl_add_u32 v45, v41, 3, v45"); e("v_lshl_add_u32 v45, v44, 2, v45")
    for g in range(4): e(f"ds_read_b32 v{48+g}, v45 offset:{L_D + 4096*g}")
    e("s_waitcnt lgkmcnt(0)")
    e("v_add_f32 v48, v48, v49"); e("v_add_f32 v50, v50, v51"); e("v_add_f32 v48, v48, v50")
    e("v_lshlrev_b32 v46, 2, v0"); e(f"s_mov_b32 s58, {WS_Y:#x}")
    e("buffer_atomic_add_f32 v48, v46, s[12:15], s58 offen")
    e("s_waitcnt vmcnt(0)"); e("s_barrier"); stamp(e, 5)
    e("s_cmp_lg_u32 s20, 0"); e("s_cbranch_scc1 K4_NCNT")
    e("v_mov_b32 v48, 1"); e("v_mov_b32 v49, 0"); e(f"v_mov_b32 v50, {L_FLAG}")
    e("s_mov_b64 exec, 1")
    e("buffer_atomic_add v48, v49, s[40:43], 0 offen sc0")
    e("s_waitcnt vmcnt(0)")
    e("ds_write_b32 v50, v48")
    e("s_mov_b64 exec, -1")
    e("s_waitcnt lgkmcnt(0)")
    e.lab("K4_NCNT")
    e("s_barrier")
    e(f"v_mov_b32 v50, {L_FLAG}"); e("ds_read_b32 v48, v50"); e("s_waitcnt lgkmcnt(0)")
    e("v_readfirstlane_b32 s59, v48")
    if DIAG:
        stamp(e, 6); stamp_out(e, 7, 4, 12)
    e(f"s_cmp_lg_u32 s59, {NF-1}"); e("s_cbranch_scc1 K4_END")
    e("v_mov_b32 v48, 0")
    e("buffer_atomic_add_f32 v48, v46, s[12:15], s58 offen sc0")
    e("v_lshlrev_b32 v47, 6, v41")
    for q in range(4): e(f"ds_read_b128 {vr(52+4*q,4)}, v47 offset:{512 + 16*q}")
    e("v_lshlrev_b32 v47, 3, v42"); e("v_lshl_add_u32 v47, v41, 2, v47")
    e(f"ds_read_b32 v49, v47 offset:{L_XS}")
    e("v_lshlrev_b32 v47, 1, v0")
    e(f"ds_read_u16 v50, v47 offset:{L_H}")
    e("s_waitcnt lgkmcnt(0)")
    for q in range(1, 16): e(f"v_add_f32 v52, v52, v{52+q}")
    rnd_bf16(e, 52, 52)
    e("v_mul_f32 v52, 0xbfb8aa3b, v52"); e("v_exp_f32 v52, v52"); e("s_nop 0")
    e("v_add_f32 v52, 1.0, v52"); e("v_rcp_f32 v52, v52"); e("s_nop 0")
    rnd_bf16(e, 52, 52)
    e("v_lshlrev_b32 v50, 16, v50")
    e("s_cmp_lt_u32 s20, 8"); e("s_cselect_b32 s60, s56, s57"); e("s_lshl_b32 s60, s60, 10")
    e("v_lshlrev_b32 v51, 1, v42")
    e("s_waitcnt vmcnt(0)")
    rnd_bf16(e, 48, 48)
    e("v_mul_f32 v48, v48, v52"); rnd_bf16(e, 48, 48)
    e("v_add_f32 v48, v49, v48"); rnd_bf16(e, 48, 48)
    e("v_add_f32 v48, v50, v48"); e("v_cvt_pk_bf16_f32 v48, v48, v48")
    e("buffer_store_short v48, v51, s[16:19], s60 offen")
    if TL:
        e("s_cmp_lg_u32 s20, 0"); e("s_cbranch_scc1 K4_END")
        e("s_waitcnt vmcnt(0)")
        e("s_memrealtime s[60:61]"); e("s_waitcnt lgkmcnt(0)")
        e("v_lshlrev_b32 v50, 2, v2"); e(f"s_mov_b32 s62, {0xB00000:#x}")
        e("buffer_load_dword v51, v50, s[12:15], s62 offen sc1")
        e("s_waitcnt vmcnt(0)")
        e("v_mov_b32 v52, s60"); e("v_cmp_eq_u32 vcc, 5, v2"); e("s_nop 1"); e("v_cndmask_b32 v51, v51, v52, vcc")
        e("v_cmp_gt_u32 vcc, 6, v2"); e("v_cmp_lt_u32 s[60:61], 0, v2"); e("s_nop 1"); e("s_and_b64 exec, vcc, s[60:61]")
        e("buffer_store_dword v51, v50, s[40:43], 0 offen")
    e.lab("K4_END"); e("s_endpgm")
    return e.txt(), descr(name, 112, 96), f"; @launch kernel={name} grid=({NF+NE},1,1) block=(1024,1,1) lds=65536"

def main(out):
    ks = [k1(), k2(), k3(), k4()]
    s = ("; 4-kernel pipeline (hand-written, emitted by a generator script):\n"
         ";  k1: LayerNorm1 + QKV GEMM (q pre-scaled by log2(e)/4)   k2: flash attention, 32 heads x 16 dims (first-tile max + overflow check -> exact online-softmax fallback)\n"
         ";  k3: out-projection + residual + row statistics         k4: LayerNorm2 output, top-2 routing, SwiGLU FFN on the 2 routed tokens (last-arriver finalize)\n")
    for k in ks: s += k[2] + "\n"
    s += '.amdgcn_target "amdgcn-amd-amdhsa--gfx950"\n.text\n'
    for k in ks: s += k[0]
    s += '.section .rodata,"a"\n'
    for k in ks: s += k[1]
    open(out, "w").write(s)

if __name__ == "__main__":
    if len(sys.argv) > 2 and sys.argv[2] == "diag": DIAG = True
    if len(sys.argv) > 2 and sys.argv[2] == "codepf": CODEPF = True
    if len(sys.argv) > 2 and "tl" in sys.argv[2:]: TL = True
    if len(sys.argv) > 2 and "wpf" in sys.argv[2:]: WPF = True
    for q in range(1536): assert (q * 2731) >> 16 == q // 24
    main(sys.argv[1] if len(sys.argv) > 1 else "sequential_preLN__softmax_full_mha__moe_arch_mod__prompt.s")
```
